```python
import torch

def _softmax(x, axis=-1):
    return torch.softmax(x, dim=axis)
def _gelu(x):
    return torch.nn.functional.gelu(x, approximate="tanh")
def _silu(x):
    return torch.nn.functional.silu(x)
def _sigmoid(x):
    return torch.sigmoid(x)
def _layernorm(x, axis=-1, eps=1e-5):
    m = x.mean(dim=axis, keepdim=True)
    v = x.var(dim=axis, keepdim=True, unbiased=False)
    return (x - m) / torch.sqrt(v + eps)
def _scatter_add(tgt, idx, src, axis=0):
    return tgt.clone().index_add_(axis, idx, src)
def _segment_sum(src, seg, n):
    out = torch.zeros((n,) + src.shape[1:], dtype=src.dtype)
    return out.index_add_(0, seg, src)
def _pad(x, pw):
    flat = tuple(v for pair in reversed(pw) for v in pair)
    return torch.nn.functional.pad(x, flat)

kernel_name = 'interleave_layers__grouped_kv_mqa__glu_gated_reglu__prompt'

def setup_inputs():

    _w = (lambda a: (lambda t: t.to(torch.bfloat16) if t.is_floating_point() else t)(torch.as_tensor(a)))
    def _A_setup():
        B, S, D, H = 1, 2048, 512, 32
        Dh = D // H
        return {
            "x": _w((lambda *s: torch.randn(*s, dtype=torch.bfloat16) * 0.05)(B, S, D)),
            "wq": _w((lambda *s: torch.randn(*s, dtype=torch.bfloat16) * 0.05)(D, H * Dh)),
            "wk": _w((lambda *s: torch.randn(*s, dtype=torch.bfloat16) * 0.05)(D, Dh)),
            "wv": _w((lambda *s: torch.randn(*s, dtype=torch.bfloat16) * 0.05)(D, Dh)),
            "wo": _w((lambda *s: torch.randn(*s, dtype=torch.bfloat16) * 0.05)(H * Dh, D)),
        }
    _A_in = _A_setup()

    def _B_setup():
        B, S, D, F = 1, 2048, 512, 1792
        return {
            "x": _w((lambda *s: torch.randn(*s, dtype=torch.bfloat16) * 0.05)(B, S, D)),
            "W_gate": _w((lambda *s: torch.randn(*s, dtype=torch.bfloat16) * 0.4)(D, F) * (2.0 / D) ** 0.5),
            "W_up": _w((lambda *s: torch.randn(*s, dtype=torch.bfloat16) * 0.4)(D, F) * (2.0 / D) ** 0.5),
            "W_down": _w((lambda *s: torch.randn(*s, dtype=torch.bfloat16) * 0.4)(F, D) * (1.0 / F) ** 0.5),
        }
    _B_in = _B_setup()

    return {
        "A_x": _A_in["x"],
        "A_wq": _A_in["wq"],
        "A_wk": _A_in["wk"],
        "A_wv": _A_in["wv"],
        "A_wo": _A_in["wo"],
        "B_x": _B_in["x"],
        "B_W_gate": _B_in["W_gate"],
        "B_W_up": _B_in["W_up"],
        "B_W_down": _B_in["W_down"],
    }

def reference(A_x, A_wq, A_wk, A_wv, A_wo, B_x, B_W_gate, B_W_up, B_W_down):
    def _A_ref(x, wq, wk, wv, wo):
        B, S, D = x.shape
        H = 32
        Dh = D // H
        q = (lambda x, *d: x.permute(*d))((x @ wq).reshape(B, S, H, Dh), 0, 2, 1, 3)
        k = x @ wk
        v = x @ wv
        scores = torch.einsum("bhqd,bkd->bhqk", q, k) * (Dh ** -0.5)
        p = _softmax(scores, axis=-1)
        o = torch.einsum("bhqk,bkd->bhqd", p, v)
        return (lambda x, *d: x.permute(*d))(o, 0, 2, 1, 3).reshape(B, S, H * Dh) @ wo

    def _B_ref(x, W_gate, W_up, W_down):
        gate = torch.einsum("bsd,df->bsf", x, W_gate)
        up = torch.einsum("bsd,df->bsf", x, W_up)
        gate = gate * (lambda x, dt: x.to(dt))(gate > 0, gate.dtype)
        h = gate * up
        return torch.einsum("bsf,fd->bsd", h, W_down)

    x = A_x
    x = x + _A_ref(_layernorm(x, axis=-1), A_wq, A_wk, A_wv, A_wo)
    x = x + _B_ref(_layernorm(x, axis=-1), B_W_gate, B_W_up, B_W_down)
    x = x + _A_ref(_layernorm(x, axis=-1), A_wq, A_wk, A_wv, A_wo)
    x = x + _B_ref(_layernorm(x, axis=-1), B_W_gate, B_W_up, B_W_down)
    return x
```

```python
import re

class Asm:
    def __init__(self):
        self.L = []
        self.vm = []
        self.lg = []
        self.optional = False
        self.uid = 0
    def __call__(self, txt):
        for ln in txt.split("\n"):
            ln = ln.strip()
            if ln: self.L.append(ln)
    def label(self, name): self.L.append(name + ":")
    def newlabel(self, base):
        self.uid += 1
        return f"L_{base}_{self.uid}"
    def c(self, txt): self.L.append("; " + txt)
    def vmem(self, txt, tag="x"):
        self(txt)
        self.total = getattr(self, "total", 0) + 1
        if not self.optional: self.vm.append(tag)
        else:
            pass
    def wait_vm(self, tag=None):
        if tag is None:
            self("s_waitcnt vmcnt(0)"); self.vm = []; return
        tags = tag if isinstance(tag, (list, tuple, set)) else [tag]
        idx = max((i for i, t in enumerate(self.vm) if t in tags), default=-1)
        if idx < 0: return
        n = len(self.vm) - 1 - idx
        if n > 63: n = 63; idx = len(self.vm) - 1 - 63
        self(f"s_waitcnt vmcnt({n})")
        self.vm = self.vm[idx + 1:]
    def vm_n(self, tag):
        tags = tag if isinstance(tag, (list, tuple, set)) else [tag]
        idx = max((i for i, t in enumerate(self.vm) if t in tags), default=-1)
        return None if idx < 0 else len(self.vm) - 1 - idx
    def ds(self, txt, tag="x"):
        self(txt)
        if not self.optional: self.lg.append(tag)
    def wait_lg(self, tag=None):
        if tag is None:
            self("s_waitcnt lgkmcnt(0)"); self.lg = []; return
        tags = tag if isinstance(tag, (list, tuple, set)) else [tag]
        idx = max((i for i, t in enumerate(self.lg) if t in tags), default=-1)
        if idx < 0: return
        n = len(self.lg) - 1 - idx
        if n > 15: n = 15; idx = len(self.lg) - 1 - 15
        self(f"s_waitcnt lgkmcnt({n})")
        self.lg = self.lg[idx + 1:]
    def text(self):
        out = []
        for ln in self.L:
            out.append(ln if ln.endswith(":") else "    " + ln)
        return "\n".join(out) + "\n"

REG = re.compile(r"\b([vas])(?:\[(\d+):(\d+)\]|(\d+))(?![\w\[])")
def regs_of(op):
    out = set()
    for m in REG.finditer(op):
        k = m.group(1)
        if m.group(2) is not None:
            for i in range(int(m.group(2)), int(m.group(3)) + 1): out.add((k, i))
        else: out.add((k, int(m.group(4))))
    if re.search(r"\bvcc\b", op): out.add(("s", "vcc"))
    if re.search(r"\bm0\b", op): out.add(("s", "m0"))
    if re.search(r"\bexec\b", op): out.add(("s", "exec"))
    return out
def split_ops(s):
    ops, depth, cur = [], 0, ""
    for ch in s:
        if ch in "[(": depth += 1
        if ch in "])": depth -= 1
        if ch == "," and depth == 0: ops.append(cur.strip()); cur = ""
        else: cur += ch
    if cur.strip(): ops.append(cur.strip())
    return ops
TRANS = ("v_exp_", "v_log_", "v_rcp_", "v_rsq_", "v_sqrt_", "v_sin_", "v_cos_")
class I:
    def __init__(self, txt):
        self.txt = txt
        p = txt.split(None, 1)
        self.op = p[0]
        self.ops = split_ops(p[1]) if len(p) > 1 else []
        op = self.op
        self.is_mfma = op.startswith("v_mfma") or op.startswith("v_smfmac")
        self.is_valu = op.startswith("v_") and not self.is_mfma
        self.is_dot = op.startswith("v_dot")
        self.is_trans = op.startswith(TRANS)
        self.is_vmem = op.startswith(("buffer_", "global_", "flat_"))
        self.is_ds = op.startswith("ds_")
        self.is_salu = op.startswith("s_")
        self.passes = 0
        self.w, self.r = set(), set()
        self.srcC = set(); self.srcAB = set(); self.store_data = set()
        o = self.ops
        if self.is_mfma:
            self.passes = 8 if "32x32" in op else 4
            self.w = regs_of(o[0])
            self.srcAB = regs_of(o[1]) | regs_of(o[2])
            if op.startswith("v_smfmac"):
                self.srcC = regs_of(o[0]); self.srcAB |= regs_of(o[3].split()[0])
            else:
                self.srcC = regs_of(o[3].split()[0])
            self.r = self.srcAB | self.srcC
        elif self.is_valu:
            nd = 1
            if op.startswith(("v_add_co", "v_addc_co", "v_sub_co", "v_subb_co")): nd = 2
            if op.startswith("v_permlane") and "swap" in op:
                self.w = regs_of(o[0]) | regs_of(o[1]); self.r = set(self.w)
            else:
                for x in o[:nd]: self.w |= regs_of(x)
                for x in o[nd:]: self.r |= regs_of(x)
                if op.startswith(("v_fmac", "v_dot2c", "v_writelane")) or "UNUSED_PRESERVE" in txt or "_dpp" in op or "row_" in txt or "quad_perm" in txt:
                    self.r |= regs_of(o[0])
                if op.startswith("v_cmpx"): self.w.add(("s", "exec"))
        elif self.is_vmem:
            lds = " lds" in txt or "_lds_" in op
            if "load" in op and not lds:
                self.w = regs_of(o[0])
                for x in o[1:]: self.r |= regs_of(x)
            elif "store" in op or "atomic" in op:
                for x in o: self.r |= regs_of(x)
                if "x4" in op or "x3" in op:
                    self.store_data = regs_of(o[0]) if op.startswith("buffer") else regs_of(o[1])
            else:
                for x in o: self.r |= regs_of(x)
                if lds: self.r.add(("s", "m0"))
        elif self.is_ds:
            if "read" in op or "bpermute" in op or "swizzle" in op:
                self.w = regs_of(o[0])
                for x in o[1:]: self.r |= regs_of(x)
            else:
                for x in o: self.r |= regs_of(x)
        elif self.is_salu:
            if op.startswith(("s_cmp", "s_cbranch", "s_branch", "s_waitcnt", "s_nop", "s_barrier", "s_endpgm", "s_sleep", "s_setprio", "s_bitcmp")):
                for x in o: self.r |= regs_of(x)
            else:
                if o: self.w = regs_of(o[0])
                for x in o[1:]: self.r |= regs_of(x)
                if "saveexec" in op: self.w.add(("s", "exec"))
        self.states = 1
        if op == "s_nop": self.states = int(o[0], 0) + 1
    def dpp(self): return "_dpp" in self.op or "row_" in self.txt or "quad_perm" in self.txt

def need(p, c):
    n = 0
    vw = {x for x in p.w if x[0] in "va"}
    sw = {x for x in p.w if x[0] == "s"}
    if p.is_mfma:
        big = p.passes == 8
        if c.is_mfma:
            if vw & c.srcAB: n = max(n, 12 if big else 8)
            if vw & c.srcC:
                same = (p.w == c.srcC and p.passes == c.passes)
                n = max(n, 0 if same else (10 if big else 6))
            elif vw & c.w: n = max(n, 10 if big else 6)
        elif c.is_valu or c.is_vmem or c.is_ds:
            if vw & (c.r | c.w): n = max(n, 12 if big else 8)
        if c.is_valu and (p.srcC & c.w): n = max(n, 7 if big else 3)
    elif p.is_valu:
        if c.is_mfma and (vw & c.r): n = max(n, 3 if p.is_dot else 2)
        if c.is_mfma and ("s", "exec") in p.w: n = max(n, 4)
        if p.is_dot and (c.is_valu or c.is_vmem or c.is_ds) and (vw & (c.r | c.w)) and c.op != p.op: n = max(n, 3)
        if p.is_trans and (c.is_valu and not c.is_trans or c.is_vmem or c.is_ds) and (vw & c.r): n = max(n, 1)
        if c.is_valu and (c.op.startswith("v_permlane") or c.dpp()) and (vw & c.r): n = max(n, 2)
        if c.is_valu and c.op.startswith(("v_readlane", "v_readfirstlane")) and (vw & c.r): n = max(n, 1)
        if "sdwa" in p.op and c.is_valu and (vw & c.r): n = max(n, 1)
        if sw:
            if c.is_valu and (sw & c.r): n = max(n, 4 if c.op.startswith(("v_readlane", "v_writelane")) else 2)
            if c.is_vmem and (sw & c.r): n = max(n, 5)
            if c.is_salu and (sw & c.r) and not c.op.startswith("s_cbranch"): n = max(n, 1)
            if ("s", "exec") in sw and c.is_valu and c.dpp(): n = max(n, 5)
    elif p.is_salu:
        if ("s", "m0") in p.w and c.is_vmem and ("s", "m0") in c.r: n = max(n, 1)
    if p.is_vmem and p.store_data and (c.is_valu or c.is_mfma) and (p.store_data & c.w): n = max(n, 2)
    if p.is_vmem and p.store_data and (c.is_vmem or c.is_ds) and (p.store_data & c.w): n = max(n, 1)
    return n

def check_hazards(lines, fix=True, window=24):
    out = []
    nfix = 0
    def is_ins(l): return not (l.endswith(":") or l.startswith(";") or l.startswith("."))
    hist = []
    for ln in lines:
        if not is_ins(ln):
            out.append(ln); continue
        c = I(ln)
        dist = 0; req = 0
        for p in reversed(hist[-window:]):
            k = need(p, c)
            if k > dist: req = max(req, k - dist)
            dist += p.states
            if dist > 20: break
        if req > 0:
            if not fix: raise RuntimeError(f"hazard before {ln}")
            nfix += 1
            nop = f"s_nop {req-1}"
            out.append(nop + " ; auto"); hist.append(I(nop))
        out.append(ln); hist.append(c)
        if c.op in ("s_branch", "s_endpgm", "s_setpc_b64"): hist = []
    labels = {l[:-1]: i for i, l in enumerate(out) if l.endswith(":")}
    probs = []
    for i, ln in enumerate(out):
        if not is_ins(ln): continue
        p = ln.split()
        if p[0].startswith(("s_cbranch", "s_branch")) and p[1] in labels:
            before = [I(x.split(" ;")[0]) for x in out[max(0, i - 60):i + 1] if is_ins(x)][-window:]
            j = labels[p[1]]
            after = [I(x.split(" ;")[0]) for x in out[j:j + 60] if is_ins(x)][:window]
            d0 = 0
            for ci, c in enumerate(after):
                dist = d0
                for pr in reversed(before):
                    k = need(pr, c)
                    if k > dist: probs.append(f"edge {ln} -> {p[1]}: {pr.txt} => {c.txt} needs {k} has {dist}")
                    dist += pr.states
                    if dist > 20: break
                d0 += c.states
                if d0 > 20 or c.op in ("s_branch", "s_endpgm"): break
    return out, nfix, probs
```

```python
import sys, math, struct
sys.path.insert(0, "gen")
from asmlib import Asm, check_hazards

NAME = "interleave_layers__grouped_kv_mqa__glu_gated_reglu__prompt"

WS_EPOCH = 0
WS_WFLAG = 0x1000
WS_PROF = 0x10000
WS_WOT = 0x100000
WS_WDT = 0x200000
WS_WGUT = 0x400000
WS_X2 = 0x800000
WS_L0 = 0x1000000
LSTRIDE = 0x1000000
WS_SIZE = 0x3000000
L_Q = 0
L_KV = 0x200000
L_FLAG = 0x280000
L_X1 = 0x300000
L_XN1 = 0x500000
L_H = 0x700000
PH_QKV, PH_ATT, PH_FF1, PH_FF2 = 0, 1, 2, 3

LDS_X = 0
LDS_WQ = 0x10000
LDS_WKV = 0x20000
LDS_ST = 0x24400
LDS_K = 0
LDS_V = 0x10000
LDS_ONES = 0x20000
LDS_OX = 0x22000
LDS_LNX = 0x24000
LDS_RED = 0
LDS_TOTAL = 160 * 1024

sWG = 2; sW = 3; sX = 4; sI = 5; sLAYER = 6; sTAG = 7
P_X, P_WQ, P_WK, P_WV, P_WO, P_BX, P_WG, P_WU, P_WD, P_OUT, P_DBG, P_WS = [8 + 2 * i for i in range(12)]
rXIN = 32; rWQ = 36; rWKV = 40; rL = 44; rWS = 48; rOUT = 52; rR0 = 56; rR1 = 60; rR2 = 64
sTB = 68; sCB = 69; sG = 70; sBLK = 71; sSL = 72; sID1 = 73; sXST = 74; sGW = 75
sT0 = 76; sT1 = 77; sT2 = 78; sT3 = 79; sT4 = 80; sT5 = 81
sCNT = 82; sRST = 83
sM0 = 84
sM1 = 86
sM2 = 88
sM3 = 90
sTS = 92
sWDO = 94

def srd(n): return f"s[{n}:{n+3}]"
def vr(a, n=4): return f"v[{a}:{a+n-1}]"
def ar(a, n=4): return f"a[{a}:{a+n-1}]"
def f32(x): return struct.unpack("<I", struct.pack("<f", x))[0]

vL16 = 1; vTAG = 2; vPROF = 3

class Cfg:
    stop = None
    prof = False
    ffn1_t512 = False
    spin_limit = 200000

def gen(cfg):
    A = Asm()
    stamp_idx = [0]
    def stamp(name):
        if not cfg.prof: return
        A(f"s_memrealtime s[{sTS}:{sTS+1}]")
        A("s_waitcnt lgkmcnt(0)"); A.lg = []
        k = stamp_idx[0]; stamp_idx[0] += 1
        assert k < 30
        A(f"s_mul_i32 s{sTS+1}, s{sLAYER}, 30")
        A(f"s_add_u32 s{sTS+1}, s{sTS+1}, {k}")
        A(f"v_writelane_b32 v{vPROF}, s{sTS}, s{sTS+1}") if False else None
        A(f"s_mov_b32 m0, s{sTS+1}")
        A("s_nop 1")
        A(f"v_writelane_b32 v{vPROF}, s{sTS}, m0")
        cfg.stamps.append(name)
    cfg.stamps = []
    def maybe_stop(phase):
        if cfg.stop and cfg.stop[1] == phase:
            A(f"s_cmp_eq_u32 s{sLAYER}, {cfg.stop[0]}")
            A("s_cbranch_scc1 L_FINISH")

    def poll(vaddr, name, tmp=4):
        lp = A.newlabel("poll_" + name); dn = A.newlabel("polld_" + name)
        A(f"s_mov_b32 s{sCNT}, {cfg.spin_limit}")
        A.label(lp)
        A(f"buffer_load_dword v{tmp}, v{vaddr}, {srd(rL)}, 0 offen sc1")
        A("s_waitcnt vmcnt(0)"); A.vm = []
        A(f"v_cmp_ne_u32 vcc, v{tmp}, v{vTAG}")
        A(f"s_cbranch_vccz {dn}")
        A(f"s_sub_u32 s{sCNT}, s{sCNT}, 1")
        A(f"s_cmp_lg_u32 s{sCNT}, 0")
        A(f"s_cbranch_scc1 {lp}")
        A("s_branch L_TIMEOUT")
        A.label(dn)

    def publish(phase, sid, tags, tmp=4):
        A.wait_vm(tags)
        A("s_barrier")
        sk = A.newlabel("pub")
        A(f"s_cmp_lg_u32 s{sW}, 0")
        A(f"s_cbranch_scc1 {sk}")
        A(f"s_lshl_b32 s{sT0}, s{sid}, 7")
        A(f"s_add_u32 s{sT0}, s{sT0}, {L_FLAG + phase * 256 * 128}")
        A(f"v_mov_b32 v{tmp}, 0")
        A("s_mov_b64 exec, 1")
        A(f"buffer_store_dword v{vTAG}, v{tmp}, {srd(rL)}, s{sT0} offen sc1")
        A("s_mov_b64 exec, -1")
        A.label(sk)

    def dma(voff, r, soff, ldsaddr, imm, tag, sc1=True, setm0=True):
        if setm0:
            A(f"s_mov_b32 m0, {ldsaddr}")
            A("s_nop 0")
        A.vmem(f"buffer_load_dwordx4 v{voff}, {srd(r)}, {soff} offen offset:{imm}{' sc1' if sc1 else ''} lds", tag)

    A(f"s_cmp_ge_u32 s{sWG}, 256")
    A("s_cbranch_scc1 L_END")
    A("s_load_dwordx16 s[8:23], s[0:1], 0")
    A("s_load_dwordx8 s[24:31], s[0:1], 64")
    A(f"s_getpc_b64 s[{sM0}:{sM0+1}]")
    A(f"s_and_b32 s{sM0}, s{sM0}, 0xffffffc0")
    A(f"v_and_b32 v4, 63, v0")
    A(f"v_lshlrev_b32 v{vL16}, 4, v4")
    A(f"v_lshrrev_b32 v5, 6, v0")
    A(f"s_and_b32 s{sX}, s{sWG}, 7")
    A(f"s_lshr_b32 s{sI}, s{sWG}, 3")
    A(f"v_readfirstlane_b32 s{sW}, v5")
    A(f"s_lshl_b32 s{sT0}, s{sI}, 12")
    A(f"v_lshlrev_b32 v6, 4, v0")
    A(f"v_add_u32 v6, s{sT0}, v6")
    A(f"v_min_u32 v6, L_CODE_END-L_CODE_START-64, v6")
    A(f"global_load_dwordx4 v[248:251], v6, s[{sM0}:{sM0+1}]")
    A.vm.append("code")
    A(f"s_lshr_b32 s{sT0}, s{sI}, 3")
    A(f"s_lshl_b32 s{sTB}, s{sX}, 2")
    A(f"s_add_u32 s{sTB}, s{sTB}, s{sT0}")
    A(f"s_and_b32 s{sCB}, s{sI}, 7")
    A(f"s_lshl_b32 s{sG}, s{sX}, 5")
    A(f"s_add_u32 s{sG}, s{sG}, s{sI}")
    if cfg.ffn1_t512:
        A(f"s_lshr_b32 s{sBLK}, s{sX}, 1")
        A(f"s_lshl_b32 s{sBLK}, s{sBLK}, 2")
        A(f"s_add_u32 s{sBLK}, s{sBLK}, s{sT0}")
        A(f"s_and_b32 s{sSL}, s{sX}, 1")
        A(f"s_lshl_b32 s{sSL}, s{sSL}, 3")
        A(f"s_add_u32 s{sSL}, s{sSL}, s{sCB}")
    else:
        A(f"s_lshr_b32 s{sBLK}, s{sG}, 4")
        A(f"s_and_b32 s{sSL}, s{sG}, 15")
    A(f"s_lshl_b32 s{sID1}, s{sBLK}, 4")
    A(f"s_add_u32 s{sID1}, s{sID1}, s{sSL}")
    A(f"s_lshl_b32 s{sGW}, s{sWG}, 2")
    A(f"s_mov_b32 s{sLAYER}, 0")
    if cfg.prof: A(f"v_mov_b32 v{vPROF}, 0")
    A("s_waitcnt lgkmcnt(0)")
    A(f"s_load_dword s{sTAG}, s[{P_WS}:{P_WS+1}], {WS_EPOCH}")
    A(f"s_add_u32 s{sGW}, s{sGW}, s{sW}")
    def mk_srd(r, p, size, add=0):
        if add:
            A(f"s_add_u32 s{r}, s{p}, {hex(add)}")
            A(f"s_addc_u32 s{r+1}, s{p+1}, 0")
        else:
            A(f"s_mov_b32 s{r}, s{p}")
            A(f"s_mov_b32 s{r+1}, s{p+1}")
        A(f"s_mov_b32 s{r+2}, {hex(size)}")
        A(f"s_mov_b32 s{r+3}, 0x20000")
    mk_srd(rWQ, P_WQ, 512 * 512 * 2)
    mk_srd(rXIN, P_X, 2048 * 512 * 2)
    A(f"s_cmp_eq_u32 s{sCB}, 0")
    A(f"s_cselect_b32 s{rWKV}, s{P_WK}, s{P_WV}")
    A(f"s_cselect_b32 s{rWKV+1}, s{P_WK+1}, s{P_WV+1}")
    A(f"s_mov_b32 s{rWKV+2}, {512*16*2}")
    A(f"s_mov_b32 s{rWKV+3}, 0x20000")

    def issue_w_dma():
        A.c("wq raw DMA: instr n covers rows 8n..8n+7; wave w issues n = 4c*4.. ordered by k chunk")
        A("v_and_b32 v4, 63, v0")
        A("v_lshrrev_b32 v5, 3, v4")
        A("v_lshrrev_b32 v6, 4, v4")
        A("v_and_b32 v6, 1, v6")
        A("v_lshlrev_b32 v6, 2, v6")
        A("v_and_b32 v4, 7, v4")
        A("v_xor_b32 v4, v4, v6")
        A("v_lshlrev_b32 v4, 4, v4")
        A("v_lshl_add_u32 v4, v5, 10, v4")
        A(f"s_lshl_b32 s{sT0}, s{sW}, 15")
        A(f"s_lshl_b32 s{sT1}, s{sCB}, 7")
        A(f"s_add_u32 s{sT0}, s{sT0}, s{sT1}")
        A(f"s_lshl_b32 s{sT1}, s{sW}, 12")
        A(f"s_add_u32 s{sT1}, s{sT1}, {LDS_WQ}")
        for c in range(4):
            for n in range(4):
                A(f"s_mov_b32 m0, s{sT1}")
                A(f"s_add_u32 s{sT1}, s{sT1}, {1024 if n < 3 else 16384 - 3072}")
                A.vmem(f"buffer_load_dwordx4 v4, {srd(rWQ)}, s{sT0} offen lds", f"wq{c}")
                A(f"s_add_u32 s{sT0}, s{sT0}, {8192 if n < 3 else 131072 - 3 * 8192}")
            if c == 0:
                A(f"s_lshl_b32 s{sT2}, s{sW}, 12")
                A(f"s_add_u32 s{sT3}, s{sT2}, {LDS_WKV}")
                A(f"s_mov_b32 m0, s{sT3}")
                A("s_nop 0")
                for n in range(4):
                    A.vmem(f"buffer_load_dwordx4 v{vL16}, {srd(rWKV)}, s{sT2} offen offset:{n*1024} lds", "wkv")
    vXS = 12
    def issue_x_dma(sc1):
        A(f"s_lshl_b32 s{sT1}, s{sW}, 10")
        A(f"s_mov_b32 s{sT0}, 0")
        for j in range(16):
            A(f"s_mov_b32 m0, s{sT1}")
            A(f"s_add_u32 s{sT1}, s{sT1}, 4096")
            A.vmem(f"buffer_load_dwordx4 v{vXS}, {srd(rXIN)}, s{sT0} offen{' sc1' if sc1 else ''} lds", f"x{j//4}")
            A(f"s_add_u32 s{sT0}, s{sT0}, s{sXST}")

    issue_w_dma()
    A("v_and_b32 v4, 63, v0")
    A("v_lshrrev_b32 v5, 2, v4")
    A("v_lshrrev_b32 v6, 4, v4")
    A("v_and_b32 v4, 3, v4")
    A("v_xor_b32 v4, v4, v6")
    A("v_lshlrev_b32 v4, 4, v4")
    A(f"v_lshl_add_u32 v{vXS}, v5, 10, v4")
    A(f"s_lshl_b32 s{sT0}, s{sTB}, 16")
    A(f"s_lshl_b32 s{sT1}, s{sW}, 14")
    A(f"s_add_u32 s{sT0}, s{sT0}, s{sT1}")
    A(f"v_add_u32 v{vXS}, s{sT0}, v{vXS}")
    A(f"s_mov_b32 s{sXST}, 64")
    issue_x_dma(False)
    mk_srd(rL, P_WS, LSTRIDE, WS_L0)
    mk_srd(rWS, P_WS, WS_L0)
    mk_srd(rOUT, P_WS, 2048 * 512 * 2, WS_X2)
    vRAW = 224
    A("v_and_b32 v4, 63, v0")
    A("v_lshrrev_b32 v5, 3, v4")
    A("v_and_b32 v4, 7, v4")
    A("v_lshlrev_b32 v4, 4, v4")
    A("v_lshl_add_u32 v7, v5, 10, v4")
    A("v_mul_u32_u24 v5, 3584, v5")
    A("v_add_u32 v6, v5, v4")
    A(f"s_cmp_ge_u32 s{sWG}, 224")
    A("s_cbranch_scc1 L_RAW_WO")
    mk_srd(rR0, P_WG, 512 * 1792 * 2)
    mk_srd(rR1, P_WU, 512 * 1792 * 2)
    mk_srd(rR2, P_WD, 512 * 1792 * 2)
    A(f"s_and_b32 s{sT0}, s{sGW}, 31")
    A(f"s_mul_i32 s{sT0}, s{sT0}, {16*3584}")
    A(f"s_lshr_b32 s{sT1}, s{sGW}, 5")
    A(f"s_lshl_b32 s{sT1}, s{sT1}, 7")
    A(f"s_add_u32 s{sT0}, s{sT0}, s{sT1}")
    A(f"s_add_u32 s{sT1}, s{sT0}, {8*3584}")
    A(f"buffer_load_dwordx4 {vr(vRAW)}, v6, {srd(rR0)}, s{sT0} offen")
    A(f"buffer_load_dwordx4 {vr(vRAW+4)}, v6, {srd(rR0)}, s{sT1} offen")
    A(f"buffer_load_dwordx4 {vr(vRAW+8)}, v6, {srd(rR1)}, s{sT0} offen")
    A(f"buffer_load_dwordx4 {vr(vRAW+12)}, v6, {srd(rR1)}, s{sT1} offen")
    A(f"s_lshr_b32 s{sT0}, s{sGW}, 3")
    A(f"s_lshl_b32 s{sT0}, s{sT0}, 14")
    A(f"s_and_b32 s{sT1}, s{sGW}, 7")
    A(f"s_lshl_b32 s{sT1}, s{sT1}, 7")
    A(f"s_add_u32 s{sT0}, s{sT0}, s{sT1}")
    A(f"s_add_u32 s{sT1}, s{sT0}, 8192")
    A(f"buffer_load_dwordx4 {vr(vRAW+16)}, v7, {srd(rR2)}, s{sT0} offen")
    A(f"buffer_load_dwordx4 {vr(vRAW+20)}, v7, {srd(rR2)}, s{sT1} offen")
    A("s_branch L_RAW_DONE")
    A.label("L_RAW_WO")
    mk_srd(rR0, P_WO, 512 * 512 * 2)
    A(f"s_sub_u32 s{sT2}, s{sGW}, 896")
    A(f"s_lshr_b32 s{sT0}, s{sT2}, 3")
    A(f"s_lshl_b32 s{sT0}, s{sT0}, 15")
    A(f"s_and_b32 s{sT1}, s{sT2}, 7")
    A(f"s_lshl_b32 s{sT1}, s{sT1}, 7")
    A(f"s_add_u32 s{sT0}, s{sT0}, s{sT1}")
    for n in range(4):
        A(f"buffer_load_dwordx4 {vr(vRAW+4*n)}, v7, {srd(rR0)}, s{sT0} offen")
        A(f"s_add_u32 s{sT0}, s{sT0}, 8192")
    for n in range(2):
        A(f"buffer_load_dwordx4 {vr(vRAW+16+4*n)}, v7, {srd(rR0)}, 0 offen")
    A.label("L_RAW_DONE")
    NRAW = 6
    A("s_waitcnt lgkmcnt(0)")
    A(f"s_mul_i32 s{sTAG}, s{sTAG}, 1664525")
    A(f"s_add_u32 s{sTAG}, s{sTAG}, 1013904223")
    A(f"v_mov_b32 v{vTAG}, s{sTAG}")
    vXE, vXO, vX16 = 13, 14, 15
    def x_read_addrs(layer0):
        A("v_and_b32 v4, 63, v0")
        A(f"s_lshr_b32 s{sT0}, s{sW}, 1")
        if layer0:
            A("v_and_b32 v5, 15, v4")
            A("v_lshrrev_b32 v6, 2, v5")
            A("v_lshrrev_b32 v7, 5, v4")
            A("v_xor_b32 v7, v7, v6")
            A("v_lshlrev_b32 v7, 4, v7")
            A("v_lshl_add_u32 v7, v5, 6, v7")
            A("v_bfe_u32 v8, v4, 4, 1")
            A("v_lshl_add_u32 v7, v8, 10, v7")
            A(f"s_lshl_b32 s{sT0}, s{sT0}, 11")
            A(f"v_add_u32 v{vXE}, s{sT0}, v7")
            A(f"v_xor_b32 v{vXO}, 32, v{vXE}")
            A("v_lshrrev_b32 v7, 4, v4")
            A("v_xor_b32 v7, v7, v6")
            A("v_lshlrev_b32 v7, 4, v7")
            A("v_lshl_add_u32 v7, v5, 6, v7")
            A(f"s_lshl_b32 s{sT0}, s{sW}, 10")
            A(f"v_add_u32 v{vX16}, s{sT0}, v7")
        else:
            A(f"s_lshl_b32 s{sT0}, s{sT0}, 11")
            A(f"v_add_u32 v{vXE}, s{sT0}, v{vL16}")
            A(f"v_add_u32 v{vXO}, 1024, v{vXE}")
            A("v_and_b32 v5, 15, v4")
            A("v_lshrrev_b32 v6, 5, v4")
            A("v_bfe_u32 v7, v4, 4, 1")
            A("v_lshlrev_b32 v5, 4, v5")
            A("v_lshl_add_u32 v5, v7, 9, v5")
            A("v_lshl_add_u32 v5, v6, 10, v5")
            A(f"s_and_b32 s{sT1}, s{sW}, 1")
            A(f"s_lshl_b32 s{sT1}, s{sT1}, 8")
            A(f"s_add_u32 s{sT0}, s{sT0}, s{sT1}")
            A(f"v_add_u32 v{vX16}, s{sT0}, v5")
    x_read_addrs(True)
    stamp("start")
    vm_l0 = list(A.vm)

    A.label("L_LAYER")
    aWQ, aWKV = 0, 128
    vAQ, vCS, vAKV, vCKV, vG, vU, vONE = 16, 32, 48, 52, 56, 60, 64
    vXF = [128, 160]; vX16F = [192, 208]
    A(f"s_cmp_eq_u32 s{sLAYER}, 0")
    A(f"s_cselect_b32 s{sRST}, 1, 0")
    for r in range(4): A(f"v_mov_b32 v{vONE+r}, 0x3f803f80")
    A("v_and_b32 v4, 63, v0")
    A("v_bfe_u32 v5, v4, 2, 2")
    A("v_lshrrev_b32 v6, 5, v4")
    A("v_lshl_add_u32 v6, v6, 3, v5")
    A("v_lshrrev_b32 v5, 1, v5")
    A(f"s_and_b32 s{sT0}, s{sW}, 1")
    A(f"v_xor_b32 v5, s{sT0}, v5")
    A("v_lshlrev_b32 v5, 6, v5")
    A("v_lshl_add_u32 v5, v6, 7, v5")
    A("v_bfe_u32 v6, v4, 4, 1")
    A("v_lshl_add_u32 v5, v6, 5, v5")
    A("v_and_b32 v6, 1, v4")
    A("v_bfe_u32 v7, v4, 1, 1")
    A("v_lshl_add_u32 v6, v6, 1, v7")
    A("v_lshl_add_u32 v8, v6, 3, v5")
    A(f"v_add_u32 v8, {LDS_WQ}, v8")
    A("v_and_b32 v7, 3, v4")
    A(f"s_cmp_eq_u32 s{sCB}, 0")
    A(f"s_cselect_b64 vcc, -1, 0")
    A("v_cndmask_b32 v6, v6, v7, vcc")
    A("v_bfe_u32 v5, v4, 2, 2")
    A("v_lshrrev_b32 v7, 4, v4")
    A("v_lshl_add_u32 v5, v7, 3, v5")
    A("v_lshlrev_b32 v5, 5, v5")
    A("v_lshl_add_u32 v9, v6, 3, v5")
    A(f"v_add_u32 v9, {LDS_WKV}, v9")
    for c in range(4):
        n = len(vm_l0) - 1 - max(i for i, t in enumerate(vm_l0) if t == f"wq{c}") + NRAW
        A(f"s_waitcnt vmcnt({min(n, 63)})")
        A("s_barrier")
        for s in range(8 * c, 8 * c + 8):
            A.ds(f"ds_read_b64_tr_b16 {ar(aWQ+4*s, 2)}, v8 offset:{s*2048}", f"w{s}")
            A.ds(f"ds_read_b64_tr_b16 {ar(aWQ+4*s+2, 2)}, v8 offset:{s*2048+512}", f"w{s}")
            if s % 8 >= 4:
                s2 = s - 4
                A.wait_lg(f"w{s2}")
                A(f"v_mfma_f32_32x32x16_bf16 {vr(vCS,16)}, {ar(aWQ+4*s2)}, {vr(vONE)}, {vr(vCS,16) if s2 else 0}")
        for s2 in range(8 * c + 4, 8 * c + 8):
            A.wait_lg(f"w{s2}")
            A(f"v_mfma_f32_32x32x16_bf16 {vr(vCS,16)}, {ar(aWQ+4*s2)}, {vr(vONE)}, {vr(vCS,16)}")
        if c == 1:
            sk = A.newlabel("nokvtr"); vt = A.newlabel("kvtrV")
            A(f"s_cmp_ge_u32 s{sCB}, 2")
            A(f"s_cbranch_scc1 {sk}")
            for j in range(16):
                A(f"ds_read_b64_tr_b16 {ar(aWKV+4*j, 2)}, v9 offset:{j*1024}")
                A(f"ds_read_b64_tr_b16 {ar(aWKV+4*j+2, 2)}, v9 offset:{j*1024+128}")
                if j % 4 == 3: A("s_waitcnt lgkmcnt(0)")
            A(f"s_cmp_eq_u32 s{sCB}, 0")
            A(f"s_cbranch_scc0 {vt}")
            for j in range(16):
                A(f"v_mfma_f32_16x16x32_bf16 {vr(vCKV)}, {ar(aWKV+4*j)}, {vr(vONE)}, {vr(vCKV) if j else 0}")
            A(f"s_branch {sk}")
            A.label(vt)
            for j in range(16):
                A(f"v_mfma_f32_16x16x32_bf16 {vr(vCKV)}, {vr(vONE)}, {ar(aWKV+4*j)}, {vr(vCKV) if j else 0}")
            A.label(sk)
    stamp("qkv_w")
    A(f"s_cmp_eq_u32 s{sLAYER}, 0")
    A("s_cbranch_scc1 L_QKV_X")
    sk = A.newlabel("s4")
    A(f"s_cmp_lg_u32 s{sW}, 0")
    A(f"s_cbranch_scc1 {sk}")
    A("v_and_b32 v5, 7, v0")
    A(f"s_lshl_b32 s{sT0}, s{sTB}, 3")
    A(f"v_add_u32 v5, s{sT0}, v5")
    A("v_lshlrev_b32 v5, 7, v5")
    A(f"v_add_u32 v5, {hex(L_FLAG + PH_FF2 * 256 * 128)}, v5")
    A(f"s_sub_u32 s{rL}, s{rL}, {hex(LSTRIDE)}")
    A(f"s_subb_u32 s{rL+1}, s{rL+1}, 0")
    poll(5, "s4")
    A(f"s_add_u32 s{rL}, s{rL}, {hex(LSTRIDE)}")
    A(f"s_addc_u32 s{rL+1}, s{rL+1}, 0")
    A.label(sk)
    A("s_barrier")
    A.vm = []
    issue_x_dma(True)
    A.label("L_QKV_X")
    stamp("qkv_xissued")
    A.vm = [f"x{j//4}" for j in range(16)]
    def x_reads(c):
        b = c % 2
        for s in range(8):
            A.ds(f"ds_read_b128 {vr(vXF[b]+4*s)}, v{vXE if s % 2 == 0 else vXO} offset:{(4*c + s//2)*4096}", f"xf{c}_{s}")
        for j in range(4):
            A.ds(f"ds_read_b128 {vr(vX16F[b]+4*j)}, v{vX16} offset:{(4*c+j)*4096}", f"xg{c}_{j}")
    def x_wait(c):
        n = A.vm_n(f"x{c}")
        sk = A.newlabel("xw")
        A(f"s_waitcnt vmcnt({n + NRAW})")
        A(f"s_cmp_eq_u32 s{sRST}, 1")
        A(f"s_cbranch_scc1 {sk}")
        A.wait_vm(f"x{c}")
        A.label(sk)
        A("s_barrier")
    def x_mfma(c):
        b = c % 2
        for s in range(8):
            k = 8 * c + s
            A.wait_lg(f"xf{c}_{s}")
            A(f"v_mfma_f32_32x32x16_bf16 {vr(vAQ,16)}, {ar(aWQ+4*k)}, {vr(vXF[b]+4*s)}, {vr(vAQ,16) if k else 0}")
        for j in range(4):
            k = 4 * c + j
            A.wait_lg(f"xg{c}_{j}")
            A(f"v_mfma_f32_16x16x32_bf16 {vr(vG)}, {vr(vX16F[b]+4*j)}, {vr(vX16F[b]+4*j)}, {vr(vG) if k else 0}")
            A(f"v_mfma_f32_16x16x32_bf16 {vr(vU)}, {vr(vONE)}, {vr(vX16F[b]+4*j)}, {vr(vU) if k else 0}")
        sk = A.newlabel("nokv"); vt = A.newlabel("kvV")
        A(f"s_cmp_ge_u32 s{sCB}, 2")
        A(f"s_cbranch_scc1 {sk}")
        A(f"s_cmp_eq_u32 s{sCB}, 0")
        A(f"s_cbranch_scc0 {vt}")
        for j in range(4):
            k = 4 * c + j
            A(f"v_mfma_f32_16x16x32_bf16 {vr(vAKV)}, {ar(aWKV+4*k)}, {vr(vX16F[b]+4*j)}, {vr(vAKV) if k else 0}")
        A(f"s_branch {sk}")
        A.label(vt)
        for j in range(4):
            k = 4 * c + j
            A(f"v_mfma_f32_16x16x32_bf16 {vr(vAKV)}, {vr(vX16F[b]+4*j)}, {ar(aWKV+4*k)}, {vr(vAKV) if k else 0}")
        A.label(sk)
    x_wait(0); x_reads(0)
    for c in range(4):
        if c < 3:
            x_wait(c + 1)
            A.wait_lg(f"xg{c}_3")
            x_reads(c + 1)
        x_mfma(c)
    stamp("qkv_mm")
    A("v_and_b32 v4, 63, v0")
    A("v_and_b32 v5, 3, v4")
    A("v_cmp_eq_u32 vcc, 1, v5")
    A(f"v_cmp_eq_u32 s[{sM0}:{sM0+1}], 2, v5")
    A(f"v_cmp_eq_u32 s[{sM1}:{sM1+1}], 3, v5")
    A("v_lshrrev_b32 v6, 4, v4")
    A("v_bfe_u32 v7, v4, 2, 2")
    A(f"v_cmp_eq_u32 s[{sM2}:{sM2+1}], v6, v7")
    A("v_and_b32 v7, 15, v4")
    A(f"s_lshl_b32 s{sT0}, s{sW}, 7")
    A(f"s_add_u32 s{sT0}, s{sT0}, {LDS_ST}")
    A(f"v_lshl_add_u32 v7, v7, 3, s{sT0}")
    A(f"s_mov_b32 s{sT1}, {hex(f32(1.0/512))}")
    A(f"v_cndmask_b32 v5, v{vG}, v{vG+1}, vcc")
    A(f"v_cndmask_b32 v5, v5, v{vG+2}, s[{sM0}:{sM0+1}]")
    A(f"v_cndmask_b32 v5, v5, v{vG+3}, s[{sM1}:{sM1+1}]")
    A(f"v_mul_f32 v10, s{sT1}, v{vU}")
    A(f"v_mul_f32 v5, s{sT1}, v5")
    A("v_fma_f32 v5, -v10, v10, v5")
    A("v_max_f32 v5, 0, v5")
    A(f"v_add_f32 v5, {hex(f32(1e-5))}, v5")
    A("v_rsq_f32 v11, v5")
    A(f"s_mov_b64 exec, s[{sM2}:{sM2+1}]")
    A.ds("ds_write_b64 v7, v[10:11]")
    A("s_mov_b64 exec, -1")
    A("v_and_b32 v5, 31, v4")
    A(f"s_lshr_b32 s{sT0}, s{sW}, 1")
    A(f"s_lshl_b32 s{sT1}, s{sT0}, 8")
    A(f"s_add_u32 s{sT1}, s{sT1}, {LDS_ST}")
    A(f"v_lshl_add_u32 v6, v5, 3, s{sT1}")
    A("v_lshrrev_b32 v7, 3, v5")
    A("v_lshlrev_b32 v7, 13, v7")
    A("v_and_b32 v5, 7, v4")
    A("v_lshl_add_u32 v7, v5, 4, v7")
    A("v_lshrrev_b32 v5, 5, v4")
    A("v_lshl_add_u32 v7, v5, 9, v7")
    A(f"s_lshl_b32 s{sT1}, s{sTB}, 16")
    A(f"s_lshl_b32 s{sT0}, s{sT0}, 15")
    A(f"s_add_u32 s{sT1}, s{sT1}, s{sT0}")
    A(f"s_lshl_b32 s{sT0}, s{sCB}, 10")
    A(f"s_add_u32 s{sT1}, s{sT1}, s{sT0}")
    A(f"s_and_b32 s{sT0}, s{sW}, 1")
    A(f"s_lshl_b32 s{sT0}, s{sT0}, 8")
    A(f"s_add_u32 s{sT1}, s{sT1}, s{sT0}")
    A.wait_lg()
    A("s_barrier")
    A.ds("ds_read_b64 v[10:11], v6")
    sk = A.newlabel("nokvep"); vt = A.newlabel("kvepV"); st = A.newlabel("kvst")
    A(f"s_cmp_ge_u32 s{sCB}, 2")
    A(f"s_cbranch_scc1 {sk}")
    A(f"s_lshl_b32 s{sT0}, s{sW}, 7")
    A(f"s_add_u32 s{sT0}, s{sT0}, {LDS_ST}")
    A("v_and_b32 v5, 15, v4")
    A("v_lshrrev_b32 v6, 4, v4")
    A(f"s_cmp_eq_u32 s{sCB}, 0")
    A(f"s_cbranch_scc0 {vt}")
    A(f"v_lshl_add_u32 v8, v5, 3, s{sT0}")
    A("ds_read_b64 v[72:73], v8")
    A("v_lshrrev_b32 v8, 1, v6")
    A("v_lshlrev_b32 v8, 9, v8")
    A("v_lshl_add_u32 v8, v5, 4, v8")
    A(f"s_lshl_b32 s{sT2}, s{sTB}, 11")
    A(f"s_lshr_b32 s{sT0}, s{sW}, 1")
    A(f"s_lshl_b32 s{sT0}, s{sT0}, 10")
    A(f"s_add_u32 s{sT2}, s{sT2}, s{sT0}")
    A(f"s_and_b32 s{sT0}, s{sW}, 1")
    A(f"s_lshl_b32 s{sT0}, s{sT0}, 8")
    A(f"s_add_u32 s{sT2}, s{sT2}, s{sT0}")
    A(f"s_add_u32 s{sT2}, s{sT2}, {hex(L_KV)}")
    A("s_waitcnt lgkmcnt(0)")
    for r in range(4):
        A(f"v_fma_f32 v{vAKV+r}, -v72, v{vCKV+r}, v{vAKV+r}")
    for r in range(4):
        A(f"v_mul_f32 v{vAKV+r}, v73, v{vAKV+r}")
    A(f"s_branch {st}")
    A.label(vt)
    A(f"v_lshl_add_u32 v8, v6, 5, s{sT0}")
    A("ds_read_b128 v[72:75], v8")
    A("ds_read_b128 v[76:79], v8 offset:16")
    A("v_lshrrev_b32 v8, 1, v6")
    A("v_lshlrev_b32 v8, 8, v8")
    A("v_lshl_add_u32 v8, v5, 4, v8")
    A(f"s_lshl_b32 s{sT2}, s{sTB}, 2")
    A(f"s_add_u32 s{sT2}, s{sT2}, s{sW}")
    A(f"s_lshl_b32 s{sT2}, s{sT2}, 9")
    A(f"s_add_u32 s{sT2}, s{sT2}, {hex(L_KV + 0x10000)}")
    A("s_waitcnt lgkmcnt(0)")
    for r in range(4):
        A(f"v_fma_f32 v{vAKV+r}, -v{72+2*r}, v{vCKV+r}, v{vAKV+r}")
    for r in range(4):
        A(f"v_mul_f32 v{vAKV+r}, v{73+2*r}, v{vAKV+r}")
    A.label(st)
    A(f"v_cvt_pk_bf16_f32 v72, v{vAKV}, v{vAKV+1}")
    A(f"v_cvt_pk_bf16_f32 v73, v{vAKV+2}, v{vAKV+3}")
    A("v_mov_b32 v74, v72")
    A("v_mov_b32 v75, v73")
    A("s_nop 1")
    A("v_permlane16_swap_b32 v72, v74")
    A("v_permlane16_swap_b32 v73, v75")
    A(f"s_mov_b32 s{sM0}, 0x0000ffff")
    A(f"s_mov_b32 s{sM0+1}, 0x0000ffff")
    A(f"s_mov_b64 exec, s[{sM0}:{sM0+1}]")
    A(f"buffer_store_dwordx4 v[72:75], v8, {srd(rL)}, s{sT2} offen sc1")
    A("s_mov_b64 exec, -1")
    A.label(sk)
    A.wait_lg()
    QS = 0.25 * math.log2(math.e)
    A(f"v_mul_f32 v11, {hex(f32(QS))}, v11")
    for r in range(16):
        A(f"v_fma_f32 v{vAQ+r}, -v10, v{vCS+r}, v{vAQ+r}")
    for r in range(16):
        A(f"v_mul_f32 v{vAQ+r}, v11, v{vAQ+r}")
        if r % 2 == 1:
            A(f"v_cvt_pk_bf16_f32 v{80+r//2}, v{vAQ+r-1}, v{vAQ+r}")
        if r == 7: A.vmem(f"buffer_store_dwordx4 v[80:83], v7, {srd(rL)}, s{sT1} offen sc1", "st")
    A.vmem(f"buffer_store_dwordx4 v[84:87], v7, {srd(rL)}, s{sT1} offen offset:128 sc1", "st")
    A.wait_vm()
    publish(PH_QKV, sG, "st")
    stamp("qkv_pub")
    A("v_lshlrev_b32 v4, 4, v0")
    A(f"v_add_u32 v4, {LDS_ONES}, v4")
    A.ds(f"ds_write_b128 v4, {vr(vONE)}")
    A.ds(f"ds_write_b128 v4, {vr(vONE)} offset:4096")
    A(f"s_cmp_eq_u32 s{sLAYER}, 0")
    A("s_cbranch_scc0 L_NORELAY")
    A(f"s_lshl_b32 s{sT0}, s{sW}, 13")
    A(f"v_add_u32 v4, s{sT0}, v{vL16}")
    for n in range(6):
        A(f"ds_write_b128 v4, {vr(vRAW+4*n)} offset:{n*1024}")
    A("v_and_b32 v5, 63, v0")
    A("v_bfe_u32 v6, v5, 2, 2")
    A("v_and_b32 v8, 1, v5")
    A("v_bfe_u32 v7, v5, 1, 1")
    A("v_lshl_add_u32 v8, v8, 1, v7")
    A(f"s_cmp_ge_u32 s{sWG}, 224")
    A("s_cbranch_scc1 L_RELAY_WO")
    A("v_lshrrev_b32 v7, 5, v5")
    A("v_lshl_add_u32 v6, v7, 3, v6")
    A("v_lshlrev_b32 v6, 7, v6")
    A("v_lshl_add_u32 v6, v8, 3, v6")
    A(f"v_add_u32 v6, s{sT0}, v6")
    A("v_bfe_u32 v7, v5, 4, 1")
    A("v_lshl_add_u32 v8, v7, 11, v6")
    A("v_lshl_add_u32 v9, v7, 5, v6")
    A("s_waitcnt lgkmcnt(0)")
    for q in range(4):
        A(f"ds_read_b64_tr_b16 {vr(128+4*q,2)}, v8 offset:{q*32}")
        A(f"ds_read_b64_tr_b16 {vr(130+4*q,2)}, v8 offset:{q*32+512}")
    for ct in range(2):
        A(f"ds_read_b64_tr_b16 {vr(144+4*ct,2)}, v9 offset:{4096+ct*64}")
        A(f"ds_read_b64_tr_b16 {vr(146+4*ct,2)}, v9 offset:{4096+ct*64+512}")
    A(f"s_lshr_b32 s{sT0}, s{sGW}, 5")
    A(f"s_lshl_b32 s{sT0}, s{sT0}, 17")
    A(f"s_and_b32 s{sT1}, s{sGW}, 31")
    A(f"s_lshl_b32 s{sT1}, s{sT1}, 10")
    A(f"s_add_u32 s{sT0}, s{sT0}, s{sT1}")
    A(f"s_add_u32 s{sT0}, s{sT0}, {hex(WS_WGUT)}")
    A(f"s_and_b32 s{sT1}, s{sGW}, 7")
    A(f"s_mul_i32 s{sT1}, s{sT1}, 112")
    A(f"s_lshr_b32 s{sT2}, s{sGW}, 3")
    A(f"s_add_u32 s{sT1}, s{sT1}, s{sT2}")
    A(f"s_lshl_b32 s{sT1}, s{sT1}, 11")
    A(f"s_add_u32 s{sT1}, s{sT1}, {hex(WS_WDT)}")
    A("s_waitcnt lgkmcnt(0)")
    for q in range(4):
        A(f"buffer_store_dwordx4 {vr(128+4*q)}, v{vL16}, {srd(rWS)}, s{sT0} offen sc1")
        A(f"s_add_u32 s{sT0}, s{sT0}, 32768")
    for ct in range(2):
        A(f"buffer_store_dwordx4 {vr(144+4*ct)}, v{vL16}, {srd(rWS)}, s{sT1} offen offset:{ct*1024} sc1")
    A("s_branch L_RELAY_PUB")
    A.label("L_RELAY_WO")
    A("v_lshrrev_b32 v7, 4, v5")
    A("v_lshl_add_u32 v6, v7, 3, v6")
    A("v_lshlrev_b32 v6, 7, v6")
    A("v_and_b32 v8, 3, v5")
    A("v_lshl_add_u32 v6, v8, 4, v6")
    A(f"v_add_u32 v6, s{sT0}, v6")
    A("s_waitcnt lgkmcnt(0)")
    for P in range(2):
        for b in range(2):
            q = 2 * P + b
            A(f"ds_read_b64_tr_b16 {vr(128+4*q,2)}, v6 offset:{P*64+b*8}")
            A(f"ds_read_b64_tr_b16 {vr(130+4*q,2)}, v6 offset:{P*64+b*8+512}")
    A(f"s_sub_u32 s{sT2}, s{sGW}, 896")
    A(f"s_lshr_b32 s{sT0}, s{sT2}, 3")
    A(f"s_lshl_b32 s{sT0}, s{sT0}, 13")
    A(f"s_bfe_u32 s{sT1}, s{sT2}, 0x20001")
    A(f"s_lshl_b32 s{sT1}, s{sT1}, 17")
    A(f"s_add_u32 s{sT0}, s{sT0}, s{sT1}")
    A(f"s_and_b32 s{sT1}, s{sT2}, 1")
    A(f"s_lshl_b32 s{sT1}, s{sT1}, 12")
    A(f"s_add_u32 s{sT0}, s{sT0}, s{sT1}")
    A(f"s_add_u32 s{sT0}, s{sT0}, {hex(WS_WOT)}")
    A("s_waitcnt lgkmcnt(0)")
    for q in range(4):
        A(f"buffer_store_dwordx4 {vr(128+4*q)}, v{vL16}, {srd(rWS)}, s{sT0} offen offset:{q*1024} sc1")
    A.label("L_RELAY_PUB")
    A("s_waitcnt vmcnt(0)")
    A("s_barrier")
    sk = A.newlabel("wpub")
    A(f"s_cmp_lg_u32 s{sW}, 0")
    A(f"s_cbranch_scc1 {sk}")
    A(f"s_lshl_b32 s{sT0}, s{sWG}, 4")
    A(f"s_add_u32 s{sT0}, s{sT0}, {WS_WFLAG}")
    A("v_mov_b32 v4, 0")
    A("s_mov_b64 exec, 1")
    A(f"buffer_store_dword v{vTAG}, v4, {srd(rWS)}, s{sT0} offen sc1")
    A("s_mov_b64 exec, -1")
    A.label(sk)
    A.label("L_NORELAY")
    stamp("relay")
    maybe_stop("qkv")

    S = [16, 32]; O = [48, 164]; Q = [64, 68]; KB = [72, 76]; V0 = [80, 84]; V1 = [88, 92]
    vIDX = 96; vVA = 97; vVINC = 98; vOXR = 99
    vPA = 100; vOF = [132, 136]; vZ = 140; vZR = 156; vOXW = 180; vWFL = 181; vRES = 182; vWOA = vL16
    sk = A.newlabel("s1"); w1 = A.newlabel("s1q"); go = A.newlabel("s1go")
    A(f"s_cmp_ge_u32 s{sW}, 2")
    A(f"s_cbranch_scc1 {sk}")
    A("v_and_b32 v4, 63, v0")
    A(f"s_cmp_eq_u32 s{sW}, 1")
    A(f"s_cbranch_scc1 {w1}")
    A("v_lshrrev_b32 v5, 1, v4")
    A("v_lshlrev_b32 v5, 3, v5")
    A("v_and_b32 v4, 1, v4")
    A("v_add_u32 v5, v5, v4")
    A(f"s_branch {go}")
    A.label(w1)
    A("v_and_b32 v5, 7, v4")
    A(f"s_lshl_b32 s{sT0}, s{sTB}, 3")
    A(f"v_add_u32 v5, s{sT0}, v5")
    A.label(go)
    A("v_lshlrev_b32 v5, 7, v5")
    A(f"v_add_u32 v5, {hex(L_FLAG + PH_QKV * 256 * 128)}, v5")
    poll(5, "s1")
    A.label(sk)
    A("s_waitcnt lgkmcnt(0)"); A.lg = []
    A("s_barrier")
    stamp("s1")
    A.vm = []
    chunks = [(0, 4), (4, 16), (16, 32), (32, 64)]
    def kv_dma_list(ci):
        t0, t1 = chunks[ci]
        n = (t1 - t0) // 4
        out = []
        for reg, base in ((0, 0), (1, 0x10000)):
            for u in range(n):
                out.append((ci, base + t0 * 1024, n, u))
        return out
    sKV = sT4
    def kv_dma(ent):
        ci, base, n, u = ent
        if u % 4 == 0:
            A(f"s_mul_i32 s{sT5}, s{sW}, {n*1024}")
            A(f"s_add_u32 s{sT5}, s{sT5}, {base + u*1024}")
            A(f"s_mov_b32 m0, s{sT5}")
            A(f"s_add_u32 s{sKV}, s{sT5}, {hex(L_KV)}")
        A.vmem(f"buffer_load_dwordx4 v{vL16}, {srd(rL)}, s{sKV} offen offset:{(u%4)*1024} sc1 lds", f"kv{ci}")
    A(f"s_lshl_b32 s{sT0}, s{sG}, 13")
    A(f"s_lshl_b32 s{sT1}, s{sW}, 10")
    A(f"s_add_u32 s{sT0}, s{sT0}, s{sT1}")
    A.vmem(f"buffer_load_dwordx4 {vr(Q[0])}, v{vL16}, {srd(rL)}, s{sT0} offen sc1", "q0")
    for e in kv_dma_list(0): kv_dma(e)
    for e in kv_dma_list(1): kv_dma(e)
    A(f"s_add_u32 s{sT0}, s{sT0}, 4096")
    A.vmem(f"buffer_load_dwordx4 {vr(Q[1])}, v{vL16}, {srd(rL)}, s{sT0} offen sc1", "q1")
    A("v_lshlrev_b32 v4, 4, v0")
    A(f"v_add_u32 v4, {WS_WFLAG}, v4")
    A.vmem(f"buffer_load_dword v{vWFL}, v4, {srd(rWS)}, 0 offen sc1", "wfl")
    A("v_and_b32 v4, 63, v0")
    A("v_and_b32 v5, 7, v4")
    A("v_bfe_u32 v6, v4, 3, 1")
    A("v_lshrrev_b32 v7, 4, v4")
    A("v_lshlrev_b32 v8, 12, v6")
    A("v_lshrrev_b32 v9, 1, v7")
    A("v_lshl_add_u32 v8, v9, 10, v8")
    A("v_and_b32 v9, 1, v7")
    A("v_lshl_add_u32 v8, v9, 9, v8")
    A("v_lshl_add_u32 v8, v5, 4, v8")
    A(f"s_lshr_b32 s{sT0}, s{sG}, 2")
    A(f"s_lshl_b32 s{sT0}, s{sT0}, 15")
    A(f"s_lshl_b32 s{sT1}, s{sW}, 13")
    A(f"s_add_u32 s{sT0}, s{sT0}, s{sT1}")
    A(f"s_and_b32 s{sT1}, s{sG}, 3")
    A(f"s_lshl_b32 s{sT1}, s{sT1}, 7")
    A(f"s_add_u32 s{sT0}, s{sT0}, s{sT1}")
    A(f"v_add_u32 v{vRES}, s{sT0}, v8")
    rm = A.newlabel("resrow"); rd = A.newlabel("resd")
    A(f"s_cmp_eq_u32 s{sLAYER}, 0")
    A(f"s_cbranch_scc1 {rm}")
    A.vmem(f"buffer_load_dwordx4 {vr(vZR)}, v{vRES}, {srd(rXIN)}, 0 offen sc1", "res")
    A.vmem(f"buffer_load_dwordx4 {vr(vZR+4)}, v{vRES}, {srd(rXIN)}, 0 offen offset:2048 sc1", "res")
    A(f"s_branch {rd}")
    A.label(rm)
    A("v_lshlrev_b32 v8, 10, v5")
    A("v_lshl_add_u32 v8, v6, 7, v8")
    A("v_lshl_add_u32 v8, v7, 4, v8")
    A(f"s_lshl_b32 s{sT0}, s{sG}, 13")
    A(f"s_lshl_b32 s{sT1}, s{sW}, 8")
    A(f"s_add_u32 s{sT0}, s{sT0}, s{sT1}")
    A(f"buffer_load_dwordx4 {vr(vZR)}, v8, {srd(rXIN)}, s{sT0} offen")
    A(f"buffer_load_dwordx4 {vr(vZR+4)}, v8, {srd(rXIN)}, s{sT0} offen offset:64")
    A.label(rd)
    A("v_and_b32 v5, 15, v4")
    A("v_lshrrev_b32 v6, 5, v4")
    A("v_lshlrev_b32 v5, 4, v5")
    A("v_lshl_add_u32 v5, v6, 8, v5")
    A("v_bfe_u32 v6, v4, 4, 1")
    A("v_cmp_eq_u32 vcc, 0, v6")
    A(f"v_mov_b32 v7, {LDS_ONES}")
    A(f"v_mov_b32 v8, {LDS_V}")
    A("v_cndmask_b32 v7, v7, v8, vcc")
    A(f"v_add_u32 v{vVA}, v5, v7")
    A("v_mov_b32 v7, 0")
    A("v_mov_b32 v8, 0x2000")
    A(f"v_cndmask_b32 v{vVINC}, v7, v8, vcc")
    A(f"v_mov_b32 v{vIDX}, 0xdddd")
    A("v_bfe_u32 v5, v4, 4, 1")
    A("v_lshlrev_b32 v5, 9, v5")
    A("v_bfe_u32 v6, v4, 3, 1")
    A("v_lshl_add_u32 v5, v6, 8, v5")
    A("v_lshrrev_b32 v6, 5, v4")
    A("v_lshl_add_u32 v5, v6, 7, v5")
    A("v_and_b32 v6, 7, v4")
    A("v_lshl_add_u32 v5, v6, 4, v5")
    A(f"s_lshl_b32 s{sT0}, s{sW}, 10")
    A(f"s_add_u32 s{sT0}, s{sT0}, {LDS_OX}")
    A(f"v_add_u32 v{vOXW}, s{sT0}, v5")
    A("v_lshrrev_b32 v5, 4, v4")
    A("v_lshlrev_b32 v5, 7, v5")
    A("v_lshl_add_u32 v5, v6, 4, v5")
    A(f"v_add_u32 v{vOXR}, {LDS_OX}, v5")
    for r in range(16):
        A(f"v_mov_b32 v{O[0]+r}, 0")
        A(f"v_mov_b32 v{O[1]+r}, 0")
    sWO = sT3
    def wo_base(part):
        A(f"s_lshl_b32 s{sWO}, s{sW}, 17")
        A(f"s_add_u32 s{sWO}, s{sWO}, {hex(WS_WOT + part * 0x10000)}")
    def wo_load(f, part):
        if f % 4 == 0 and f: A(f"s_add_u32 s{sWO}, s{sWO}, 4096")
        A.vmem(f"buffer_load_dwordx4 {ar(4*f)}, v{vL16}, {srd(rWS)}, s{sWO} offen offset:{(f%4)*1024} sc1", f"wo{part}")
    A.wait_vm("kv0")
    A("s_barrier")
    stamp("att_kv0")
    def rdK(n): A.ds(f"ds_read_b128 {vr(KB[n%2])}, v{vL16} offset:{(n%64)*1024}", f"K{n}")
    def rdV(n):
        A.ds(f"ds_read_b128 {vr(V0[n%2])}, v{vVA} offset:{(n%8)*1024}", f"V{n}")
        A.ds(f"ds_read_b128 {vr(V1[n%2])}, v{vVA} offset:{(n%8)*1024+512}", f"V{n}")
    def qk(n): A(f"v_mfma_f32_32x32x16_bf16 {vr(S[n%2],16)}, {vr(KB[n%2])}, {vr(Q[n//64])}, 0")
    rdK(0); rdK(1); rdV(0)
    A.wait_lg("K0")
    qk(0)
    A("s_nop 7"); A("s_nop 3")

    def finalize_O(p):
        o = O[p]
        fb = f"L_FB{p}"; bk = f"L_FBR{p}"
        L = []
        L.append(lambda: A(f"v_add_u32 v4, {hex((0x100000000 - 0x21800000) & 0xffffffff)}, v{o+8}"))
        L.append(lambda: A(f"v_cmp_lt_u32 vcc, 0x3c000000, v4"))
        L.append(lambda: (A(f"s_cbranch_vccnz {fb}"), A.label(bk), A(f"v_rcp_f32 v4, v{o+8}")))
        L.append(lambda: A("v_nop"))
        for r in range(8):
            L.append(lambda r=r: A(f"v_mul_f32 v{o+r}, v4, v{o+r}"))
        for r in range(4):
            L.append(lambda r=r: A(f"v_cvt_pk_bf16_f32 v{8+r}, v{o+2*r}, v{o+2*r+1}"))
        L.append(lambda: A.ds(f"ds_write_b128 v{vOXW}, v[8:11] offset:{p*4096}", "oxw"))
        return L
    def oproj_mfma(f, part):
        jl, ctl = f // 8, f % 8
        Pp, b = ctl // 2, ctl % 2
        c = vr(vPA + 4 * ctl)
        if part == 0 and jl == 0: c = vr(vZ + 8 * (Pp % 2) + 4 * b)
        A.wait_lg(f"of{part}_{jl}")
        A(f"v_mfma_f32_16x16x32_bf16 {vr(vPA+4*ctl)}, {ar(4*f)}, {vr(vOF[jl%2])}, {c}")
    def of_read(part, jl): A.ds(f"ds_read_b128 {vr(vOF[jl%2])}, v{vOXR} offset:{part*4096 + jl*512}", f"of{part}_{jl}")

    postqk = {n: [] for n in range(128)}
    valu = {n: [] for n in range(128)}
    m16 = {n: [] for n in range(128)}
    pre_reads = {n: [] for n in range(128)}
    dl = kv_dma_list(2) + kv_dma_list(3)
    for k, e in enumerate(dl):
        postqk[k // 2].append(lambda e=e: kv_dma(e))
    def bar(tags):
        def f():
            A.wait_vm(tags); A("s_barrier")
        return f
    for ci in (1, 2, 3):
        pre_reads[chunks[ci][0] - 2].append(bar(f"kv{ci}"))
    def wcheck():
        ok = A.newlabel("wok")
        A.wait_vm("wfl")
        A(f"v_cmp_ne_u32 vcc, v{vWFL}, v{vTAG}")
        A(f"s_cbranch_vccz {ok}")
        lp = A.newlabel("wpoll")
        A("v_lshlrev_b32 v5, 4, v0")
        A(f"v_add_u32 v5, {WS_WFLAG}, v5")
        A(f"s_mov_b32 s{sCNT}, {cfg.spin_limit}")
        A.label(lp)
        A(f"buffer_load_dword v4, v5, {srd(rWS)}, 0 offen sc1")
        A("s_waitcnt vmcnt(0)")
        A(f"v_cmp_ne_u32 vcc, v4, v{vTAG}")
        A(f"s_cbranch_vccz {ok}")
        A(f"s_sub_u32 s{sCNT}, s{sCNT}, 1")
        A(f"s_cmp_lg_u32 s{sCNT}, 0")
        A(f"s_cbranch_scc1 {lp}")
        A("s_branch L_TIMEOUT")
        A.label(ok)
    pre_reads[14].insert(0, wcheck)
    postqk[16].append(lambda: wo_base(0))
    for f in range(64):
        postqk[16 + f // 2].append(lambda f=f: wo_load(f, 0))
    def unpack(dst, src, k):
        if k % 2 == 0: A(f"v_lshlrev_b32 v{dst+k}, 16, v{src+k//2}")
        else: A(f"v_and_b32 v{dst+k}, 0xffff0000, v{src+k//2}")
    for k in range(16):
        valu[50 + k // 4].append(lambda k=k: unpack(vZ, vZR, k))
    fin0 = finalize_O(0)
    for k, th in enumerate(fin0[:-1]):
        valu[65 if k < 9 else 66].append(th)
    postqk[67].append(fin0[-1])
    def ox_bar():
        A.wait_lg("oxw"); A.wait_vm("wo0"); A("s_barrier")
    pre_reads[68].append(ox_bar)
    postqk[68].append(lambda: of_read(0, 0))
    postqk[69].append(lambda: wo_base(1))
    for f in range(64):
        n = 69 + f // 2
        m16[n].append(lambda f=f: oproj_mfma(f, 0))
        postqk[n + 1].append(lambda f=f: wo_load(f, 1))
        if f % 8 == 0 and f // 8 + 1 < 8:
            postqk[n + 1].append(lambda f=f: of_read(0, f // 8 + 1))
    for n in range(128):
        cur, nxt = S[n % 2], S[(n + 1) % 2]
        e = lambda i: A(f"v_exp_f32 v{cur+i}, v{cur+i}")
        e(0); e(1); e(2)
        if n > 0:
            A(f"v_smfmac_f32_32x32x32_bf16 {vr(O[(n-1)//64],16)}, {vr(V1[(n-1)%2])}, {vr(nxt+8,8)}, v{vIDX}")
        A.wait_lg([f"K{n+1}", f"V{n}"])
        e(3); e(4); e(5)
        if n < 127:
            if n + 1 == 64: A.wait_vm("q1")
            qk(n + 1)
        for th in pre_reads[n]: th()
        if n % 8 == 7 and n < 127:
            if n == 63: A(f"v_mad_u32_u24 v{vVA}, v{vVINC}, -7, v{vVA}") if False else (A(f"v_mul_u32_u24 v4, 7, v{vVINC}"), A(f"v_sub_u32 v{vVA}, v{vVA}, v4"))
            else: A(f"v_add_u32 v{vVA}, v{vVA}, v{vVINC}")
        if n + 2 < 128: rdK(n + 2)
        if n + 1 < 128: rdV(n + 1)
        for th in postqk[n]: th()
        e(6); e(7); e(8)
        if len(m16[n]) > 0: m16[n][0]()
        e(9); e(10)
        A(f"v_smfmac_f32_32x32x32_bf16 {vr(O[n//64],16)}, {vr(V0[n%2])}, {vr(cur,8)}, v{vIDX}")
        e(11); e(12)
        for th in valu[n]: th()
        e(13)
        if len(m16[n]) > 1: m16[n][1]()
        e(14); e(15)
    A("s_nop 1")
    A(f"v_smfmac_f32_32x32x32_bf16 {vr(O[1],16)}, {vr(V1[1])}, {vr(S[1]+8,8)}, v{vIDX}")
    stamp("att_main")
    for th in finalize_O(1): th()
    A.wait_lg()
    A.wait_vm("wo1")
    A("s_barrier")
    sGU = sT4
    def gu_dma(tile, slot, u):
        if u == 0:
            A(f"s_mul_i32 s{sGU}, s{sSL}, {7*32768}")
            A(f"s_lshl_b32 s{sT5}, s{sW}, 13")
            A(f"s_add_u32 s{sGU}, s{sGU}, s{sT5}")
            A(f"s_add_u32 s{sGU}, s{sGU}, {hex(WS_WGUT + tile*32768)}")
            A(f"s_add_u32 s{sT5}, s{sT5}, {slot*32768}")
            A(f"s_mov_b32 m0, s{sT5}")
            A("s_nop 0")
        if u == 4:
            A(f"s_add_u32 s{sT5}, s{sT5}, 4096")
            A(f"s_add_u32 s{sGU}, s{sGU}, 4096")
            A(f"s_mov_b32 m0, s{sT5}")
            A("s_nop 0")
        A.vmem(f"buffer_load_dwordx4 v{vL16}, {srd(rWS)}, s{sGU} offen offset:{(u%4)*1024} sc1 lds", f"gu{tile}")
    gul = [(t, t, u) for t in range(4) for u in range(8)]
    of_read(1, 0); of_read(1, 1)
    for f in range(64):
        oproj_mfma(f, 1)
        if f % 8 == 7 and f // 8 + 2 < 8: of_read(1, f // 8 + 2)
        if f % 4 == 1: gu_dma(*gul.pop(0))
    stamp("att_oproj")
    vY = 16
    A("v_and_b32 v4, 63, v0")
    A("v_bfe_u32 v5, v4, 3, 1")
    A("v_cmp_eq_u32 vcc, 0, v5")
    A("v_and_b32 v6, 7, v4")
    A(f"s_lshl_b32 s{sT0}, s{sW}, 3")
    A(f"s_add_u32 s{sT0}, s{sT0}, {LDS_LNX}")
    A(f"v_lshl_add_u32 v7, v6, 5, s{sT0}")
    A(f"v_lshlrev_b32 v6, 5, v6")
    A(f"v_add_u32 v6, {LDS_LNX}, v6")
    for k in range(16):
        A(f"v_cndmask_b32 v{vY+k}, v{vPA+16+k}, v{vPA+k}, vcc")
    A(f"v_add_f32 v8, v{vY}, v{vY+1}")
    A(f"v_mul_f32 v9, v{vY}, v{vY}")
    A(f"v_fmac_f32 v9, v{vY+1}, v{vY+1}")
    for k in range(2, 16):
        A(f"v_add_f32 v8, v8, v{vY+k}")
        A(f"v_fmac_f32 v9, v{vY+k}, v{vY+k}")
    for k in range(8):
        A(f"v_cvt_pk_bf16_f32 v{vY+16+k}, v{vY+2*k}, v{vY+2*k+1}")
    A(f"v_add_f32_dpp v8, v8, v8 row_ror:8 row_mask:0xf bank_mask:0xf")
    A(f"v_add_f32_dpp v9, v9, v9 row_ror:8 row_mask:0xf bank_mask:0xf")
    A(f"s_mov_b32 s{sT1}, {hex(L_X1)}")
    A.vmem(f"buffer_store_dwordx4 {vr(vY+16)}, v{vRES}, {srd(rL)}, s{sT1} offen sc1", "st")
    A.vmem(f"buffer_store_dwordx4 {vr(vY+20)}, v{vRES}, {srd(rL)}, s{sT1} offen offset:2048 sc1", "st")
    for sw in ("v_permlane16_swap_b32", "v_permlane32_swap_b32"):
        A("v_mov_b32 v10, v8")
        A("v_mov_b32 v11, v9")
        A("s_nop 1")
        A(f"{sw} v8, v10")
        A(f"{sw} v9, v11")
        A("v_add_f32 v8, v8, v10")
        A("v_add_f32 v9, v9, v11")
    A("s_mov_b64 exec, 0xff")
    A.ds("ds_write_b64 v7, v[8:9]")
    A("s_mov_b64 exec, -1")
    A.wait_lg()
    A("s_barrier")
    A.ds("ds_read_b128 v[40:43], v6")
    A.ds("ds_read_b128 v[44:47], v6 offset:16")
    A(f"s_mov_b32 s{sT1}, {hex(f32(1.0/512))}")
    A.wait_lg()
    A("v_add_f32 v8, v40, v42")
    A("v_add_f32 v9, v41, v43")
    A("v_add_f32 v10, v44, v46")
    A("v_add_f32 v11, v45, v47")
    A("v_add_f32 v8, v8, v10")
    A("v_add_f32 v9, v9, v11")
    A(f"v_mul_f32 v8, s{sT1}, v8")
    A(f"v_mul_f32 v9, s{sT1}, v9")
    A("v_fma_f32 v9, -v8, v8, v9")
    A("v_max_f32 v9, 0, v9")
    A(f"v_add_f32 v9, {hex(f32(1e-5))}, v9")
    A("v_rsq_f32 v9, v9")
    A("s_nop 0")
    A("v_mul_f32 v8, v8, v9")
    A(f"s_mov_b32 s{sT1}, {hex(L_XN1)}")
    for k in range(16):
        A(f"v_fma_f32 v{vY+k}, v{vY+k}, v9, -v8")
        if k % 2 == 1: A(f"v_cvt_pk_bf16_f32 v{40+k//2}, v{vY+k-1}, v{vY+k}")
        if k == 7: A.vmem(f"buffer_store_dwordx4 v[40:43], v{vRES}, {srd(rL)}, s{sT1} offen sc1", "st")
    A.vmem(f"buffer_store_dwordx4 v[44:47], v{vRES}, {srd(rL)}, s{sT1} offen offset:2048 sc1", "st")
    while gul: gu_dma(*gul.pop(0))
    publish(PH_ATT, sG, "st")
    stamp("att_pub")
    for u in range(8): gu_dma(4, 4, u)
    wdl = list(range(56))
    def wd_load():
        f = wdl.pop(0)
        if f == 0:
            A(f"s_lshl_b32 s{sWDO}, s{sCB}, 2")
            A(f"s_add_u32 s{sWDO}, s{sWDO}, s{sW}")
            A(f"s_mul_i32 s{sWDO}, s{sWDO}, {56*1024}")
            A(f"s_add_u32 s{sWDO}, s{sWDO}, {hex(WS_WDT)}")
        elif f % 4 == 0: A(f"s_add_u32 s{sWDO}, s{sWDO}, 4096")
        A.vmem(f"buffer_load_dwordx4 {ar(4*f)}, v{vL16}, {srd(rWS)}, s{sWDO} offen offset:{(f%4)*1024} sc1", "wd")
    for _ in range(cfg.wd_s2): wd_load()
    maybe_stop("att")

    vTK = 128; ACC = [16, 32, 48, 64]; vWB = 80; NWB = 6; vHP = 104; vX1R = 112; vHA = 120
    vSB = [121, 122, 123]
    A("v_and_b32 v5, 3, v0")
    A(f"s_lshl_b32 s{sT0}, s{sBLK}, 2")
    A(f"s_add_u32 s{sT0}, s{sT0}, s{sW}")
    A(f"s_lshl_b32 s{sT1}, s{sT0}, 2")
    A(f"v_add_u32 v5, s{sT1}, v5")
    A("v_lshlrev_b32 v5, 7, v5")
    A(f"v_add_u32 v5, {hex(L_FLAG + PH_ATT * 256 * 128)}, v5")
    A(f"v_mov_b32 v{vSB[0]}, v{vL16}")
    A(f"v_add_u32 v{vSB[1]}, 0x10000, v{vL16}")
    A(f"v_add_u32 v{vSB[2]}, 0x20000, v{vL16}")
    A(f"s_mul_i32 s{sT2}, s{sT0}, 112")
    A(f"s_mul_i32 s{sT1}, s{sSL}, 7")
    A(f"s_add_u32 s{sT2}, s{sT2}, s{sT1}")
    A(f"s_lshl_b32 s{sT2}, s{sT2}, 10")
    A(f"s_add_u32 s{sT2}, s{sT2}, {hex(L_H)}")
    A(f"v_add_u32 v{vHA}, s{sT2}, v{vL16}")
    A(f"s_lshl_b32 s{sT0}, s{sT0}, 15")
    A(f"s_add_u32 s{sT0}, s{sT0}, {hex(L_XN1)}")
    poll(5, "s2")
    stamp("s2")
    for s in range(32):
        if s % 4 == 0 and s: A(f"s_add_u32 s{sT0}, s{sT0}, 4096")
        A.vmem(f"buffer_load_dwordx4 {vr(vTK+4*s)}, v{vL16}, {srd(rL)}, s{sT0} offen offset:{(s%4)*1024} sc1", f"tk{s}")
    A("s_barrier")
    seq = [(j, s) for s in range(32) for j in range(3)] + [(j, s) for j in range(3, 7) for s in range(32)]
    slot_of = {0: 0, 1: 1, 2: 2, 3: 3, 4: 4, 5: 0, 6: 1}
    acc_of = {0: 0, 1: 1, 2: 2, 3: 3, 4: 0, 5: 1, 6: 2}
    def w_read(k):
        j, s = seq[k]
        off = slot_of[j] * 32768 + s * 1024
        A.ds(f"ds_read_b128 {vr(vWB+4*(k%NWB))}, v{vSB[off>>16]} offset:{off & 0xffff}", f"wb{k}")
    def h_epi(j):
        a = ACC[acc_of[j]]
        L = []
        for r in range(8):
            L.append(lambda r=r: A(f"v_max_f32 v{a+r}, 0, v{a+r}"))
            L.append(lambda r=r: A(f"v_mul_f32 v{a+r}, v{a+r}, v{a+8+r}"))
            if r % 2 == 1: L.append(lambda r=r: A(f"v_cvt_pk_bf16_f32 v{vHP+4*(j%2)+r//2}, v{a+r-1}, v{a+r}"))
        L.append(lambda: A.vmem(f"buffer_store_dwordx4 {vr(vHP+4*(j%2))}, v{vHA}, {srd(rL)}, s{sT1} offen offset:{(j%4)*1024} sc1", "hst"))
        return L
    extras = {k: [] for k in range(len(seq))}
    LOOK = NWB - 1
    k3 = 96
    ep = h_epi(0) + h_epi(1) + h_epi(2)
    for n, th in enumerate(ep): extras[k3 + 2 + n // 3].append(th)
    for j in (3, 4, 5):
        for n, th in enumerate(h_epi(j)): extras[k3 + 32 * (j - 2) + 2 + n // 2].append(th)
    g56 = [(5, 0, u) for u in range(8)] + [(6, 1, u) for u in range(8)]
    for n, e in enumerate(g56): extras[k3 + 1 + 2 * n].append(lambda e=e: gu_dma(*e))
    nwd = cfg.wd_ffn1
    for n in range(nwd): extras[k3 + 36 + (n * (128 - 40)) // nwd].append(wd_load)
    def x1_load():
        A(f"s_lshl_b32 s{sT0}, s{sTB}, 6")
        A(f"s_lshl_b32 s{sT2}, s{sCB}, 2")
        A(f"s_add_u32 s{sT0}, s{sT0}, s{sT2}")
        A(f"s_and_b32 s{sT2}, s{sW}, 1")
        A(f"s_lshl_b32 s{sT2}, s{sT2}, 1")
        A(f"s_add_u32 s{sT0}, s{sT0}, s{sT2}")
        A(f"s_lshr_b32 s{sT2}, s{sW}, 1")
        A(f"s_add_u32 s{sT0}, s{sT0}, s{sT2}")
        A(f"s_lshl_b32 s{sT0}, s{sT0}, 10")
        A(f"s_add_u32 s{sT0}, s{sT0}, {hex(L_X1)}")
        A.vmem(f"buffer_load_dwordx4 {vr(vX1R)}, v{vL16}, {srd(rL)}, s{sT0} offen sc1", "x1")
        A(f"s_add_u32 s{sT0}, s{sT0}, 32768")
        A.vmem(f"buffer_load_dwordx4 {vr(vX1R+4)}, v{vL16}, {srd(rL)}, s{sT0} offen sc1", "x1")
    extras[k3 + 34].append(x1_load)
    A(f"s_mov_b32 s{sT1}, 0")
    for k in range(LOOK): w_read(k)
    for k, (j, s) in enumerate(seq):
        if k == k3 - LOOK + 0: pass
        if k < k3 and j == 0: A.wait_vm(f"tk{s}")
        A.wait_lg(f"wb{k}")
        a = ACC[acc_of[j]]
        A(f"v_mfma_f32_32x32x16_bf16 {vr(a,16)}, {vr(vWB+4*(k%NWB))}, {vr(vTK+4*s)}, {vr(a,16) if s else 0}")
        if k == k3:
            A("s_barrier")
        kn = k + LOOK
        if kn < len(seq):
            if kn == k3 + 64:
                A.wait_vm(["gu5", "gu6"]); A("s_barrier")
            w_read(kn)
        if k == k3 + 32 + 30: A(f"s_mov_b32 s{sT1}, 4096")
        for th in extras[k]: th()
    for th in h_epi(6): th()
    while wdl and len(wdl) > 0: wd_load()
    stamp("ffn1_mm")
    publish(PH_FF1, sID1, "hst")
    stamp("ffn1_pub")
    maybe_stop("ffn1")

    AC = [[16, 32], [48, 64]]; vHR = 128; NHR = 26; vRT = 232; vOA = 80; vRW = 81; vRR = 82
    A.wait_vm("x1")
    for r in range(64): A(f"v_mov_b32 v{16+r}, 0")
    for wv in range(4):
        sk = A.newlabel("ini")
        A(f"s_cmp_lg_u32 s{sW}, {wv}")
        A(f"s_cbranch_scc1 {sk}")
        for tt in range(2):
            d = AC[tt][wv % 2] + 8 * (wv // 2)
            for k in range(8): unpack(d, vX1R + 4 * tt, k)
        A.label(sk)
    A("v_and_b32 v5, 3, v0")
    A(f"s_lshr_b32 s{sT0}, s{sTB}, 1")
    A(f"s_lshl_b32 s{sT0}, s{sT0}, 2")
    A(f"s_add_u32 s{sT0}, s{sT0}, s{sW}")
    A(f"s_lshl_b32 s{sT0}, s{sT0}, 2")
    A(f"v_add_u32 v5, s{sT0}, v5")
    A("v_lshlrev_b32 v5, 7, v5")
    A(f"v_add_u32 v5, {hex(L_FLAG + PH_FF1 * 256 * 128)}, v5")
    A(f"s_lshl_b32 s{sT0}, s{sW}, 11")
    A(f"v_add_u32 v{vRW}, s{sT0}, v{vL16}")
    A(f"s_lshl_b32 s{sT0}, s{sW}, 13")
    A(f"v_add_u32 v{vRR}, s{sT0}, v{vL16}")
    lo = A.newlabel("outrow"); ld = A.newlabel("outd")
    A(f"s_and_b32 s{sT1}, s{sW}, 1")
    A(f"s_lshl_b32 s{sT1}, s{sT1}, 1")
    A(f"s_lshr_b32 s{sT2}, s{sW}, 1")
    A(f"s_add_u32 s{sT1}, s{sT1}, s{sT2}")
    A(f"s_lshl_b32 s{sT2}, s{sCB}, 2")
    A(f"s_add_u32 s{sT1}, s{sT1}, s{sT2}")
    A(f"s_lshl_b32 s{sT0}, s{sTB}, 16")
    A(f"s_cmp_eq_u32 s{sLAYER}, 0")
    A(f"s_cbranch_scc0 {lo}")
    A(f"s_lshl_b32 s{sT1}, s{sT1}, 10")
    A(f"s_add_u32 s{sT0}, s{sT0}, s{sT1}")
    A(f"v_add_u32 v{vOA}, s{sT0}, v{vL16}")
    A(f"s_branch {ld}")
    A.label(lo)
    A(f"s_lshl_b32 s{sT1}, s{sT1}, 5")
    A(f"s_add_u32 s{sT0}, s{sT0}, s{sT1}")
    A("v_and_b32 v6, 31, v0")
    A("v_bfe_u32 v7, v0, 5, 1")
    A("v_lshlrev_b32 v6, 10, v6")
    A("v_lshl_add_u32 v6, v7, 4, v6")
    A(f"v_add_u32 v{vOA}, s{sT0}, v6")
    A.label(ld)
    A(f"s_mul_i32 s{sT0}, s{sTB}, 224")
    A(f"s_mul_i32 s{sT1}, s{sW}, 28")
    A(f"s_add_u32 s{sT0}, s{sT0}, s{sT1}")
    A(f"s_lshl_b32 s{sT0}, s{sT0}, 10")
    A(f"s_add_u32 s{sT0}, s{sT0}, {hex(L_H)}")
    poll(5, "s3")
    stamp("s3")
    def h_load(n):
        tt, k = n // 28, n % 28
        if n == 28: A(f"s_add_u32 s{sT0}, s{sT0}, {112*1024 - 24*1024}")
        elif k % 4 == 0 and n: A(f"s_add_u32 s{sT0}, s{sT0}, 4096")
        A.vmem(f"buffer_load_dwordx4 {vr(vHR+4*(n%NHR))}, v{vL16}, {srd(rL)}, s{sT0} offen offset:{(k%4)*1024} sc1", f"h{n}")
    for n in range(NHR): h_load(n)
    def red_write(tt):
        L = []
        for own in range(4):
            a = AC[tt][own % 2] + 8 * (own // 2)
            for h in range(2):
                L.append(lambda a=a, own=own, h=h: A.ds(f"ds_write_b128 v{vRW}, {vr(a+4*h)} offset:{tt*32768 + own*8192 + h*1024}", f"rw{tt}"))
        return L
    def red_final(tt):
        L = []
        for src in range(4):
            for h in range(2):
                d = (vRT + 8 * src + 4 * h) if src < 3 else (84 + 4 * h)
                L.append(lambda src=src, h=h, d=d: A.ds(f"ds_read_b128 {vr(d)}, v{vRR} offset:{tt*32768 + src*2048 + h*1024}", f"rr{tt}"))
        L.append(lambda: A.wait_lg(f"rr{tt}"))
        for r in range(8):
            L.append(lambda r=r: A(f"v_add_f32 v{vRT+r}, v{vRT+r}, v{vRT+8+r}"))
            L.append(lambda r=r: A(f"v_add_f32 v{84+r}, v{84+r}, v{vRT+16+r}"))
        for r in range(8):
            L.append(lambda r=r: A(f"v_add_f32 v{vRT+r}, v{vRT+r}, v{84+r}"))
            if r % 2 == 1: L.append(lambda r=r: A(f"v_cvt_pk_bf16_f32 v{92+4*tt+r//2}, v{vRT+r-1}, v{vRT+r}"))
        L.append(lambda: (A(f"s_mov_b32 s{sT2}, {tt*32768}"), A.vmem(f"buffer_store_dwordx4 {vr(92+4*tt)}, v{vOA}, {srd(rOUT)}, s{sT2} offen sc1", "ost")))
        return L
    ex2 = {n: [] for n in range(56)}
    for i_, th in enumerate(red_write(0)): ex2[28 + 2 + i_ // 2].append(th)
    def rbar():
        A.wait_lg("rw0"); A("s_barrier")
    ex2[28 + 9].append(rbar)
    for i_, th in enumerate(red_final(0)): ex2[28 + 9 + min(i_ // 4, 16)].append(th)
    for n in range(56):
        tt, k = n // 28, n % 28
        A.wait_vm(f"h{n}")
        for ct in range(2):
            A(f"v_mfma_f32_32x32x16_bf16 {vr(AC[tt][ct],16)}, {ar(4*(2*k+ct))}, {vr(vHR+4*(n%NHR))}, {vr(AC[tt][ct],16)}")
        if n + NHR < 56: h_load(n + NHR)
        for th in ex2[n]: th()
        if n == 56 - NHR + 1:
            issue_w_dma()
    stamp("ffn2_mm")
    for th in red_write(1): th()
    A.wait_lg()
    A("s_barrier")
    for th in red_final(1): th()
    A(f"s_cmp_eq_u32 s{sLAYER}, 0")
    A("s_cbranch_scc0 L_FINISH")
    A.wait_vm()
    publish(PH_FF2, sG, "ost")
    stamp("ffn2_pub")
    maybe_stop("ffn2")
    A(f"s_mov_b32 s{sLAYER}, 1")
    A(f"s_add_u32 s{rL}, s{rL}, {hex(LSTRIDE)}")
    A(f"s_addc_u32 s{rL+1}, s{rL+1}, 0")
    A(f"s_mov_b32 s{rXIN}, s{rOUT}")
    A(f"s_mov_b32 s{rXIN+1}, s{rOUT+1}")
    A(f"s_mov_b32 s{rOUT}, s{P_OUT}")
    A(f"s_mov_b32 s{rOUT+1}, s{P_OUT+1}")
    A(f"s_mov_b32 s{sXST}, 2048")
    A(f"s_lshl_b32 s{sT0}, s{sTB}, 16")
    A(f"s_lshr_b32 s{sT1}, s{sW}, 1")
    A(f"s_lshl_b32 s{sT1}, s{sT1}, 15")
    A(f"s_add_u32 s{sT0}, s{sT0}, s{sT1}")
    A(f"s_and_b32 s{sT1}, s{sW}, 1")
    A(f"s_lshl_b32 s{sT1}, s{sT1}, 10")
    A(f"s_add_u32 s{sT0}, s{sT0}, s{sT1}")
    A(f"v_add_u32 v{vXS}, s{sT0}, v{vL16}")
    x_read_addrs(False)
    A("s_branch L_LAYER")

    A.label("L_FINISH")
    stamp("finish")
    if cfg.prof:
        A(f"s_lshl_b32 s{sT0}, s{sGW}, 8")
        A(f"s_add_u32 s{sT0}, s{sT0}, {hex(WS_PROF)}")
        A(f"v_lshrrev_b32 v4, 2, v{vL16}")
        A(f"buffer_store_dword v{vPROF}, v4, {srd(rWS)}, s{sT0} offen")
    A(f"s_cmp_lg_u32 s{sGW}, 0")
    A("s_cbranch_scc1 L_END")
    if not cfg.stop:
        A("v_mov_b32 v4, 0")
        A("s_mov_b64 exec, 1")
        A(f"buffer_store_dword v{vTAG}, v4, {srd(rWS)}, 0 offen")
    A.label("L_END")
    A("s_endpgm")
    A.label("L_TIMEOUT")
    A("s_endpgm")

    for p in range(2):
        o = O[p]; q = Q[p]
        fS, fN, fK, fV0, fV1, fM, fA, fB = 192, 208, 224, 228, 232, 236, 237, 238
        A.label(f"L_FB{p}")
        A("s_waitcnt lgkmcnt(0)")
        A(f"v_mov_b32 v{fM}, 0xff800000")
        A(f"v_mov_b32 v{fA}, v{vL16}")
        A(f"s_mov_b32 s{sCNT}, 64")
        A.label(f"L_FB{p}_a")
        A(f"ds_read_b128 {vr(fK)}, v{fA}")
        A(f"v_add_u32 v{fA}, 1024, v{fA}")
        A("s_waitcnt lgkmcnt(0)")
        A(f"v_mfma_f32_32x32x16_bf16 {vr(fS,16)}, {vr(fK)}, {vr(q)}, 0")
        A("s_nop 7"); A("s_nop 7")
        for r in range(8): A(f"v_max3_f32 v{fM}, v{fS+2*r}, v{fS+2*r+1}, v{fM}")
        A(f"s_sub_u32 s{sCNT}, s{sCNT}, 1")
        A(f"s_cmp_lg_u32 s{sCNT}, 0")
        A(f"s_cbranch_scc1 L_FB{p}_a")
        A(f"v_mov_b32 v{fA}, v{fM}")
        A("s_nop 1")
        A(f"v_permlane32_swap_b32 v{fM}, v{fA}")
        A(f"v_max_f32 v{fM}, v{fM}, v{fA}")
        for r in range(16):
            A(f"v_sub_f32 v{fN+r}, 0, v{fM}")
            A(f"v_mov_b32 v{o+r}, 0")
        A(f"v_lshrrev_b32 v{fB}, 3, v{vVINC}")
        A("v_and_b32 v4, 63, v0")
        A("v_and_b32 v5, 15, v4")
        A("v_lshrrev_b32 v6, 5, v4")
        A("v_lshlrev_b32 v5, 4, v5")
        A("v_lshl_add_u32 v5, v6, 8, v5")
        A(f"v_lshlrev_b32 v6, 6, v{fB}")
        A(f"v_sub_u32 v5, v5, v6")
        A(f"v_add_u32 v5, {LDS_ONES}, v5")
        A(f"v_mov_b32 v{fA}, v{vL16}")
        A(f"s_mov_b32 s{sCNT}, 64")
        A.label(f"L_FB{p}_b")
        A(f"ds_read_b128 {vr(fK)}, v{fA}")
        A(f"ds_read_b128 {vr(fV0)}, v5")
        A(f"ds_read_b128 {vr(fV1)}, v5 offset:512")
        A(f"v_add_u32 v{fA}, 1024, v{fA}")
        A(f"v_add_u32 v5, v5, v{fB}")
        A("s_waitcnt lgkmcnt(0)")
        A(f"v_mfma_f32_32x32x16_bf16 {vr(fS,16)}, {vr(fK)}, {vr(q)}, {vr(fN,16)}")
        A("s_nop 7"); A("s_nop 7")
        for r in range(16): A(f"v_exp_f32 v{fS+r}, v{fS+r}")
        A("s_nop 1")
        A(f"v_smfmac_f32_32x32x32_bf16 {vr(o,16)}, {vr(fV0)}, {vr(fS,8)}, v{vIDX}")
        A(f"v_smfmac_f32_32x32x32_bf16 {vr(o,16)}, {vr(fV1)}, {vr(fS+8,8)}, v{vIDX}")
        A(f"s_sub_u32 s{sCNT}, s{sCNT}, 1")
        A(f"s_cmp_lg_u32 s{sCNT}, 0")
        A(f"s_cbranch_scc1 L_FB{p}_b")
        A("s_nop 7"); A("s_nop 7")
        A(f"s_branch L_FBR{p}")
    assert LDS_ONES - 0x10000 == LDS_V
    A.label("L_CODE_END")
    lines, nfix, probs = check_hazards(A.L)
    for p_ in probs: print("HAZARD:", p_, file=sys.stderr)
    print(f"auto nops: {nfix}", file=sys.stderr)
    body = "\n".join(l if l.endswith(":") else "    " + l for l in lines)
    hdr = open("cdna_kernels/" + NAME + ".s.ref").read().split("; Override launch")[0]
    out = hdr + f"""; Persistent kernel: 256 workgroups (one per CU), flag-based hand-offs through d_ws. Generated by gen.py.
; @launch grid=(256,1,1) block=(256,1,1) lds={LDS_TOTAL}
.amdgcn_target "amdgcn-amd-amdhsa--gfx950"
.text
.globl {NAME}_kernel
.p2align 8
.type {NAME}_kernel,@function
{NAME}_kernel:
L_CODE_START:
{body}
.section .rodata,"a"
.p2align 6
.amdhsa_kernel {NAME}_kernel
  .amdhsa_next_free_vgpr 512
  .amdhsa_next_free_sgpr 102
  .amdhsa_accum_offset 256
  .amdhsa_group_segment_fixed_size 0
  .amdhsa_kernarg_size 96
  .amdhsa_user_sgpr_count 2
  .amdhsa_user_sgpr_kernarg_segment_ptr 1
  .amdhsa_system_sgpr_workgroup_id_x 1
.end_amdhsa_kernel
"""
    return out

if __name__ == "__main__":
    import argparse, json
    ap = argparse.ArgumentParser()
    ap.add_argument("-o", default="cdna_kernels/" + NAME + ".s")
    ap.add_argument("--stop", default=None)
    ap.add_argument("--prof", action="store_true")
    ap.add_argument("--t512", action="store_true")
    ap.add_argument("--wd_s2", type=int, default=12)
    ap.add_argument("--wd_ffn1", type=int, default=26)
    a = ap.parse_args()
    cfg = Cfg()
    if a.stop:
        l, p = a.stop.split(":"); cfg.stop = (int(l), p)
    cfg.prof = a.prof; cfg.ffn1_t512 = a.t512; cfg.wd_s2 = a.wd_s2; cfg.wd_ffn1 = a.wd_ffn1
    s = gen(cfg)
    open(a.o, "w").write(s)
    json.dump(cfg.stamps, open(a.o + ".stamps.json", "w"))
```

```python
import sys, math, struct
sys.path.insert(0, "gen")
from asmlib import Asm, check_hazards

NAME = "interleave_layers__grouped_kv_mqa__glu_gated_reglu__prompt"

WS_EPOCH = 0
WS_WFLAG = 0x1000
WS_PROF = 0x10000
WS_WOT = 0x100000
WS_WDT = 0x200000
WS_WGUT = 0x400000
WS_X2 = 0x800000
WS_L0 = 0x1000000
LSTRIDE = 0x1000000
WS_SIZE = 0x3000000
L_Q = 0
L_KV = 0x200000
L_FLAG = 0x280000
L_X1 = 0x300000
L_XN1 = 0x500000
L_H = 0x700000
PH_QKV, PH_ATT, PH_FF1, PH_FF2 = 0, 1, 2, 3

LDS_X = 0
LDS_WQ = 0x10000
LDS_WKV = 0x20000
LDS_ST = 0x24400
LDS_K = 0
LDS_V = 0x10000
LDS_ONES = 0x20000
LDS_OX = 0x22000
LDS_LNX = 0x24000
LDS_RED = 0
LDS_TOTAL = 160 * 1024

sWG = 2; sW = 3; sX = 4; sI = 5; sLAYER = 6; sTAG = 7
P_X, P_WQ, P_WK, P_WV, P_WO, P_BX, P_WG, P_WU, P_WD, P_OUT, P_DBG, P_WS = [8 + 2 * i for i in range(12)]
rXIN = 32; rWQ = 36; rWKV = 40; rL = 44; rWS = 48; rOUT = 52; rR0 = 56; rR1 = 60; rR2 = 64
sTB = 68; sCB = 69; sG = 70; sBLK = 71; sSL = 72; sID1 = 73; sXST = 74; sGW = 75
sT0 = 76; sT1 = 77; sT2 = 78; sT3 = 79; sT4 = 80; sT5 = 81
sCNT = 82; sRST = 83
sM0 = 84
sM1 = 86
sM2 = 88
sM3 = 90
sTS = 92
sWDO = 94

def srd(n): return f"s[{n}:{n+3}]"
def vr(a, n=4): return f"v[{a}:{a+n-1}]"
def ar(a, n=4): return f"a[{a}:{a+n-1}]"
def f32(x): return struct.unpack("<I", struct.pack("<f", x))[0]

vL16 = 1; vTAG = 2; vPROF = 3

class Cfg:
    stop = None
    prof = False
    ffn1_t512 = False
    spin_limit = 200000

def gen(cfg):
    A = Asm()
    stamp_idx = [0]
    def stamp(name):
        if not cfg.prof: return
        A(f"{'s_memtime' if cfg.prof == 'clk' else 's_memrealtime'} s[{sTS}:{sTS+1}]")
        A("s_waitcnt lgkmcnt(0)"); A.lg = []
        k = stamp_idx[0]; stamp_idx[0] += 1
        assert k < 30
        A(f"s_mul_i32 s{sTS+1}, s{sLAYER}, 30")
        A(f"s_add_u32 s{sTS+1}, s{sTS+1}, {k}")
        A(f"v_writelane_b32 v{vPROF}, s{sTS}, s{sTS+1}") if False else None
        A(f"s_mov_b32 m0, s{sTS+1}")
        A("s_nop 1")
        A(f"v_writelane_b32 v{vPROF}, s{sTS}, m0")
        cfg.stamps.append(name)
    cfg.stamps = []
    def maybe_stop(phase):
        if cfg.stop and cfg.stop[1] == phase:
            A(f"s_cmp_eq_u32 s{sLAYER}, {cfg.stop[0]}")
            A("s_cbranch_scc1 L_FINISH")

    def poll(vaddr, name, tmp=4):
        lp = A.newlabel("poll_" + name); dn = A.newlabel("polld_" + name)
        A(f"s_mov_b32 s{sCNT}, {cfg.spin_limit}")
        A.label(lp)
        A(f"buffer_load_dword v{tmp}, v{vaddr}, {srd(rL)}, 0 offen sc1")
        A("s_waitcnt vmcnt(0)"); A.vm = []
        A(f"v_cmp_ne_u32 vcc, v{tmp}, v{vTAG}")
        A(f"s_cbranch_vccz {dn}")
        A(f"s_sub_u32 s{sCNT}, s{sCNT}, 1")
        A(f"s_cmp_lg_u32 s{sCNT}, 0")
        A(f"s_cbranch_scc1 {lp}")
        A("s_branch L_TIMEOUT")
        A.label(dn)

    def publish(phase, sid, tags, tmp=4):
        A.wait_vm(tags)
        A("s_barrier")
        sk = A.newlabel("pub")
        A(f"s_cmp_lg_u32 s{sW}, 0")
        A(f"s_cbranch_scc1 {sk}")
        A(f"s_lshl_b32 s{sT0}, s{sid}, 7")
        A(f"s_add_u32 s{sT0}, s{sT0}, {L_FLAG + phase * 256 * 128}")
        A(f"v_mov_b32 v{tmp}, 0")
        A("s_mov_b64 exec, 1")
        A(f"buffer_store_dword v{vTAG}, v{tmp}, {srd(rL)}, s{sT0} offen sc1")
        A("s_mov_b64 exec, -1")
        A.label(sk)

    def dma(voff, r, soff, ldsaddr, imm, tag, sc1=True, setm0=True):
        if setm0:
            A(f"s_mov_b32 m0, {ldsaddr}")
            A("s_nop 0")
        A.vmem(f"buffer_load_dwordx4 v{voff}, {srd(r)}, {soff} offen offset:{imm}{' sc1' if sc1 else ''} lds", tag)

    A(f"s_cmp_ge_u32 s{sWG}, 256")
    A("s_cbranch_scc1 L_END")
    if cfg.prof: A(f"{'s_memtime' if cfg.prof == 'clk' else 's_memrealtime'} s[96:97]")
    A("s_load_dwordx16 s[8:23], s[0:1], 0")
    A("s_load_dwordx8 s[24:31], s[0:1], 64")
    A(f"s_getpc_b64 s[{sM0}:{sM0+1}]")
    A(f"s_and_b32 s{sM0}, s{sM0}, 0xffffffc0")
    A(f"v_and_b32 v4, 63, v0")
    A(f"v_lshlrev_b32 v{vL16}, 4, v4")
    A(f"v_lshrrev_b32 v5, 6, v0")
    A(f"s_and_b32 s{sX}, s{sWG}, 7")
    A(f"s_lshr_b32 s{sI}, s{sWG}, 3")
    A(f"v_readfirstlane_b32 s{sW}, v5")
    A(f"s_lshl_b32 s{sT0}, s{sI}, 12")
    A(f"v_lshlrev_b32 v6, 4, v0")
    A(f"v_add_u32 v6, s{sT0}, v6")
    A(f"v_min_u32 v6, L_CODE_END-L_CODE_START-64, v6")
    A(f"global_load_dwordx4 v[248:251], v6, s[{sM0}:{sM0+1}]")
    A.vm.append("code")
    A(f"s_lshr_b32 s{sT0}, s{sI}, 3")
    A(f"s_lshl_b32 s{sTB}, s{sX}, 2")
    A(f"s_add_u32 s{sTB}, s{sTB}, s{sT0}")
    A(f"s_and_b32 s{sCB}, s{sI}, 7")
    A(f"s_lshl_b32 s{sG}, s{sX}, 5")
    A(f"s_add_u32 s{sG}, s{sG}, s{sI}")
    if cfg.ffn1_t512:
        A(f"s_lshr_b32 s{sBLK}, s{sX}, 1")
        A(f"s_lshl_b32 s{sBLK}, s{sBLK}, 2")
        A(f"s_add_u32 s{sBLK}, s{sBLK}, s{sT0}")
        A(f"s_and_b32 s{sSL}, s{sX}, 1")
        A(f"s_lshl_b32 s{sSL}, s{sSL}, 3")
        A(f"s_add_u32 s{sSL}, s{sSL}, s{sCB}")
    else:
        A(f"s_lshr_b32 s{sBLK}, s{sG}, 4")
        A(f"s_and_b32 s{sSL}, s{sG}, 15")
    A(f"s_lshl_b32 s{sID1}, s{sBLK}, 4")
    A(f"s_add_u32 s{sID1}, s{sID1}, s{sSL}")
    A(f"s_lshl_b32 s{sGW}, s{sWG}, 2")
    A(f"s_mov_b32 s{sLAYER}, 0")
    if cfg.prof: A(f"v_mov_b32 v{vPROF}, 0")
    A("s_waitcnt lgkmcnt(0)")
    if cfg.prof:
        A(f"v_writelane_b32 v{vPROF}, s96, 0")
        stamp_idx[0] = 1; cfg.stamps.append("entry")
    A(f"s_load_dword s{sTAG}, s[{P_WS}:{P_WS+1}], {WS_EPOCH}")
    A(f"s_add_u32 s{sGW}, s{sGW}, s{sW}")
    def mk_srd(r, p, size, add=0):
        if add:
            A(f"s_add_u32 s{r}, s{p}, {hex(add)}")
            A(f"s_addc_u32 s{r+1}, s{p+1}, 0")
        else:
            A(f"s_mov_b32 s{r}, s{p}")
            A(f"s_mov_b32 s{r+1}, s{p+1}")
        A(f"s_mov_b32 s{r+2}, {hex(size)}")
        A(f"s_mov_b32 s{r+3}, 0x20000")
    mk_srd(rWQ, P_WQ, 512 * 512 * 2)
    mk_srd(rXIN, P_X, 2048 * 512 * 2)
    A(f"s_cmp_eq_u32 s{sCB}, 0")
    A(f"s_cselect_b32 s{rWKV}, s{P_WK}, s{P_WV}")
    A(f"s_cselect_b32 s{rWKV+1}, s{P_WK+1}, s{P_WV+1}")
    A(f"s_mov_b32 s{rWKV+2}, {512*16*2}")
    A(f"s_mov_b32 s{rWKV+3}, 0x20000")

    def issue_w_dma():
        A.c("wq raw DMA: instr n covers rows 8n..8n+7; wave w issues n = 4c*4.. ordered by k chunk")
        A("v_and_b32 v4, 63, v0")
        A("v_lshrrev_b32 v5, 3, v4")
        A("v_lshrrev_b32 v6, 4, v4")
        A("v_and_b32 v6, 1, v6")
        A("v_lshlrev_b32 v6, 2, v6")
        A("v_and_b32 v4, 7, v4")
        A("v_xor_b32 v4, v4, v6")
        A("v_lshlrev_b32 v4, 4, v4")
        A("v_lshl_add_u32 v4, v5, 10, v4")
        A(f"s_lshl_b32 s{sT0}, s{sW}, 15")
        A(f"s_lshl_b32 s{sT1}, s{sCB}, 7")
        A(f"s_add_u32 s{sT0}, s{sT0}, s{sT1}")
        A(f"s_lshl_b32 s{sT1}, s{sW}, 12")
        A(f"s_add_u32 s{sT1}, s{sT1}, {LDS_WQ}")
        for c in range(4):
            for n in range(4):
                A(f"s_mov_b32 m0, s{sT1}")
                A(f"s_add_u32 s{sT1}, s{sT1}, {1024 if n < 3 else 16384 - 3072}")
                A.vmem(f"buffer_load_dwordx4 v4, {srd(rWQ)}, s{sT0} offen lds", f"wq{c}")
                A(f"s_add_u32 s{sT0}, s{sT0}, {8192 if n < 3 else 131072 - 3 * 8192}")
            if c == 0:
                A(f"s_lshl_b32 s{sT2}, s{sW}, 12")
                A(f"s_add_u32 s{sT3}, s{sT2}, {LDS_WKV}")
                A(f"s_mov_b32 m0, s{sT3}")
                A("s_nop 0")
                for n in range(4):
                    A.vmem(f"buffer_load_dwordx4 v{vL16}, {srd(rWKV)}, s{sT2} offen offset:{n*1024} lds", "wkv")
    vXS = 12
    def issue_x_dma(sc1):
        A(f"s_lshl_b32 s{sT1}, s{sW}, 10")
        A(f"s_mov_b32 s{sT0}, 0")
        for j in range(16):
            A(f"s_mov_b32 m0, s{sT1}")
            A(f"s_add_u32 s{sT1}, s{sT1}, 4096")
            A.vmem(f"buffer_load_dwordx4 v{vXS}, {srd(rXIN)}, s{sT0} offen{' sc1' if sc1 else ''} lds", f"x{j//4}")
            A(f"s_add_u32 s{sT0}, s{sT0}, s{sXST}")

    issue_w_dma()
    A("v_and_b32 v4, 63, v0")
    A("v_lshrrev_b32 v5, 2, v4")
    A("v_lshrrev_b32 v6, 4, v4")
    A("v_and_b32 v4, 3, v4")
    A("v_xor_b32 v4, v4, v6")
    A("v_lshlrev_b32 v4, 4, v4")
    A(f"v_lshl_add_u32 v{vXS}, v5, 10, v4")
    A(f"s_lshl_b32 s{sT0}, s{sTB}, 16")
    A(f"s_lshl_b32 s{sT1}, s{sW}, 14")
    A(f"s_add_u32 s{sT0}, s{sT0}, s{sT1}")
    A(f"v_add_u32 v{vXS}, s{sT0}, v{vXS}")
    A(f"s_mov_b32 s{sXST}, 64")
    issue_x_dma(False)
    mk_srd(rL, P_WS, LSTRIDE, WS_L0)
    mk_srd(rWS, P_WS, WS_L0)
    mk_srd(rOUT, P_WS, 2048 * 512 * 2, WS_X2)
    vRAW = 224
    A("v_and_b32 v4, 63, v0")
    A("v_lshrrev_b32 v5, 3, v4")
    A("v_and_b32 v4, 7, v4")
    A("v_lshlrev_b32 v4, 4, v4")
    A("v_lshl_add_u32 v7, v5, 10, v4")
    A("v_mul_u32_u24 v5, 3584, v5")
    A("v_add_u32 v6, v5, v4")
    A(f"s_cmp_ge_u32 s{sWG}, 224")
    A("s_cbranch_scc1 L_RAW_WO")
    mk_srd(rR0, P_WG, 512 * 1792 * 2)
    mk_srd(rR1, P_WU, 512 * 1792 * 2)
    mk_srd(rR2, P_WD, 512 * 1792 * 2)
    A(f"s_and_b32 s{sT0}, s{sGW}, 31")
    A(f"s_mul_i32 s{sT0}, s{sT0}, {16*3584}")
    A(f"s_lshr_b32 s{sT1}, s{sGW}, 5")
    A(f"s_lshl_b32 s{sT1}, s{sT1}, 7")
    A(f"s_add_u32 s{sT0}, s{sT0}, s{sT1}")
    A(f"s_add_u32 s{sT1}, s{sT0}, {8*3584}")
    A(f"buffer_load_dwordx4 {vr(vRAW)}, v6, {srd(rR0)}, s{sT0} offen")
    A(f"buffer_load_dwordx4 {vr(vRAW+4)}, v6, {srd(rR0)}, s{sT1} offen")
    A(f"buffer_load_dwordx4 {vr(vRAW+8)}, v6, {srd(rR1)}, s{sT0} offen")
    A(f"buffer_load_dwordx4 {vr(vRAW+12)}, v6, {srd(rR1)}, s{sT1} offen")
    A(f"s_lshr_b32 s{sT0}, s{sGW}, 3")
    A(f"s_lshl_b32 s{sT0}, s{sT0}, 14")
    A(f"s_and_b32 s{sT1}, s{sGW}, 7")
    A(f"s_lshl_b32 s{sT1}, s{sT1}, 7")
    A(f"s_add_u32 s{sT0}, s{sT0}, s{sT1}")
    A(f"s_add_u32 s{sT1}, s{sT0}, 8192")
    A(f"buffer_load_dwordx4 {vr(vRAW+16)}, v7, {srd(rR2)}, s{sT0} offen")
    A(f"buffer_load_dwordx4 {vr(vRAW+20)}, v7, {srd(rR2)}, s{sT1} offen")
    A("s_branch L_RAW_DONE")
    A.label("L_RAW_WO")
    mk_srd(rR0, P_WO, 512 * 512 * 2)
    A(f"s_sub_u32 s{sT2}, s{sGW}, 896")
    A(f"s_lshr_b32 s{sT0}, s{sT2}, 3")
    A(f"s_lshl_b32 s{sT0}, s{sT0}, 15")
    A(f"s_and_b32 s{sT1}, s{sT2}, 7")
    A(f"s_lshl_b32 s{sT1}, s{sT1}, 7")
    A(f"s_add_u32 s{sT0}, s{sT0}, s{sT1}")
    for n in range(4):
        A(f"buffer_load_dwordx4 {vr(vRAW+4*n)}, v7, {srd(rR0)}, s{sT0} offen")
        A(f"s_add_u32 s{sT0}, s{sT0}, 8192")
    for n in range(2):
        A(f"buffer_load_dwordx4 {vr(vRAW+16+4*n)}, v7, {srd(rR0)}, 0 offen")
    A.label("L_RAW_DONE")
    NRAW = 6
    A("s_waitcnt lgkmcnt(0)")
    A(f"s_mul_i32 s{sTAG}, s{sTAG}, 1664525")
    A(f"s_add_u32 s{sTAG}, s{sTAG}, 1013904223")
    A(f"v_mov_b32 v{vTAG}, s{sTAG}")
    vXE, vXO, vX16 = 13, 14, 15
    def x_read_addrs(layer0):
        A("v_and_b32 v4, 63, v0")
        A(f"s_lshr_b32 s{sT0}, s{sW}, 1")
        if layer0:
            A("v_and_b32 v5, 15, v4")
            A("v_lshrrev_b32 v6, 2, v5")
            A("v_lshrrev_b32 v7, 5, v4")
            A("v_xor_b32 v7, v7, v6")
            A("v_lshlrev_b32 v7, 4, v7")
            A("v_lshl_add_u32 v7, v5, 6, v7")
            A("v_bfe_u32 v8, v4, 4, 1")
            A("v_lshl_add_u32 v7, v8, 10, v7")
            A(f"s_lshl_b32 s{sT0}, s{sT0}, 11")
            A(f"v_add_u32 v{vXE}, s{sT0}, v7")
            A(f"v_xor_b32 v{vXO}, 32, v{vXE}")
            A("v_lshrrev_b32 v7, 4, v4")
            A("v_xor_b32 v7, v7, v6")
            A("v_lshlrev_b32 v7, 4, v7")
            A("v_lshl_add_u32 v7, v5, 6, v7")
            A(f"s_lshl_b32 s{sT0}, s{sW}, 10")
            A(f"v_add_u32 v{vX16}, s{sT0}, v7")
        else:
            A(f"s_lshl_b32 s{sT0}, s{sT0}, 11")
            A(f"v_add_u32 v{vXE}, s{sT0}, v{vL16}")
            A(f"v_add_u32 v{vXO}, 1024, v{vXE}")
            A("v_and_b32 v5, 15, v4")
            A("v_lshrrev_b32 v6, 5, v4")
            A("v_bfe_u32 v7, v4, 4, 1")
            A("v_lshlrev_b32 v5, 4, v5")
            A("v_lshl_add_u32 v5, v7, 9, v5")
            A("v_lshl_add_u32 v5, v6, 10, v5")
            A(f"s_and_b32 s{sT1}, s{sW}, 1")
            A(f"s_lshl_b32 s{sT1}, s{sT1}, 8")
            A(f"s_add_u32 s{sT0}, s{sT0}, s{sT1}")
            A(f"v_add_u32 v{vX16}, s{sT0}, v5")
    x_read_addrs(True)
    stamp("start")
    vm_l0 = list(A.vm)

    A.label("L_LAYER")
    aWQ, aWKV = 0, 128
    vAQ, vCS, vAKV, vCKV, vG, vU, vONE = 16, 32, 48, 52, 56, 60, 64
    vXF = [128, 160]; vX16F = [192, 208]
    A(f"s_cmp_eq_u32 s{sLAYER}, 0")
    A(f"s_cselect_b32 s{sRST}, 1, 0")
    for r in range(4): A(f"v_mov_b32 v{vONE+r}, 0x3f803f80")
    A("v_and_b32 v4, 63, v0")
    A("v_bfe_u32 v5, v4, 2, 2")
    A("v_lshrrev_b32 v6, 5, v4")
    A("v_lshl_add_u32 v6, v6, 3, v5")
    A("v_lshrrev_b32 v5, 1, v5")
    A(f"s_and_b32 s{sT0}, s{sW}, 1")
    A(f"v_xor_b32 v5, s{sT0}, v5")
    A("v_lshlrev_b32 v5, 6, v5")
    A("v_lshl_add_u32 v5, v6, 7, v5")
    A("v_bfe_u32 v6, v4, 4, 1")
    A("v_lshl_add_u32 v5, v6, 5, v5")
    A("v_and_b32 v6, 1, v4")
    A("v_bfe_u32 v7, v4, 1, 1")
    A("v_lshl_add_u32 v6, v6, 1, v7")
    A("v_lshl_add_u32 v8, v6, 3, v5")
    A(f"v_add_u32 v8, {LDS_WQ}, v8")
    A("v_and_b32 v7, 3, v4")
    A(f"s_cmp_eq_u32 s{sCB}, 0")
    A(f"s_cselect_b64 vcc, -1, 0")
    A("v_cndmask_b32 v6, v6, v7, vcc")
    A("v_bfe_u32 v5, v4, 2, 2")
    A("v_lshrrev_b32 v7, 4, v4")
    A("v_lshl_add_u32 v5, v7, 3, v5")
    A("v_lshlrev_b32 v5, 5, v5")
    A("v_lshl_add_u32 v9, v6, 3, v5")
    A(f"v_add_u32 v9, {LDS_WKV}, v9")
    for c in range(4):
        n = len(vm_l0) - 1 - max(i for i, t in enumerate(vm_l0) if t == f"wq{c}") + NRAW
        A(f"s_waitcnt vmcnt({min(n, 63)})")
        A("s_barrier")
        for s in range(8 * c, 8 * c + 8):
            A.ds(f"ds_read_b64_tr_b16 {ar(aWQ+4*s, 2)}, v8 offset:{s*2048}", f"w{s}")
            A.ds(f"ds_read_b64_tr_b16 {ar(aWQ+4*s+2, 2)}, v8 offset:{s*2048+512}", f"w{s}")
            if s % 8 >= 4:
                s2 = s - 4
                A.wait_lg(f"w{s2}")
                A(f"v_mfma_f32_32x32x16_bf16 {vr(vCS,16)}, {ar(aWQ+4*s2)}, {vr(vONE)}, {vr(vCS,16) if s2 else 0}")
        for s2 in range(8 * c + 4, 8 * c + 8):
            A.wait_lg(f"w{s2}")
            A(f"v_mfma_f32_32x32x16_bf16 {vr(vCS,16)}, {ar(aWQ+4*s2)}, {vr(vONE)}, {vr(vCS,16)}")
        if c == 1:
            sk = A.newlabel("nokvtr"); vt = A.newlabel("kvtrV")
            A(f"s_cmp_ge_u32 s{sCB}, 2")
            A(f"s_cbranch_scc1 {sk}")
            for j in range(16):
                A(f"ds_read_b64_tr_b16 {ar(aWKV+4*j, 2)}, v9 offset:{j*1024}")
                A(f"ds_read_b64_tr_b16 {ar(aWKV+4*j+2, 2)}, v9 offset:{j*1024+128}")
                if j % 4 == 3: A("s_waitcnt lgkmcnt(0)")
            A(f"s_cmp_eq_u32 s{sCB}, 0")
            A(f"s_cbranch_scc0 {vt}")
            for j in range(16):
                A(f"v_mfma_f32_16x16x32_bf16 {vr(vCKV)}, {ar(aWKV+4*j)}, {vr(vONE)}, {vr(vCKV) if j else 0}")
            A(f"s_branch {sk}")
            A.label(vt)
            for j in range(16):
                A(f"v_mfma_f32_16x16x32_bf16 {vr(vCKV)}, {vr(vONE)}, {ar(aWKV+4*j)}, {vr(vCKV) if j else 0}")
            A.label(sk)
    stamp("qkv_w")
    A(f"s_cmp_eq_u32 s{sLAYER}, 0")
    A("s_cbranch_scc1 L_QKV_X")
    sk = A.newlabel("s4")
    A(f"s_cmp_lg_u32 s{sW}, 0")
    A(f"s_cbranch_scc1 {sk}")
    A("v_and_b32 v5, 7, v0")
    A(f"s_lshl_b32 s{sT0}, s{sTB}, 3")
    A(f"v_add_u32 v5, s{sT0}, v5")
    A("v_lshlrev_b32 v5, 7, v5")
    A(f"v_add_u32 v5, {hex(L_FLAG + PH_FF2 * 256 * 128)}, v5")
    A(f"s_sub_u32 s{rL}, s{rL}, {hex(LSTRIDE)}")
    A(f"s_subb_u32 s{rL+1}, s{rL+1}, 0")
    poll(5, "s4")
    A(f"s_add_u32 s{rL}, s{rL}, {hex(LSTRIDE)}")
    A(f"s_addc_u32 s{rL+1}, s{rL+1}, 0")
    A.label(sk)
    A("s_barrier")
    A.vm = []
    issue_x_dma(True)
    A.label("L_QKV_X")
    stamp("qkv_xissued")
    A.vm = [f"x{j//4}" for j in range(16)]
    def x_reads(c):
        b = c % 2
        for s in range(8):
            A.ds(f"ds_read_b128 {vr(vXF[b]+4*s)}, v{vXE if s % 2 == 0 else vXO} offset:{(4*c + s//2)*4096}", f"xf{c}_{s}")
        for j in range(4):
            A.ds(f"ds_read_b128 {vr(vX16F[b]+4*j)}, v{vX16} offset:{(4*c+j)*4096}", f"xg{c}_{j}")
    def x_wait(c):
        n = A.vm_n(f"x{c}")
        sk = A.newlabel("xw")
        A(f"s_waitcnt vmcnt({n + NRAW})")
        A(f"s_cmp_eq_u32 s{sRST}, 1")
        A(f"s_cbranch_scc1 {sk}")
        A.wait_vm(f"x{c}")
        A.label(sk)
        A("s_barrier")
    def x_mfma(c):
        b = c % 2
        for s in range(8):
            k = 8 * c + s
            A.wait_lg(f"xf{c}_{s}")
            A(f"v_mfma_f32_32x32x16_bf16 {vr(vAQ,16)}, {ar(aWQ+4*k)}, {vr(vXF[b]+4*s)}, {vr(vAQ,16) if k else 0}")
        for j in range(4):
            k = 4 * c + j
            A.wait_lg(f"xg{c}_{j}")
            A(f"v_mfma_f32_16x16x32_bf16 {vr(vG)}, {vr(vX16F[b]+4*j)}, {vr(vX16F[b]+4*j)}, {vr(vG) if k else 0}")
            A(f"v_mfma_f32_16x16x32_bf16 {vr(vU)}, {vr(vONE)}, {vr(vX16F[b]+4*j)}, {vr(vU) if k else 0}")
        sk = A.newlabel("nokv"); vt = A.newlabel("kvV")
        A(f"s_cmp_ge_u32 s{sCB}, 2")
        A(f"s_cbranch_scc1 {sk}")
        A(f"s_cmp_eq_u32 s{sCB}, 0")
        A(f"s_cbranch_scc0 {vt}")
        for j in range(4):
            k = 4 * c + j
            A(f"v_mfma_f32_16x16x32_bf16 {vr(vAKV)}, {ar(aWKV+4*k)}, {vr(vX16F[b]+4*j)}, {vr(vAKV) if k else 0}")
        A(f"s_branch {sk}")
        A.label(vt)
        for j in range(4):
            k = 4 * c + j
            A(f"v_mfma_f32_16x16x32_bf16 {vr(vAKV)}, {vr(vX16F[b]+4*j)}, {ar(aWKV+4*k)}, {vr(vAKV) if k else 0}")
        A.label(sk)
    x_wait(0); x_reads(0)
    for c in range(4):
        if c < 3:
            x_wait(c + 1)
            A.wait_lg(f"xg{c}_3")
            x_reads(c + 1)
        x_mfma(c)
    stamp("qkv_mm")
    A("v_and_b32 v4, 63, v0")
    A("v_and_b32 v5, 3, v4")
    A("v_cmp_eq_u32 vcc, 1, v5")
    A(f"v_cmp_eq_u32 s[{sM0}:{sM0+1}], 2, v5")
    A(f"v_cmp_eq_u32 s[{sM1}:{sM1+1}], 3, v5")
    A("v_lshrrev_b32 v6, 4, v4")
    A("v_bfe_u32 v7, v4, 2, 2")
    A(f"v_cmp_eq_u32 s[{sM2}:{sM2+1}], v6, v7")
    A("v_and_b32 v7, 15, v4")
    A(f"s_lshl_b32 s{sT0}, s{sW}, 7")
    A(f"s_add_u32 s{sT0}, s{sT0}, {LDS_ST}")
    A(f"v_lshl_add_u32 v7, v7, 3, s{sT0}")
    A(f"s_mov_b32 s{sT1}, {hex(f32(1.0/512))}")
    A(f"v_cndmask_b32 v5, v{vG}, v{vG+1}, vcc")
    A(f"v_cndmask_b32 v5, v5, v{vG+2}, s[{sM0}:{sM0+1}]")
    A(f"v_cndmask_b32 v5, v5, v{vG+3}, s[{sM1}:{sM1+1}]")
    A(f"v_mul_f32 v10, s{sT1}, v{vU}")
    A(f"v_mul_f32 v5, s{sT1}, v5")
    A("v_fma_f32 v5, -v10, v10, v5")
    A("v_max_f32 v5, 0, v5")
    A(f"v_add_f32 v5, {hex(f32(1e-5))}, v5")
    A("v_rsq_f32 v11, v5")
    A(f"s_mov_b64 exec, s[{sM2}:{sM2+1}]")
    A.ds("ds_write_b64 v7, v[10:11]")
    A("s_mov_b64 exec, -1")
    A("v_and_b32 v5, 31, v4")
    A(f"s_lshr_b32 s{sT0}, s{sW}, 1")
    A(f"s_lshl_b32 s{sT1}, s{sT0}, 8")
    A(f"s_add_u32 s{sT1}, s{sT1}, {LDS_ST}")
    A(f"v_lshl_add_u32 v6, v5, 3, s{sT1}")
    A("v_lshrrev_b32 v7, 3, v5")
    A("v_lshlrev_b32 v7, 13, v7")
    A("v_and_b32 v5, 7, v4")
    A("v_lshl_add_u32 v7, v5, 4, v7")
    A("v_lshrrev_b32 v5, 5, v4")
    A("v_lshl_add_u32 v7, v5, 9, v7")
    A(f"s_lshl_b32 s{sT1}, s{sTB}, 16")
    A(f"s_lshl_b32 s{sT0}, s{sT0}, 15")
    A(f"s_add_u32 s{sT1}, s{sT1}, s{sT0}")
    A(f"s_lshl_b32 s{sT0}, s{sCB}, 10")
    A(f"s_add_u32 s{sT1}, s{sT1}, s{sT0}")
    A(f"s_and_b32 s{sT0}, s{sW}, 1")
    A(f"s_lshl_b32 s{sT0}, s{sT0}, 8")
    A(f"s_add_u32 s{sT1}, s{sT1}, s{sT0}")
    A.wait_lg()
    A("s_barrier")
    A.ds("ds_read_b64 v[10:11], v6")
    sk = A.newlabel("nokvep"); vt = A.newlabel("kvepV"); st = A.newlabel("kvst")
    A(f"s_cmp_ge_u32 s{sCB}, 2")
    A(f"s_cbranch_scc1 {sk}")
    A(f"s_lshl_b32 s{sT0}, s{sW}, 7")
    A(f"s_add_u32 s{sT0}, s{sT0}, {LDS_ST}")
    A("v_and_b32 v5, 15, v4")
    A("v_lshrrev_b32 v6, 4, v4")
    A(f"s_cmp_eq_u32 s{sCB}, 0")
    A(f"s_cbranch_scc0 {vt}")
    A(f"v_lshl_add_u32 v8, v5, 3, s{sT0}")
    A("ds_read_b64 v[72:73], v8")
    A("v_lshrrev_b32 v8, 1, v6")
    A("v_lshlrev_b32 v8, 9, v8")
    A("v_lshl_add_u32 v8, v5, 4, v8")
    A(f"s_lshl_b32 s{sT2}, s{sTB}, 11")
    A(f"s_lshr_b32 s{sT0}, s{sW}, 1")
    A(f"s_lshl_b32 s{sT0}, s{sT0}, 10")
    A(f"s_add_u32 s{sT2}, s{sT2}, s{sT0}")
    A(f"s_and_b32 s{sT0}, s{sW}, 1")
    A(f"s_lshl_b32 s{sT0}, s{sT0}, 8")
    A(f"s_add_u32 s{sT2}, s{sT2}, s{sT0}")
    A(f"s_add_u32 s{sT2}, s{sT2}, {hex(L_KV)}")
    A("s_waitcnt lgkmcnt(0)")
    for r in range(4):
        A(f"v_fma_f32 v{vAKV+r}, -v72, v{vCKV+r}, v{vAKV+r}")
    for r in range(4):
        A(f"v_mul_f32 v{vAKV+r}, v73, v{vAKV+r}")
    A(f"s_branch {st}")
    A.label(vt)
    A(f"v_lshl_add_u32 v8, v6, 5, s{sT0}")
    A("ds_read_b128 v[72:75], v8")
    A("ds_read_b128 v[76:79], v8 offset:16")
    A("v_lshrrev_b32 v8, 1, v6")
    A("v_lshlrev_b32 v8, 8, v8")
    A("v_lshl_add_u32 v8, v5, 4, v8")
    A(f"s_lshl_b32 s{sT2}, s{sTB}, 2")
    A(f"s_add_u32 s{sT2}, s{sT2}, s{sW}")
    A(f"s_lshl_b32 s{sT2}, s{sT2}, 9")
    A(f"s_add_u32 s{sT2}, s{sT2}, {hex(L_KV + 0x10000)}")
    A("s_waitcnt lgkmcnt(0)")
    for r in range(4):
        A(f"v_fma_f32 v{vAKV+r}, -v{72+2*r}, v{vCKV+r}, v{vAKV+r}")
    for r in range(4):
        A(f"v_mul_f32 v{vAKV+r}, v{73+2*r}, v{vAKV+r}")
    A.label(st)
    A(f"v_cvt_pk_bf16_f32 v72, v{vAKV}, v{vAKV+1}")
    A(f"v_cvt_pk_bf16_f32 v73, v{vAKV+2}, v{vAKV+3}")
    A("v_mov_b32 v74, v72")
    A("v_mov_b32 v75, v73")
    A("s_nop 1")
    A("v_permlane16_swap_b32 v72, v74")
    A("v_permlane16_swap_b32 v73, v75")
    A(f"s_mov_b32 s{sM0}, 0x0000ffff")
    A(f"s_mov_b32 s{sM0+1}, 0x0000ffff")
    A(f"s_mov_b64 exec, s[{sM0}:{sM0+1}]")
    A(f"buffer_store_dwordx4 v[72:75], v8, {srd(rL)}, s{sT2} offen sc1")
    A("s_mov_b64 exec, -1")
    A.label(sk)
    A.wait_lg()
    QS = 0.25 * math.log2(math.e)
    A(f"v_mul_f32 v11, {hex(f32(QS))}, v11")
    for r in range(16):
        A(f"v_fma_f32 v{vAQ+r}, -v10, v{vCS+r}, v{vAQ+r}")
    for r in range(16):
        A(f"v_mul_f32 v{vAQ+r}, v11, v{vAQ+r}")
        if r % 2 == 1:
            A(f"v_cvt_pk_bf16_f32 v{80+r//2}, v{vAQ+r-1}, v{vAQ+r}")
        if r == 7: A.vmem(f"buffer_store_dwordx4 v[80:83], v7, {srd(rL)}, s{sT1} offen sc1", "st")
    A.vmem(f"buffer_store_dwordx4 v[84:87], v7, {srd(rL)}, s{sT1} offen offset:128 sc1", "st")
    A.wait_vm()
    publish(PH_QKV, sG, "st")
    stamp("qkv_pub")
    A("v_lshlrev_b32 v4, 4, v0")
    A(f"v_add_u32 v4, {LDS_ONES}, v4")
    A.ds(f"ds_write_b128 v4, {vr(vONE)}")
    A.ds(f"ds_write_b128 v4, {vr(vONE)} offset:4096")
    A(f"s_cmp_eq_u32 s{sLAYER}, 0")
    A("s_cbranch_scc0 L_NORELAY")
    A(f"s_lshl_b32 s{sT0}, s{sW}, 13")
    A(f"v_add_u32 v4, s{sT0}, v{vL16}")
    for n in range(6):
        A(f"ds_write_b128 v4, {vr(vRAW+4*n)} offset:{n*1024}")
    A("v_and_b32 v5, 63, v0")
    A("v_bfe_u32 v6, v5, 2, 2")
    A("v_and_b32 v8, 1, v5")
    A("v_bfe_u32 v7, v5, 1, 1")
    A("v_lshl_add_u32 v8, v8, 1, v7")
    A(f"s_cmp_ge_u32 s{sWG}, 224")
    A("s_cbranch_scc1 L_RELAY_WO")
    A("v_lshrrev_b32 v7, 5, v5")
    A("v_lshl_add_u32 v6, v7, 3, v6")
    A("v_lshlrev_b32 v6, 7, v6")
    A("v_lshl_add_u32 v6, v8, 3, v6")
    A(f"v_add_u32 v6, s{sT0}, v6")
    A("v_bfe_u32 v7, v5, 4, 1")
    A("v_lshl_add_u32 v8, v7, 11, v6")
    A("v_lshl_add_u32 v9, v7, 5, v6")
    A("s_waitcnt lgkmcnt(0)")
    for q in range(4):
        A(f"ds_read_b64_tr_b16 {vr(128+4*q,2)}, v8 offset:{q*32}")
        A(f"ds_read_b64_tr_b16 {vr(130+4*q,2)}, v8 offset:{q*32+512}")
    for ct in range(2):
        A(f"ds_read_b64_tr_b16 {vr(144+4*ct,2)}, v9 offset:{4096+ct*64}")
        A(f"ds_read_b64_tr_b16 {vr(146+4*ct,2)}, v9 offset:{4096+ct*64+512}")
    A(f"s_lshr_b32 s{sT0}, s{sGW}, 5")
    A(f"s_lshl_b32 s{sT0}, s{sT0}, 17")
    A(f"s_and_b32 s{sT1}, s{sGW}, 31")
    A(f"s_lshl_b32 s{sT1}, s{sT1}, 10")
    A(f"s_add_u32 s{sT0}, s{sT0}, s{sT1}")
    A(f"s_add_u32 s{sT0}, s{sT0}, {hex(WS_WGUT)}")
    A(f"s_and_b32 s{sT1}, s{sGW}, 7")
    A(f"s_mul_i32 s{sT1}, s{sT1}, 112")
    A(f"s_lshr_b32 s{sT2}, s{sGW}, 3")
    A(f"s_add_u32 s{sT1}, s{sT1}, s{sT2}")
    A(f"s_lshl_b32 s{sT1}, s{sT1}, 11")
    A(f"s_add_u32 s{sT1}, s{sT1}, {hex(WS_WDT)}")
    A("s_waitcnt lgkmcnt(0)")
    for q in range(4):
        A(f"buffer_store_dwordx4 {vr(128+4*q)}, v{vL16}, {srd(rWS)}, s{sT0} offen sc1")
        A(f"s_add_u32 s{sT0}, s{sT0}, 32768")
    for ct in range(2):
        A(f"buffer_store_dwordx4 {vr(144+4*ct)}, v{vL16}, {srd(rWS)}, s{sT1} offen offset:{ct*1024} sc1")
    A("s_branch L_RELAY_PUB")
    A.label("L_RELAY_WO")
    A("v_lshrrev_b32 v7, 4, v5")
    A("v_lshl_add_u32 v6, v7, 3, v6")
    A("v_lshlrev_b32 v6, 7, v6")
    A("v_and_b32 v8, 3, v5")
    A("v_lshl_add_u32 v6, v8, 4, v6")
    A(f"v_add_u32 v6, s{sT0}, v6")
    A("s_waitcnt lgkmcnt(0)")
    for P in range(2):
        for b in range(2):
            q = 2 * P + b
            A(f"ds_read_b64_tr_b16 {vr(128+4*q,2)}, v6 offset:{P*64+b*8}")
            A(f"ds_read_b64_tr_b16 {vr(130+4*q,2)}, v6 offset:{P*64+b*8+512}")
    A(f"s_sub_u32 s{sT2}, s{sGW}, 896")
    A(f"s_lshr_b32 s{sT0}, s{sT2}, 3")
    A(f"s_lshl_b32 s{sT0}, s{sT0}, 13")
    A(f"s_bfe_u32 s{sT1}, s{sT2}, 0x20001")
    A(f"s_lshl_b32 s{sT1}, s{sT1}, 17")
    A(f"s_add_u32 s{sT0}, s{sT0}, s{sT1}")
    A(f"s_and_b32 s{sT1}, s{sT2}, 1")
    A(f"s_lshl_b32 s{sT1}, s{sT1}, 12")
    A(f"s_add_u32 s{sT0}, s{sT0}, s{sT1}")
    A(f"s_add_u32 s{sT0}, s{sT0}, {hex(WS_WOT)}")
    A("s_waitcnt lgkmcnt(0)")
    for q in range(4):
        A(f"buffer_store_dwordx4 {vr(128+4*q)}, v{vL16}, {srd(rWS)}, s{sT0} offen offset:{q*1024} sc1")
    A.label("L_RELAY_PUB")
    A("s_waitcnt vmcnt(0)")
    A("s_barrier")
    sk = A.newlabel("wpub")
    A(f"s_cmp_lg_u32 s{sW}, 0")
    A(f"s_cbranch_scc1 {sk}")
    A(f"s_lshl_b32 s{sT0}, s{sWG}, 4")
    A(f"s_add_u32 s{sT0}, s{sT0}, {WS_WFLAG}")
    A("v_mov_b32 v4, 0")
    A("s_mov_b64 exec, 1")
    A(f"buffer_store_dword v{vTAG}, v4, {srd(rWS)}, s{sT0} offen sc1")
    A("s_mov_b64 exec, -1")
    A.label(sk)
    A.label("L_NORELAY")
    stamp("relay")
    maybe_stop("qkv")

    S = [16, 32]; O = [48, 164]; Q = [64, 68]; KB = [72, 76]; V0 = [80, 84]; V1 = [88, 92]
    vIDX = 96; vVA = 97; vVINC = 98; vOXR = 99
    vPA = 100; vOF = [132, 136]; vZ = 140; vZR = 156; vOXW = 180; vWFL = 181; vRES = 182; vWOA = vL16
    sk = A.newlabel("s1"); w1 = A.newlabel("s1q"); go = A.newlabel("s1go")
    A(f"s_cmp_ge_u32 s{sW}, 2")
    A(f"s_cbranch_scc1 {sk}")
    A("v_and_b32 v4, 63, v0")
    A(f"s_cmp_eq_u32 s{sW}, 1")
    A(f"s_cbranch_scc1 {w1}")
    A("v_lshrrev_b32 v5, 1, v4")
    A("v_lshlrev_b32 v5, 3, v5")
    A("v_and_b32 v4, 1, v4")
    A("v_add_u32 v5, v5, v4")
    A(f"s_branch {go}")
    A.label(w1)
    A("v_and_b32 v5, 7, v4")
    A(f"s_lshl_b32 s{sT0}, s{sTB}, 3")
    A(f"v_add_u32 v5, s{sT0}, v5")
    A.label(go)
    A("v_lshlrev_b32 v5, 7, v5")
    A(f"v_add_u32 v5, {hex(L_FLAG + PH_QKV * 256 * 128)}, v5")
    poll(5, "s1")
    A.label(sk)
    A("s_waitcnt lgkmcnt(0)"); A.lg = []
    A("s_barrier")
    stamp("s1")
    A.vm = []
    chunks = [(0, 4), (4, 16), (16, 32), (32, 64)]
    def kv_dma_list(ci):
        t0, t1 = chunks[ci]
        n = (t1 - t0) // 4
        out = []
        for reg, base in ((0, 0), (1, 0x10000)):
            for u in range(n):
                out.append((ci, base + t0 * 1024, n, u))
        return out
    sKV = sT4
    def kv_dma(ent):
        ci, base, n, u = ent
        if u % 4 == 0:
            A(f"s_mul_i32 s{sT5}, s{sW}, {n*1024}")
            A(f"s_add_u32 s{sT5}, s{sT5}, {base + u*1024}")
            A(f"s_mov_b32 m0, s{sT5}")
            A(f"s_add_u32 s{sKV}, s{sT5}, {hex(L_KV)}")
        A.vmem(f"buffer_load_dwordx4 v{vL16}, {srd(rL)}, s{sKV} offen offset:{(u%4)*1024} sc1 lds", f"kv{ci}")
    A(f"s_lshl_b32 s{sT0}, s{sG}, 13")
    A(f"s_lshl_b32 s{sT1}, s{sW}, 10")
    A(f"s_add_u32 s{sT0}, s{sT0}, s{sT1}")
    A.vmem(f"buffer_load_dwordx4 {vr(Q[0])}, v{vL16}, {srd(rL)}, s{sT0} offen sc1", "q0")
    for e in kv_dma_list(0): kv_dma(e)
    for e in kv_dma_list(1): kv_dma(e)
    A(f"s_add_u32 s{sT0}, s{sT0}, 4096")
    A.vmem(f"buffer_load_dwordx4 {vr(Q[1])}, v{vL16}, {srd(rL)}, s{sT0} offen sc1", "q1")
    A("v_lshlrev_b32 v4, 4, v0")
    A(f"v_add_u32 v4, {WS_WFLAG}, v4")
    A.vmem(f"buffer_load_dword v{vWFL}, v4, {srd(rWS)}, 0 offen sc1", "wfl")
    A("v_and_b32 v4, 63, v0")
    A("v_and_b32 v5, 7, v4")
    A("v_bfe_u32 v6, v4, 3, 1")
    A("v_lshrrev_b32 v7, 4, v4")
    A("v_lshlrev_b32 v8, 12, v6")
    A("v_lshrrev_b32 v9, 1, v7")
    A("v_lshl_add_u32 v8, v9, 10, v8")
    A("v_and_b32 v9, 1, v7")
    A("v_lshl_add_u32 v8, v9, 9, v8")
    A("v_lshl_add_u32 v8, v5, 4, v8")
    A(f"s_lshr_b32 s{sT0}, s{sG}, 2")
    A(f"s_lshl_b32 s{sT0}, s{sT0}, 15")
    A(f"s_lshl_b32 s{sT1}, s{sW}, 13")
    A(f"s_add_u32 s{sT0}, s{sT0}, s{sT1}")
    A(f"s_and_b32 s{sT1}, s{sG}, 3")
    A(f"s_lshl_b32 s{sT1}, s{sT1}, 7")
    A(f"s_add_u32 s{sT0}, s{sT0}, s{sT1}")
    A(f"v_add_u32 v{vRES}, s{sT0}, v8")
    rm = A.newlabel("resrow"); rd = A.newlabel("resd")
    A(f"s_cmp_eq_u32 s{sLAYER}, 0")
    A(f"s_cbranch_scc1 {rm}")
    A.vmem(f"buffer_load_dwordx4 {vr(vZR)}, v{vRES}, {srd(rXIN)}, 0 offen sc1", "res")
    A.vmem(f"buffer_load_dwordx4 {vr(vZR+4)}, v{vRES}, {srd(rXIN)}, 0 offen offset:2048 sc1", "res")
    A(f"s_branch {rd}")
    A.label(rm)
    A("v_lshlrev_b32 v8, 10, v5")
    A("v_lshl_add_u32 v8, v6, 7, v8")
    A("v_lshl_add_u32 v8, v7, 4, v8")
    A(f"s_lshl_b32 s{sT0}, s{sG}, 13")
    A(f"s_lshl_b32 s{sT1}, s{sW}, 8")
    A(f"s_add_u32 s{sT0}, s{sT0}, s{sT1}")
    A(f"buffer_load_dwordx4 {vr(vZR)}, v8, {srd(rXIN)}, s{sT0} offen")
    A(f"buffer_load_dwordx4 {vr(vZR+4)}, v8, {srd(rXIN)}, s{sT0} offen offset:64")
    A.label(rd)
    A("v_and_b32 v5, 15, v4")
    A("v_lshrrev_b32 v6, 5, v4")
    A("v_lshlrev_b32 v5, 4, v5")
    A("v_lshl_add_u32 v5, v6, 8, v5")
    A("v_bfe_u32 v6, v4, 4, 1")
    A("v_cmp_eq_u32 vcc, 0, v6")
    A(f"v_mov_b32 v7, {LDS_ONES}")
    A(f"v_mov_b32 v8, {LDS_V}")
    A("v_cndmask_b32 v7, v7, v8, vcc")
    A(f"v_add_u32 v{vVA}, v5, v7")
    A("v_mov_b32 v7, 0")
    A("v_mov_b32 v8, 0x2000")
    A(f"v_cndmask_b32 v{vVINC}, v7, v8, vcc")
    A(f"v_mov_b32 v{vIDX}, 0xdddd")
    A("v_bfe_u32 v5, v4, 4, 1")
    A("v_lshlrev_b32 v5, 9, v5")
    A("v_bfe_u32 v6, v4, 3, 1")
    A("v_lshl_add_u32 v5, v6, 8, v5")
    A("v_lshrrev_b32 v6, 5, v4")
    A("v_lshl_add_u32 v5, v6, 7, v5")
    A("v_and_b32 v6, 7, v4")
    A("v_lshl_add_u32 v5, v6, 4, v5")
    A(f"s_lshl_b32 s{sT0}, s{sW}, 10")
    A(f"s_add_u32 s{sT0}, s{sT0}, {LDS_OX}")
    A(f"v_add_u32 v{vOXW}, s{sT0}, v5")
    A("v_lshrrev_b32 v5, 4, v4")
    A("v_lshlrev_b32 v5, 7, v5")
    A("v_lshl_add_u32 v5, v6, 4, v5")
    A(f"v_add_u32 v{vOXR}, {LDS_OX}, v5")
    for r in range(16):
        A(f"v_mov_b32 v{O[0]+r}, 0")
        A(f"v_mov_b32 v{O[1]+r}, 0")
    sWO = sT3
    def wo_base(part):
        A(f"s_lshl_b32 s{sWO}, s{sW}, 17")
        A(f"s_add_u32 s{sWO}, s{sWO}, {hex(WS_WOT + part * 0x10000)}")
    def wo_load(f, part):
        if f % 4 == 0 and f: A(f"s_add_u32 s{sWO}, s{sWO}, 4096")
        A.vmem(f"buffer_load_dwordx4 {ar(4*f)}, v{vL16}, {srd(rWS)}, s{sWO} offen offset:{(f%4)*1024} sc1", f"wo{part}")
    A.wait_vm("kv0")
    A("s_barrier")
    stamp("att_kv0")
    def rdK(n): A.ds(f"ds_read_b128 {vr(KB[n%2])}, v{vL16} offset:{(n%64)*1024}", f"K{n}")
    def rdV(n):
        A.ds(f"ds_read_b128 {vr(V0[n%2])}, v{vVA} offset:{(n%8)*1024}", f"V{n}")
        A.ds(f"ds_read_b128 {vr(V1[n%2])}, v{vVA} offset:{(n%8)*1024+512}", f"V{n}")
    def qk(n): A(f"v_mfma_f32_32x32x16_bf16 {vr(S[n%2],16)}, {vr(KB[n%2])}, {vr(Q[n//64])}, 0")
    rdK(0); rdK(1); rdV(0)
    A.wait_lg("K0")
    qk(0)
    A("s_nop 7"); A("s_nop 3")

    def finalize_O(p):
        o = O[p]
        fb = f"L_FB{p}"; bk = f"L_FBR{p}"
        L = []
        L.append(lambda: A(f"v_add_u32 v4, {hex((0x100000000 - 0x21800000) & 0xffffffff)}, v{o+8}"))
        L.append(lambda: A(f"v_cmp_lt_u32 vcc, 0x3c000000, v4"))
        L.append(lambda: (A(f"s_cbranch_vccnz {fb}"), A.label(bk), A(f"v_rcp_f32 v4, v{o+8}")))
        L.append(lambda: A("v_nop"))
        for r in range(8):
            L.append(lambda r=r: A(f"v_mul_f32 v{o+r}, v4, v{o+r}"))
        for r in range(4):
            L.append(lambda r=r: A(f"v_cvt_pk_bf16_f32 v{8+r}, v{o+2*r}, v{o+2*r+1}"))
        L.append(lambda: A.ds(f"ds_write_b128 v{vOXW}, v[8:11] offset:{p*4096}", "oxw"))
        return L
    def oproj_mfma(f, part):
        jl, ctl = f // 8, f % 8
        Pp, b = ctl // 2, ctl % 2
        c = vr(vPA + 4 * ctl)
        if part == 0 and jl == 0: c = vr(vZ + 8 * (Pp % 2) + 4 * b)
        A.wait_lg(f"of{part}_{jl}")
        A(f"v_mfma_f32_16x16x32_bf16 {vr(vPA+4*ctl)}, {ar(4*f)}, {vr(vOF[jl%2])}, {c}")
    def of_read(part, jl): A.ds(f"ds_read_b128 {vr(vOF[jl%2])}, v{vOXR} offset:{part*4096 + jl*512}", f"of{part}_{jl}")

    postqk = {n: [] for n in range(128)}
    valu = {n: [] for n in range(128)}
    m16 = {n: [] for n in range(128)}
    pre_reads = {n: [] for n in range(128)}
    dl = kv_dma_list(2) + kv_dma_list(3)
    for k, e in enumerate(dl):
        postqk[k // 2].append(lambda e=e: kv_dma(e))
    def bar(tags):
        def f():
            A.wait_vm(tags); A("s_barrier")
        return f
    for ci in (1, 2, 3):
        pre_reads[chunks[ci][0] - 2].append(bar(f"kv{ci}"))
    def wcheck():
        ok = A.newlabel("wok")
        A.wait_vm("wfl")
        A(f"v_cmp_ne_u32 vcc, v{vWFL}, v{vTAG}")
        A(f"s_cbranch_vccz {ok}")
        lp = A.newlabel("wpoll")
        A("v_lshlrev_b32 v5, 4, v0")
        A(f"v_add_u32 v5, {WS_WFLAG}, v5")
        A(f"s_mov_b32 s{sCNT}, {cfg.spin_limit}")
        A.label(lp)
        A(f"buffer_load_dword v4, v5, {srd(rWS)}, 0 offen sc1")
        A("s_waitcnt vmcnt(0)")
        A(f"v_cmp_ne_u32 vcc, v4, v{vTAG}")
        A(f"s_cbranch_vccz {ok}")
        A(f"s_sub_u32 s{sCNT}, s{sCNT}, 1")
        A(f"s_cmp_lg_u32 s{sCNT}, 0")
        A(f"s_cbranch_scc1 {lp}")
        A("s_branch L_TIMEOUT")
        A.label(ok)
    pre_reads[14].insert(0, wcheck)
    postqk[16].append(lambda: wo_base(0))
    for f in range(64):
        postqk[16 + f // 2].append(lambda f=f: wo_load(f, 0))
    def unpack(dst, src, k):
        if k % 2 == 0: A(f"v_lshlrev_b32 v{dst+k}, 16, v{src+k//2}")
        else: A(f"v_and_b32 v{dst+k}, 0xffff0000, v{src+k//2}")
    for k in range(16):
        valu[50 + k // 4].append(lambda k=k: unpack(vZ, vZR, k))
    fin0 = finalize_O(0)
    for k, th in enumerate(fin0[:-1]):
        valu[65 if k < 9 else 66].append(th)
    postqk[67].append(fin0[-1])
    def ox_bar():
        A.wait_lg("oxw"); A.wait_vm("wo0"); A("s_barrier")
    pre_reads[68].append(ox_bar)
    postqk[68].append(lambda: of_read(0, 0))
    postqk[69].append(lambda: wo_base(1))
    for f in range(64):
        n = 69 + f // 2
        m16[n].append(lambda f=f: oproj_mfma(f, 0))
        postqk[n + 1].append(lambda f=f: wo_load(f, 1))
        if f % 8 == 0 and f // 8 + 1 < 8:
            postqk[n + 1].append(lambda f=f: of_read(0, f // 8 + 1))
    for n in range(128):
        cur, nxt = S[n % 2], S[(n + 1) % 2]
        e = lambda i: A(f"v_exp_f32 v{cur+i}, v{cur+i}")
        e(0); e(1); e(2)
        if n > 0:
            A(f"v_smfmac_f32_32x32x32_bf16 {vr(O[(n-1)//64],16)}, {vr(V1[(n-1)%2])}, {vr(nxt+8,8)}, v{vIDX}")
        A.wait_lg([f"K{n+1}", f"V{n}"])
        e(3); e(4); e(5)
        if n < 127:
            if n + 1 == 64: A.wait_vm("q1")
            qk(n + 1)
        for th in pre_reads[n]: th()
        if n % 8 == 7 and n < 127:
            if n == 63: A(f"v_mad_u32_u24 v{vVA}, v{vVINC}, -7, v{vVA}") if False else (A(f"v_mul_u32_u24 v4, 7, v{vVINC}"), A(f"v_sub_u32 v{vVA}, v{vVA}, v4"))
            else: A(f"v_add_u32 v{vVA}, v{vVA}, v{vVINC}")
        if n + 2 < 128: rdK(n + 2)
        if n + 1 < 128: rdV(n + 1)
        for th in postqk[n]: th()
        e(6); e(7); e(8)
        if len(m16[n]) > 0: m16[n][0]()
        e(9); e(10)
        A(f"v_smfmac_f32_32x32x32_bf16 {vr(O[n//64],16)}, {vr(V0[n%2])}, {vr(cur,8)}, v{vIDX}")
        e(11); e(12)
        for th in valu[n]: th()
        e(13)
        if len(m16[n]) > 1: m16[n][1]()
        e(14); e(15)
    A("s_nop 1")
    A(f"v_smfmac_f32_32x32x32_bf16 {vr(O[1],16)}, {vr(V1[1])}, {vr(S[1]+8,8)}, v{vIDX}")
    stamp("att_main")
    for th in finalize_O(1): th()
    A.wait_lg()
    A.wait_vm("wo1")
    A("s_barrier")
    sGU = sT4
    def gu_dma(tile, slot, u):
        if u == 0:
            A(f"s_mul_i32 s{sGU}, s{sSL}, {7*32768}")
            A(f"s_lshl_b32 s{sT5}, s{sW}, 13")
            A(f"s_add_u32 s{sGU}, s{sGU}, s{sT5}")
            A(f"s_add_u32 s{sGU}, s{sGU}, {hex(WS_WGUT + tile*32768)}")
            A(f"s_add_u32 s{sT5}, s{sT5}, {slot*32768}")
            A(f"s_mov_b32 m0, s{sT5}")
            A("s_nop 0")
        if u == 4:
            A(f"s_add_u32 s{sT5}, s{sT5}, 4096")
            A(f"s_add_u32 s{sGU}, s{sGU}, 4096")
            A(f"s_mov_b32 m0, s{sT5}")
            A("s_nop 0")
        A.vmem(f"buffer_load_dwordx4 v{vL16}, {srd(rWS)}, s{sGU} offen offset:{(u%4)*1024} sc1 lds", f"gu{tile}")
    gul = [(t, t, u) for t in range(4) for u in range(8)]
    of_read(1, 0); of_read(1, 1)
    for f in range(64):
        oproj_mfma(f, 1)
        if f % 8 == 7 and f // 8 + 2 < 8: of_read(1, f // 8 + 2)
        if f % 4 == 1: gu_dma(*gul.pop(0))
    stamp("att_oproj")
    vY = 16
    A("v_and_b32 v4, 63, v0")
    A("v_bfe_u32 v5, v4, 3, 1")
    A("v_cmp_eq_u32 vcc, 0, v5")
    A("v_and_b32 v6, 7, v4")
    A(f"s_lshl_b32 s{sT0}, s{sW}, 3")
    A(f"s_add_u32 s{sT0}, s{sT0}, {LDS_LNX}")
    A(f"v_lshl_add_u32 v7, v6, 5, s{sT0}")
    A(f"v_lshlrev_b32 v6, 5, v6")
    A(f"v_add_u32 v6, {LDS_LNX}, v6")
    for k in range(16):
        A(f"v_cndmask_b32 v{vY+k}, v{vPA+16+k}, v{vPA+k}, vcc")
    A(f"v_add_f32 v8, v{vY}, v{vY+1}")
    A(f"v_mul_f32 v9, v{vY}, v{vY}")
    A(f"v_fmac_f32 v9, v{vY+1}, v{vY+1}")
    for k in range(2, 16):
        A(f"v_add_f32 v8, v8, v{vY+k}")
        A(f"v_fmac_f32 v9, v{vY+k}, v{vY+k}")
    for k in range(8):
        A(f"v_cvt_pk_bf16_f32 v{vY+16+k}, v{vY+2*k}, v{vY+2*k+1}")
    A(f"v_add_f32_dpp v8, v8, v8 row_ror:8 row_mask:0xf bank_mask:0xf")
    A(f"v_add_f32_dpp v9, v9, v9 row_ror:8 row_mask:0xf bank_mask:0xf")
    A(f"s_mov_b32 s{sT1}, {hex(L_X1)}")
    A.vmem(f"buffer_store_dwordx4 {vr(vY+16)}, v{vRES}, {srd(rL)}, s{sT1} offen sc1", "st")
    A.vmem(f"buffer_store_dwordx4 {vr(vY+20)}, v{vRES}, {srd(rL)}, s{sT1} offen offset:2048 sc1", "st")
    for sw in ("v_permlane16_swap_b32", "v_permlane32_swap_b32"):
        A("v_mov_b32 v10, v8")
        A("v_mov_b32 v11, v9")
        A("s_nop 1")
        A(f"{sw} v8, v10")
        A(f"{sw} v9, v11")
        A("v_add_f32 v8, v8, v10")
        A("v_add_f32 v9, v9, v11")
    A("s_mov_b64 exec, 0xff")
    A.ds("ds_write_b64 v7, v[8:9]")
    A("s_mov_b64 exec, -1")
    A.wait_lg()
    A("s_barrier")
    A.ds("ds_read_b128 v[40:43], v6")
    A.ds("ds_read_b128 v[44:47], v6 offset:16")
    A(f"s_mov_b32 s{sT1}, {hex(f32(1.0/512))}")
    A.wait_lg()
    A("v_add_f32 v8, v40, v42")
    A("v_add_f32 v9, v41, v43")
    A("v_add_f32 v10, v44, v46")
    A("v_add_f32 v11, v45, v47")
    A("v_add_f32 v8, v8, v10")
    A("v_add_f32 v9, v9, v11")
    A(f"v_mul_f32 v8, s{sT1}, v8")
    A(f"v_mul_f32 v9, s{sT1}, v9")
    A("v_fma_f32 v9, -v8, v8, v9")
    A("v_max_f32 v9, 0, v9")
    A(f"v_add_f32 v9, {hex(f32(1e-5))}, v9")
    A("v_rsq_f32 v9, v9")
    A("s_nop 0")
    A("v_mul_f32 v8, v8, v9")
    A(f"s_mov_b32 s{sT1}, {hex(L_XN1)}")
    for k in range(16):
        A(f"v_fma_f32 v{vY+k}, v{vY+k}, v9, -v8")
        if k % 2 == 1: A(f"v_cvt_pk_bf16_f32 v{40+k//2}, v{vY+k-1}, v{vY+k}")
        if k == 7: A.vmem(f"buffer_store_dwordx4 v[40:43], v{vRES}, {srd(rL)}, s{sT1} offen sc1", "st")
    A.vmem(f"buffer_store_dwordx4 v[44:47], v{vRES}, {srd(rL)}, s{sT1} offen offset:2048 sc1", "st")
    while gul: gu_dma(*gul.pop(0))
    publish(PH_ATT, sG, "st")
    stamp("att_pub")
    for u in range(8): gu_dma(4, 4, u)
    wdl = list(range(56))
    def wd_load():
        f = wdl.pop(0)
        if f == 0:
            A(f"s_lshl_b32 s{sWDO}, s{sCB}, 2")
            A(f"s_add_u32 s{sWDO}, s{sWDO}, s{sW}")
            A(f"s_mul_i32 s{sWDO}, s{sWDO}, {56*1024}")
            A(f"s_add_u32 s{sWDO}, s{sWDO}, {hex(WS_WDT)}")
        elif f % 4 == 0: A(f"s_add_u32 s{sWDO}, s{sWDO}, 4096")
        A.vmem(f"buffer_load_dwordx4 {ar(4*f)}, v{vL16}, {srd(rWS)}, s{sWDO} offen offset:{(f%4)*1024} sc1", "wd")
    for _ in range(cfg.wd_s2): wd_load()
    maybe_stop("att")

    vTK = 128; ACC = [16, 32, 48, 64]; vWB = 80; NWB = 6; vHP = 104; vX1R = 112; vHA = 120
    vSB = [121, 122, 123]
    A("v_and_b32 v5, 3, v0")
    A(f"s_lshl_b32 s{sT0}, s{sBLK}, 2")
    A(f"s_add_u32 s{sT0}, s{sT0}, s{sW}")
    A(f"s_lshl_b32 s{sT1}, s{sT0}, 2")
    A(f"v_add_u32 v5, s{sT1}, v5")
    A("v_lshlrev_b32 v5, 7, v5")
    A(f"v_add_u32 v5, {hex(L_FLAG + PH_ATT * 256 * 128)}, v5")
    A(f"v_mov_b32 v{vSB[0]}, v{vL16}")
    A(f"v_add_u32 v{vSB[1]}, 0x10000, v{vL16}")
    A(f"v_add_u32 v{vSB[2]}, 0x20000, v{vL16}")
    A(f"s_mul_i32 s{sT2}, s{sT0}, 112")
    A(f"s_mul_i32 s{sT1}, s{sSL}, 7")
    A(f"s_add_u32 s{sT2}, s{sT2}, s{sT1}")
    A(f"s_lshl_b32 s{sT2}, s{sT2}, 10")
    A(f"s_add_u32 s{sT2}, s{sT2}, {hex(L_H)}")
    A(f"v_add_u32 v{vHA}, s{sT2}, v{vL16}")
    A(f"s_lshl_b32 s{sT0}, s{sT0}, 15")
    A(f"s_add_u32 s{sT0}, s{sT0}, {hex(L_XN1)}")
    poll(5, "s2")
    stamp("s2")
    for s in range(32):
        if s % 4 == 0 and s: A(f"s_add_u32 s{sT0}, s{sT0}, 4096")
        A.vmem(f"buffer_load_dwordx4 {vr(vTK+4*s)}, v{vL16}, {srd(rL)}, s{sT0} offen offset:{(s%4)*1024} sc1", f"tk{s}")
    A("s_barrier")
    seq = [(j, s) for s in range(32) for j in range(3)] + [(j, s) for j in range(3, 7) for s in range(32)]
    slot_of = {0: 0, 1: 1, 2: 2, 3: 3, 4: 4, 5: 0, 6: 1}
    acc_of = {0: 0, 1: 1, 2: 2, 3: 3, 4: 0, 5: 1, 6: 2}
    def w_read(k):
        j, s = seq[k]
        off = slot_of[j] * 32768 + s * 1024
        A.ds(f"ds_read_b128 {vr(vWB+4*(k%NWB))}, v{vSB[off>>16]} offset:{off & 0xffff}", f"wb{k}")
    def h_epi(j):
        a = ACC[acc_of[j]]
        L = []
        for r in range(8):
            L.append(lambda r=r: A(f"v_max_f32 v{a+r}, 0, v{a+r}"))
            L.append(lambda r=r: A(f"v_mul_f32 v{a+r}, v{a+r}, v{a+8+r}"))
            if r % 2 == 1: L.append(lambda r=r: A(f"v_cvt_pk_bf16_f32 v{vHP+4*(j%2)+r//2}, v{a+r-1}, v{a+r}"))
        L.append(lambda: A.vmem(f"buffer_store_dwordx4 {vr(vHP+4*(j%2))}, v{vHA}, {srd(rL)}, s{sT1} offen offset:{(j%4)*1024} sc1", "hst"))
        return L
    extras = {k: [] for k in range(len(seq))}
    LOOK = NWB - 1
    k3 = 96
    ep = h_epi(0) + h_epi(1) + h_epi(2)
    for n, th in enumerate(ep): extras[k3 + 2 + n // 3].append(th)
    for j in (3, 4, 5):
        for n, th in enumerate(h_epi(j)): extras[k3 + 32 * (j - 2) + 2 + n // 2].append(th)
    g56 = [(5, 0, u) for u in range(8)] + [(6, 1, u) for u in range(8)]
    for n, e in enumerate(g56): extras[k3 + 1 + 2 * n].append(lambda e=e: gu_dma(*e))
    nwd = cfg.wd_ffn1
    for n in range(nwd): extras[k3 + 36 + (n * (128 - 40)) // nwd].append(wd_load)
    def x1_load():
        A(f"s_lshl_b32 s{sT0}, s{sTB}, 6")
        A(f"s_lshl_b32 s{sT2}, s{sCB}, 2")
        A(f"s_add_u32 s{sT0}, s{sT0}, s{sT2}")
        A(f"s_and_b32 s{sT2}, s{sW}, 1")
        A(f"s_lshl_b32 s{sT2}, s{sT2}, 1")
        A(f"s_add_u32 s{sT0}, s{sT0}, s{sT2}")
        A(f"s_lshr_b32 s{sT2}, s{sW}, 1")
        A(f"s_add_u32 s{sT0}, s{sT0}, s{sT2}")
        A(f"s_lshl_b32 s{sT0}, s{sT0}, 10")
        A(f"s_add_u32 s{sT0}, s{sT0}, {hex(L_X1)}")
        A.vmem(f"buffer_load_dwordx4 {vr(vX1R)}, v{vL16}, {srd(rL)}, s{sT0} offen sc1", "x1")
        A(f"s_add_u32 s{sT0}, s{sT0}, 32768")
        A.vmem(f"buffer_load_dwordx4 {vr(vX1R+4)}, v{vL16}, {srd(rL)}, s{sT0} offen sc1", "x1")
    extras[k3 + 34].append(x1_load)
    A(f"s_mov_b32 s{sT1}, 0")
    for k in range(LOOK): w_read(k)
    for k, (j, s) in enumerate(seq):
        if k == k3 - LOOK + 0: pass
        if k < k3 and j == 0: A.wait_vm(f"tk{s}")
        A.wait_lg(f"wb{k}")
        a = ACC[acc_of[j]]
        A(f"v_mfma_f32_32x32x16_bf16 {vr(a,16)}, {vr(vWB+4*(k%NWB))}, {vr(vTK+4*s)}, {vr(a,16) if s else 0}")
        if k == k3:
            A("s_barrier")
        kn = k + LOOK
        if kn < len(seq):
            if kn == k3 + 64:
                A.wait_vm(["gu5", "gu6"]); A("s_barrier")
            w_read(kn)
        if k == k3 + 32 + 30: A(f"s_mov_b32 s{sT1}, 4096")
        for th in extras[k]: th()
    for th in h_epi(6): th()
    while wdl and len(wdl) > 0: wd_load()
    stamp("ffn1_mm")
    publish(PH_FF1, sID1, "hst")
    stamp("ffn1_pub")
    maybe_stop("ffn1")

    AC = [[16, 32], [48, 64]]; vHR = 128; NHR = 26; vRT = 232; vOA = 80; vRW = 81; vRR = 82
    A.wait_vm("x1")
    for r in range(64): A(f"v_mov_b32 v{16+r}, 0")
    for wv in range(4):
        sk = A.newlabel("ini")
        A(f"s_cmp_lg_u32 s{sW}, {wv}")
        A(f"s_cbranch_scc1 {sk}")
        for tt in range(2):
            d = AC[tt][wv % 2] + 8 * (wv // 2)
            for k in range(8): unpack(d, vX1R + 4 * tt, k)
        A.label(sk)
    A("v_and_b32 v5, 3, v0")
    A(f"s_lshr_b32 s{sT0}, s{sTB}, 1")
    A(f"s_lshl_b32 s{sT0}, s{sT0}, 2")
    A(f"s_add_u32 s{sT0}, s{sT0}, s{sW}")
    A(f"s_lshl_b32 s{sT0}, s{sT0}, 2")
    A(f"v_add_u32 v5, s{sT0}, v5")
    A("v_lshlrev_b32 v5, 7, v5")
    A(f"v_add_u32 v5, {hex(L_FLAG + PH_FF1 * 256 * 128)}, v5")
    A(f"s_lshl_b32 s{sT0}, s{sW}, 11")
    A(f"v_add_u32 v{vRW}, s{sT0}, v{vL16}")
    A(f"s_lshl_b32 s{sT0}, s{sW}, 13")
    A(f"v_add_u32 v{vRR}, s{sT0}, v{vL16}")
    lo = A.newlabel("outrow"); ld = A.newlabel("outd")
    A(f"s_and_b32 s{sT1}, s{sW}, 1")
    A(f"s_lshl_b32 s{sT1}, s{sT1}, 1")
    A(f"s_lshr_b32 s{sT2}, s{sW}, 1")
    A(f"s_add_u32 s{sT1}, s{sT1}, s{sT2}")
    A(f"s_lshl_b32 s{sT2}, s{sCB}, 2")
    A(f"s_add_u32 s{sT1}, s{sT1}, s{sT2}")
    A(f"s_lshl_b32 s{sT0}, s{sTB}, 16")
    A(f"s_cmp_eq_u32 s{sLAYER}, 0")
    A(f"s_cbranch_scc0 {lo}")
    A(f"s_lshl_b32 s{sT1}, s{sT1}, 10")
    A(f"s_add_u32 s{sT0}, s{sT0}, s{sT1}")
    A(f"v_add_u32 v{vOA}, s{sT0}, v{vL16}")
    A(f"s_branch {ld}")
    A.label(lo)
    A(f"s_lshl_b32 s{sT1}, s{sT1}, 5")
    A(f"s_add_u32 s{sT0}, s{sT0}, s{sT1}")
    A("v_and_b32 v6, 31, v0")
    A("v_bfe_u32 v7, v0, 5, 1")
    A("v_lshlrev_b32 v6, 10, v6")
    A("v_lshl_add_u32 v6, v7, 4, v6")
    A(f"v_add_u32 v{vOA}, s{sT0}, v6")
    A.label(ld)
    A(f"s_mul_i32 s{sT0}, s{sTB}, 224")
    A(f"s_mul_i32 s{sT1}, s{sW}, 28")
    A(f"s_add_u32 s{sT0}, s{sT0}, s{sT1}")
    A(f"s_lshl_b32 s{sT0}, s{sT0}, 10")
    A(f"s_add_u32 s{sT0}, s{sT0}, {hex(L_H)}")
    poll(5, "s3")
    stamp("s3")
    def h_load(n):
        tt, k = n // 28, n % 28
        if n == 28: A(f"s_add_u32 s{sT0}, s{sT0}, {112*1024 - 24*1024}")
        elif k % 4 == 0 and n: A(f"s_add_u32 s{sT0}, s{sT0}, 4096")
        A.vmem(f"buffer_load_dwordx4 {vr(vHR+4*(n%NHR))}, v{vL16}, {srd(rL)}, s{sT0} offen offset:{(k%4)*1024} sc1", f"h{n}")
    for n in range(NHR): h_load(n)
    def red_write(tt):
        L = []
        for own in range(4):
            a = AC[tt][own % 2] + 8 * (own // 2)
            for h in range(2):
                L.append(lambda a=a, own=own, h=h: A.ds(f"ds_write_b128 v{vRW}, {vr(a+4*h)} offset:{tt*32768 + own*8192 + h*1024}", f"rw{tt}"))
        return L
    def red_final(tt):
        L = []
        for src in range(4):
            for h in range(2):
                d = (vRT + 8 * src + 4 * h) if src < 3 else (84 + 4 * h)
                L.append(lambda src=src, h=h, d=d: A.ds(f"ds_read_b128 {vr(d)}, v{vRR} offset:{tt*32768 + src*2048 + h*1024}", f"rr{tt}"))
        L.append(lambda: A.wait_lg(f"rr{tt}"))
        for r in range(8):
            L.append(lambda r=r: A(f"v_add_f32 v{vRT+r}, v{vRT+r}, v{vRT+8+r}"))
            L.append(lambda r=r: A(f"v_add_f32 v{84+r}, v{84+r}, v{vRT+16+r}"))
        for r in range(8):
            L.append(lambda r=r: A(f"v_add_f32 v{vRT+r}, v{vRT+r}, v{84+r}"))
            if r % 2 == 1: L.append(lambda r=r: A(f"v_cvt_pk_bf16_f32 v{92+4*tt+r//2}, v{vRT+r-1}, v{vRT+r}"))
        L.append(lambda: (A(f"s_mov_b32 s{sT2}, {tt*32768}"), A.vmem(f"buffer_store_dwordx4 {vr(92+4*tt)}, v{vOA}, {srd(rOUT)}, s{sT2} offen sc1", "ost")))
        return L
    ex2 = {n: [] for n in range(56)}
    for i_, th in enumerate(red_write(0)): ex2[28 + 2 + i_ // 2].append(th)
    def rbar():
        A.wait_lg("rw0"); A("s_barrier")
    ex2[28 + 9].append(rbar)
    for i_, th in enumerate(red_final(0)): ex2[28 + 9 + min(i_ // 4, 16)].append(th)
    for n in range(56):
        tt, k = n // 28, n % 28
        A.wait_vm(f"h{n}")
        for ct in range(2):
            A(f"v_mfma_f32_32x32x16_bf16 {vr(AC[tt][ct],16)}, {ar(4*(2*k+ct))}, {vr(vHR+4*(n%NHR))}, {vr(AC[tt][ct],16)}")
        if n + NHR < 56: h_load(n + NHR)
        for th in ex2[n]: th()
        if n == 56 - NHR + 1:
            issue_w_dma()
    stamp("ffn2_mm")
    for th in red_write(1): th()
    A.wait_lg()
    A("s_barrier")
    for th in red_final(1): th()
    A(f"s_cmp_eq_u32 s{sLAYER}, 0")
    A("s_cbranch_scc0 L_FINISH")
    A.wait_vm()
    publish(PH_FF2, sG, "ost")
    stamp("ffn2_pub")
    maybe_stop("ffn2")
    A(f"s_mov_b32 s{sLAYER}, 1")
    A(f"s_add_u32 s{rL}, s{rL}, {hex(LSTRIDE)}")
    A(f"s_addc_u32 s{rL+1}, s{rL+1}, 0")
    A(f"s_mov_b32 s{rXIN}, s{rOUT}")
    A(f"s_mov_b32 s{rXIN+1}, s{rOUT+1}")
    A(f"s_mov_b32 s{rOUT}, s{P_OUT}")
    A(f"s_mov_b32 s{rOUT+1}, s{P_OUT+1}")
    A(f"s_mov_b32 s{sXST}, 2048")
    A(f"s_lshl_b32 s{sT0}, s{sTB}, 16")
    A(f"s_lshr_b32 s{sT1}, s{sW}, 1")
    A(f"s_lshl_b32 s{sT1}, s{sT1}, 15")
    A(f"s_add_u32 s{sT0}, s{sT0}, s{sT1}")
    A(f"s_and_b32 s{sT1}, s{sW}, 1")
    A(f"s_lshl_b32 s{sT1}, s{sT1}, 10")
    A(f"s_add_u32 s{sT0}, s{sT0}, s{sT1}")
    A(f"v_add_u32 v{vXS}, s{sT0}, v{vL16}")
    x_read_addrs(False)
    A("s_branch L_LAYER")

    A.label("L_FINISH")
    stamp("finish")
    if cfg.prof:
        A(f"s_lshl_b32 s{sT0}, s{sGW}, 8")
        A(f"s_add_u32 s{sT0}, s{sT0}, {hex(WS_PROF)}")
        A(f"v_lshrrev_b32 v4, 2, v{vL16}")
        A(f"buffer_store_dword v{vPROF}, v4, {srd(rWS)}, s{sT0} offen")
    A(f"s_cmp_lg_u32 s{sGW}, 0")
    A("s_cbranch_scc1 L_END")
    if cfg.dbg:
        sel = cfg.dbg
        A(f"v_readlane_b32 s{sT1}, v{vPROF}, 0")
        A("v_mov_b32 v5, 0")
        for n, j in enumerate(sel):
            A(f"v_readlane_b32 s{sT0}, v{vPROF}, {j}")
            A("s_nop 3")
            A(f"s_sub_u32 s{sT0}, s{sT0}, s{sT1}")
            A(f"v_writelane_b32 v5, s{sT0}, {n}")
        mk_srd(rR0, P_DBG, 256)
        A(f"v_lshrrev_b32 v4, 2, v{vL16}")
        A(f"buffer_store_dword v5, v4, {srd(rR0)}, 0 offen")
    if not cfg.stop:
        A("v_mov_b32 v4, 0")
        A("s_mov_b64 exec, 1")
        A(f"buffer_store_dword v{vTAG}, v4, {srd(rWS)}, 0 offen")
    A.label("L_END")
    A("s_endpgm")
    A.label("L_TIMEOUT")
    A("s_endpgm")

    for p in range(2):
        o = O[p]; q = Q[p]
        fS, fN, fK, fV0, fV1, fM, fA, fB = 192, 208, 224, 228, 232, 236, 237, 238
        A.label(f"L_FB{p}")
        A("s_waitcnt lgkmcnt(0)")
        A(f"v_mov_b32 v{fM}, 0xff800000")
        A(f"v_mov_b32 v{fA}, v{vL16}")
        A(f"s_mov_b32 s{sCNT}, 64")
        A.label(f"L_FB{p}_a")
        A(f"ds_read_b128 {vr(fK)}, v{fA}")
        A(f"v_add_u32 v{fA}, 1024, v{fA}")
        A("s_waitcnt lgkmcnt(0)")
        A(f"v_mfma_f32_32x32x16_bf16 {vr(fS,16)}, {vr(fK)}, {vr(q)}, 0")
        A("s_nop 7"); A("s_nop 7")
        for r in range(8): A(f"v_max3_f32 v{fM}, v{fS+2*r}, v{fS+2*r+1}, v{fM}")
        A(f"s_sub_u32 s{sCNT}, s{sCNT}, 1")
        A(f"s_cmp_lg_u32 s{sCNT}, 0")
        A(f"s_cbranch_scc1 L_FB{p}_a")
        A(f"v_mov_b32 v{fA}, v{fM}")
        A("s_nop 1")
        A(f"v_permlane32_swap_b32 v{fM}, v{fA}")
        A(f"v_max_f32 v{fM}, v{fM}, v{fA}")
        for r in range(16):
            A(f"v_sub_f32 v{fN+r}, 0, v{fM}")
            A(f"v_mov_b32 v{o+r}, 0")
        A(f"v_lshrrev_b32 v{fB}, 3, v{vVINC}")
        A("v_and_b32 v4, 63, v0")
        A("v_and_b32 v5, 15, v4")
        A("v_lshrrev_b32 v6, 5, v4")
        A("v_lshlrev_b32 v5, 4, v5")
        A("v_lshl_add_u32 v5, v6, 8, v5")
        A(f"v_lshlrev_b32 v6, 6, v{fB}")
        A(f"v_sub_u32 v5, v5, v6")
        A(f"v_add_u32 v5, {LDS_ONES}, v5")
        A(f"v_mov_b32 v{fA}, v{vL16}")
        A(f"s_mov_b32 s{sCNT}, 64")
        A.label(f"L_FB{p}_b")
        A(f"ds_read_b128 {vr(fK)}, v{fA}")
        A(f"ds_read_b128 {vr(fV0)}, v5")
        A(f"ds_read_b128 {vr(fV1)}, v5 offset:512")
        A(f"v_add_u32 v{fA}, 1024, v{fA}")
        A(f"v_add_u32 v5, v5, v{fB}")
        A("s_waitcnt lgkmcnt(0)")
        A(f"v_mfma_f32_32x32x16_bf16 {vr(fS,16)}, {vr(fK)}, {vr(q)}, {vr(fN,16)}")
        A("s_nop 7"); A("s_nop 7")
        for r in range(16): A(f"v_exp_f32 v{fS+r}, v{fS+r}")
        A("s_nop 1")
        A(f"v_smfmac_f32_32x32x32_bf16 {vr(o,16)}, {vr(fV0)}, {vr(fS,8)}, v{vIDX}")
        A(f"v_smfmac_f32_32x32x32_bf16 {vr(o,16)}, {vr(fV1)}, {vr(fS+8,8)}, v{vIDX}")
        A(f"s_sub_u32 s{sCNT}, s{sCNT}, 1")
        A(f"s_cmp_lg_u32 s{sCNT}, 0")
        A(f"s_cbranch_scc1 L_FB{p}_b")
        A("s_nop 7"); A("s_nop 7")
        A(f"s_branch L_FBR{p}")
    assert LDS_ONES - 0x10000 == LDS_V
    A.label("L_CODE_END")
    lines, nfix, probs = check_hazards(A.L)
    for p_ in probs: print("HAZARD:", p_, file=sys.stderr)
    print(f"auto nops: {nfix}", file=sys.stderr)
    body = "\n".join(l if l.endswith(":") else "    " + l for l in lines)
    hdr = open("cdna_kernels/" + NAME + ".s.ref").read().split("; Override launch")[0]
    out = hdr + f"""; Persistent kernel: 256 workgroups (one per CU), flag-based hand-offs through d_ws. Generated by gen.py.
; @launch grid=(256,1,1) block=(256,1,1) lds={LDS_TOTAL}
.amdgcn_target "amdgcn-amd-amdhsa--gfx950"
.text
.globl {NAME}_kernel
.p2align 8
.type {NAME}_kernel,@function
{NAME}_kernel:
L_CODE_START:
{body}
.section .rodata,"a"
.p2align 6
.amdhsa_kernel {NAME}_kernel
  .amdhsa_next_free_vgpr 512
  .amdhsa_next_free_sgpr 102
  .amdhsa_accum_offset 256
  .amdhsa_group_segment_fixed_size 0
  .amdhsa_kernarg_size 96
  .amdhsa_user_sgpr_count 2
  .amdhsa_user_sgpr_kernarg_segment_ptr 1
  .amdhsa_system_sgpr_workgroup_id_x 1
.end_amdhsa_kernel
"""
    return out

if __name__ == "__main__":
    import argparse, json
    ap = argparse.ArgumentParser()
    ap.add_argument("-o", default="cdna_kernels/" + NAME + ".s")
    ap.add_argument("--stop", default=None)
    ap.add_argument("--prof", default=None)
    ap.add_argument("--t512", action="store_true")
    ap.add_argument("--wd_s2", type=int, default=12)
    ap.add_argument("--wd_ffn1", type=int, default=26)
    ap.add_argument("--dbg", default=None)
    a = ap.parse_args()
    cfg = Cfg()
    if a.stop:
        l, p = a.stop.split(":"); cfg.stop = (int(l), p)
    cfg.prof = a.prof; cfg.ffn1_t512 = a.t512; cfg.wd_s2 = a.wd_s2; cfg.wd_ffn1 = a.wd_ffn1
    cfg.dbg = [int(x) for x in a.dbg.split(",")] if a.dbg else None
    s = gen(cfg)
    open(a.o, "w").write(s)
    json.dump(cfg.stamps, open(a.o + ".stamps.json", "w"))
```

```python
import sys, math, struct
sys.path.insert(0, "gen")
from asmlib import Asm, check_hazards

NAME = "interleave_layers__grouped_kv_mqa__glu_gated_reglu__prompt"

WS_EPOCH = 0
WS_WFLAG = 0x1000
WS_PROF = 0x10000
WS_WOT = 0x100000
WS_WDT = 0x200000
WS_WGUT = 0x400000
WS_X2 = 0x800000
WS_L0 = 0x1000000
LSTRIDE = 0x1000000
L_Q = 0
L_KV = 0x200000
L_FLAG = 0x280000
L_X1 = 0x300000
L_XN1 = 0x500000
L_H = 0x700000
PH_QKV, PH_ATT, PH_FF1, PH_FF2, PH_FF1E = 0, 1, 2, 3, 4
def flagbase(ph): return L_FLAG + ph * 256 * 128

LDS_WQ = 0x10000
LDS_WKV = 0x20000
LDS_ST = 0x24400
LDS_V = 0x10000
LDS_ONES = 0x20000
LDS_OX = 0x22000
LDS_LNX = 0x27f00
LDS_TOTAL = 160 * 1024

sWG = 2; sW = 3; sX = 4; sI = 5; sLAYER = 6; sTAG = 7
P_X, P_WQ, P_WK, P_WV, P_WO, P_BX, P_WG, P_WU, P_WD, P_OUT, P_DBG, P_WS = [8 + 2 * i for i in range(12)]
rXIN = 32; rWQ = 36; rWKV = 40; rL = 44; rWS = 48; rOUT = 52; rR0 = 56; rR1 = 60; rR2 = 64
sTB = 68; sCB = 69; sG = 70; sBLK = 71; sSL = 72; sID1 = 73; sXST = 74; sGW = 75
sT0 = 76; sT1 = 77; sT2 = 78; sT3 = 79; sT4 = 80; sT5 = 81
sCNT = 82; sGUL = 83
sM0 = 84; sM1 = 86; sM2 = 88
sWA = 90; sWB = 91
sTS = 92
sWDO = 94; sXA = 95; sXB = 99; sQO = 100; sKO = 101
sHO = 18; sHS = 19

def srd(n): return f"s[{n}:{n+3}]"
def vr(a, n=4): return f"v[{a}:{a+n-1}]"
def ar(a, n=4): return f"a[{a}:{a+n-1}]"
def f32(x): return struct.unpack("<I", struct.pack("<f", x))[0]

vL16 = 1; vTAG = 2; vPROF = 3; vCS = 100; vCKV = 116

class Cfg: pass

def gen(cfg):
    A = Asm()
    stamp_idx = [0]
    cfg.stamps = []
    clk = "s_memtime" if cfg.prof == "clk" else "s_memrealtime"
    def stamp(name):
        if not cfg.prof: return
        A(f"{clk} s[{sTS}:{sTS+1}]")
        A("s_waitcnt lgkmcnt(0)"); A.lg = []
        k = stamp_idx[0]; stamp_idx[0] += 1
        assert k < 32
        A(f"s_lshl_b32 s{sTS+1}, s{sLAYER}, 5")
        A(f"s_add_u32 s{sTS+1}, s{sTS+1}, {k}")
        A("s_mov_b32 s98, m0")
        A(f"s_mov_b32 m0, s{sTS+1}")
        A("s_nop 1")
        A(f"v_writelane_b32 v{vPROF}, s{sTS}, m0")
        A("s_mov_b32 m0, s98")
        cfg.stamps.append(name)
    def fstamp(name):
        if cfg.fine: stamp(name)

    def spin(vaddr, r, name, tmp=4):
        lp = A.newlabel("poll_" + name); dn = A.newlabel("polld_" + name)
        A(f"s_mov_b32 s{sCNT}, {cfg.spin_limit}")
        A.label(lp)
        A(f"buffer_load_dword v{tmp}, v{vaddr}, {srd(r)}, 0 offen sc1")
        A("s_waitcnt vmcnt(0)")
        A(f"v_cmp_ne_u32 vcc, v{tmp}, v{vTAG}")
        A(f"s_cbranch_vccz {dn}")
        A(f"s_sub_u32 s{sCNT}, s{sCNT}, 1")
        A(f"s_cmp_lg_u32 s{sCNT}, 0")
        A(f"s_cbranch_scc1 {lp}")
        A("s_branch L_TIMEOUT")
        A.label(dn)
    def poll(vaddr, name, tmp=4):
        spin(vaddr, rL, name, tmp); A.vm = []
    sPF = 56
    def s_issue(r, sbase, n):
        for q in range(n): A(f"s_buffer_load_dword s{sPF+q}, {srd(r)}, s{sbase} offset:{q*128} glc")
    def s_test(n):
        A("s_waitcnt lgkmcnt(0)"); A.lg = []
        for q in range(n): A(f"s_xor_b32 s{sPF+q}, s{sPF+q}, s{sTAG}")
        m = n
        while m > 1:
            for q in range(m // 2): A(f"s_or_b32 s{sPF+q}, s{sPF+q}, s{sPF+q+m//2}")
            m //= 2
    def s_spin(r, sbase, n, name, issued=False):
        lp = A.newlabel("sp_" + name); dn = A.newlabel("spd_" + name); ck = A.newlabel("spc_" + name)
        A(f"s_mov_b32 s{sCNT}, {cfg.spin_limit}")
        if issued: A(f"s_branch {ck}")
        A.label(lp)
        s_issue(r, sbase, n)
        A(f"s_sub_u32 s{sCNT}, s{sCNT}, 1")
        A("s_cbranch_scc1 L_TIMEOUT")
        A.label(ck)
        s_test(n)
        A(f"s_cbranch_scc1 {lp}")
    def check_or_spin(vres, vaddr, r, tag, name):
        ok = A.newlabel("ok_" + name)
        A.wait_vm(tag)
        A(f"v_cmp_ne_u32 vcc, v{vres}, v{vTAG}")
        A(f"s_cbranch_vccz {ok}")
        spin(vaddr, r, name, vres)
        A.label(ok)
    def flag_store(phase, sid, tmp=4):
        sk = A.newlabel("pub")
        A(f"s_cmp_lg_u32 s{sW}, 0")
        A(f"s_cbranch_scc1 {sk}")
        A(f"s_lshl_b32 s{sCNT}, s{sid}, 7")
        A(f"s_add_u32 s{sCNT}, s{sCNT}, {hex(flagbase(phase))}")
        A(f"v_mov_b32 v{tmp}, 0")
        A("s_mov_b64 exec, 1")
        A(f"buffer_store_dword v{vTAG}, v{tmp}, {srd(rL)}, s{sCNT} offen sc1")
        A("s_mov_b64 exec, -1")
        A.label(sk)
    def publish(phase, sid, tags, tmp=4):
        A.wait_vm(tags)
        A("s_barrier")
        flag_store(phase, sid, tmp)
    def unpack(dst, src, k):
        if k % 2 == 0: A(f"v_lshlrev_b32 v{dst+k}, 16, v{src+k//2}")
        else: A(f"v_and_b32 v{dst+k}, 0xffff0000, v{src+k//2}")
    def mk_srd(r, p, size, add=0):
        if add:
            A(f"s_add_u32 s{r}, s{p}, {hex(add)}")
            A(f"s_addc_u32 s{r+1}, s{p+1}, 0")
        else:
            A(f"s_mov_b32 s{r}, s{p}")
            A(f"s_mov_b32 s{r+1}, s{p+1}")
        A(f"s_mov_b32 s{r+2}, {hex(size)}")
        A(f"s_mov_b32 s{r+3}, 0x20000")

    vWS_ = 11
    def w_dma_setup():
        A("v_and_b32 v4, 63, v0")
        A("v_lshrrev_b32 v5, 3, v4")
        A("v_bfe_u32 v6, v4, 4, 1")
        A("v_lshlrev_b32 v6, 2, v6")
        A("v_and_b32 v4, 7, v4")
        A("v_xor_b32 v4, v4, v6")
        A("v_lshlrev_b32 v4, 4, v4")
        A(f"v_lshl_add_u32 v{vWS_}, v5, 10, v4")
        A(f"s_lshl_b32 s{sWA}, s{sW}, 15")
        A(f"s_lshl_b32 s{sWB}, s{sCB}, 7")
        A(f"s_add_u32 s{sWA}, s{sWA}, s{sWB}")
        A(f"s_lshl_b32 s{sWB}, s{sW}, 12")
        A(f"s_add_u32 s{sWB}, s{sWB}, {LDS_WQ}")
    def w_dma(c, n):
        if n < 4:
            A(f"s_mov_b32 m0, s{sWB}")
            A(f"s_add_u32 s{sWB}, s{sWB}, {1024 if n < 3 else 16384 - 3072}")
            A.vmem(f"buffer_load_dwordx4 v{vWS_}, {srd(rWQ)}, s{sWA} offen lds", f"wq{c}")
            A(f"s_add_u32 s{sWA}, s{sWA}, {8192 if n < 3 else 131072 - 3 * 8192}")
        else:
            A(f"s_lshl_b32 s{sCNT}, s{sW}, 10")
            A(f"s_add_u32 m0, s{sCNT}, {LDS_WKV + c*4096}")
            A(f"s_add_u32 s{sCNT}, s{sCNT}, {c*4096}")
            A.vmem(f"buffer_load_dwordx4 v{vL16}, {srd(rWKV)}, s{sCNT} offen lds", f"wq{c}")
    vXS, vXE, vXO, vX16 = 12, 13, 14, 15
    def x_dma_setup():
        A(f"s_lshl_b32 s{sXB}, s{sW}, 10")
        A(f"s_mov_b32 s{sXA}, 0")
    def x_dma(j, sc1):
        A(f"s_mov_b32 m0, s{sXB}")
        A(f"s_add_u32 s{sXB}, s{sXB}, 4096")
        A.vmem(f"buffer_load_dwordx4 v{vXS}, {srd(rXIN)}, s{sXA} offen{' sc1' if sc1 else ''} lds", f"x{j//4}")
        A(f"s_add_u32 s{sXA}, s{sXA}, s{sXST}")

    A(f"s_cmp_ge_u32 s{sWG}, 256")
    A("s_cbranch_scc1 L_END")
    if cfg.prof: A(f"{clk} s[96:97]")
    A("s_load_dwordx16 s[8:23], s[0:1], 0")
    A("s_load_dwordx8 s[24:31], s[0:1], 64")
    A(f"s_getpc_b64 s[{sM0}:{sM0+1}]")
    A(f"s_and_b32 s{sM0}, s{sM0}, 0xffffffc0")
    A(f"v_and_b32 v4, 63, v0")
    A(f"v_lshlrev_b32 v{vL16}, 4, v4")
    A(f"v_lshrrev_b32 v5, 6, v0")
    A(f"s_and_b32 s{sX}, s{sWG}, 7")
    A(f"s_lshr_b32 s{sI}, s{sWG}, 3")
    A(f"v_readfirstlane_b32 s{sW}, v5")
    A(f"s_and_b32 s{sT0}, s{sI}, 1")
    A(f"s_lshl_b32 s{sT0}, s{sT0}, 15")
    A(f"v_lshlrev_b32 v6, 7, v0")
    A(f"v_add_u32 v6, s{sT0}, v6")
    A(f"v_min_u32 v6, L_CODE_END-L_CODE_START-64, v6")
    A(f"global_load_dword v248, v6, s[{sM0}:{sM0+1}]")
    A.vm.append("code")
    A(f"s_lshr_b32 s{sT0}, s{sI}, 3")
    A(f"s_lshl_b32 s{sTB}, s{sX}, 2")
    A(f"s_add_u32 s{sTB}, s{sTB}, s{sT0}")
    A(f"s_and_b32 s{sCB}, s{sI}, 7")
    w_dma_setup()
    A("v_and_b32 v4, 63, v0")
    A("v_lshrrev_b32 v5, 2, v4")
    A("v_lshrrev_b32 v6, 4, v4")
    A("v_and_b32 v4, 3, v4")
    A("v_xor_b32 v4, v4, v6")
    A("v_lshlrev_b32 v4, 4, v4")
    A(f"v_lshl_add_u32 v{vXS}, v5, 10, v4")
    A(f"s_lshl_b32 s{sT0}, s{sTB}, 16")
    A(f"s_lshl_b32 s{sT1}, s{sW}, 14")
    A(f"s_add_u32 s{sT0}, s{sT0}, s{sT1}")
    A(f"v_add_u32 v{vXS}, s{sT0}, v{vXS}")
    A(f"s_mov_b32 s{sXST}, 64")
    x_dma_setup()
    A(f"s_mov_b32 s{sLAYER}, 0")
    if cfg.prof: A(f"v_mov_b32 v{vPROF}, 0")
    A("s_waitcnt lgkmcnt(0)")
    if cfg.prof:
        A(f"v_writelane_b32 v{vPROF}, s96, 0")
        stamp_idx[0] = 1; cfg.stamps.append("entry")
    mk_srd(rWQ, P_WQ, 512 * 512 * 2)
    mk_srd(rXIN, P_X, 2048 * 512 * 2)
    A(f"s_cmp_eq_u32 s{sCB}, 0")
    A(f"s_cselect_b32 s{rWKV}, s{P_WK}, s{P_WV}")
    A(f"s_cselect_b32 s{rWKV+1}, s{P_WK+1}, s{P_WV+1}")
    A(f"s_mov_b32 s{rWKV+2}, {512*16*2}")
    A(f"s_mov_b32 s{rWKV+3}, 0x20000")
    for n in range(5): w_dma(0, n)
    for j in range(4): x_dma(j, False)
    A(f"s_load_dword s{sTAG}, s[{P_WS}:{P_WS+1}], {WS_EPOCH}")
    for n in range(5): w_dma(1, n)
    for j in range(4, 8): x_dma(j, False)
    A(f"s_lshl_b32 s{sG}, s{sX}, 5")
    A(f"s_add_u32 s{sG}, s{sG}, s{sI}")
    if cfg.t512:
        A(f"s_lshr_b32 s{sT0}, s{sI}, 3")
        A(f"s_lshr_b32 s{sBLK}, s{sX}, 1")
        A(f"s_lshl_b32 s{sBLK}, s{sBLK}, 2")
        A(f"s_add_u32 s{sBLK}, s{sBLK}, s{sT0}")
        A(f"s_and_b32 s{sSL}, s{sX}, 1")
        A(f"s_lshl_b32 s{sSL}, s{sSL}, 3")
        A(f"s_add_u32 s{sSL}, s{sSL}, s{sCB}")
    else:
        A(f"s_lshr_b32 s{sBLK}, s{sG}, 4")
        A(f"s_and_b32 s{sSL}, s{sG}, 15")
    A(f"s_lshl_b32 s{sID1}, s{sBLK}, 4")
    A(f"s_add_u32 s{sID1}, s{sID1}, s{sSL}")
    A(f"s_lshl_b32 s{sGW}, s{sWG}, 2")
    A(f"s_add_u32 s{sGW}, s{sGW}, s{sW}")
    A(f"s_and_b32 s{sGUL}, s{sW}, 1")
    A(f"s_lshl_b32 s{sGUL}, s{sGUL}, 13")
    A(f"s_lshr_b32 s{sT0}, s{sW}, 1")
    A(f"s_lshl_b32 s{sT0}, s{sT0}, 16")
    A(f"s_add_u32 s{sGUL}, s{sGUL}, s{sT0}")
    mk_srd(rL, P_WS, LSTRIDE, WS_L0)
    mk_srd(rWS, P_WS, WS_L0)
    mk_srd(rOUT, P_WS, 2048 * 512 * 2, WS_X2)
    vRAW = 224; vRA = 250; vRB = 251
    A("v_and_b32 v4, 63, v0")
    A("v_lshrrev_b32 v5, 3, v4")
    A("v_and_b32 v4, 7, v4")
    A("v_lshlrev_b32 v4, 4, v4")
    A(f"v_lshl_add_u32 v{vRB}, v5, 10, v4")
    A("v_mul_u32_u24 v5, 3584, v5")
    A(f"v_add_u32 v{vRA}, v5, v4")
    A(f"s_cmp_ge_u32 s{sWG}, 224")
    A("s_cbranch_scc1 L_RAW_WO")
    mk_srd(rR0, P_WG, 512 * 1792 * 2)
    mk_srd(rR1, P_WU, 512 * 1792 * 2)
    mk_srd(rR2, P_WD, 512 * 1792 * 2)
    A(f"s_and_b32 s{sT2}, s{sGW}, 31")
    A(f"s_mul_i32 s{sT2}, s{sT2}, {16*3584}")
    A(f"s_lshr_b32 s{sT1}, s{sGW}, 5")
    A(f"s_lshl_b32 s{sT1}, s{sT1}, 7")
    A(f"s_add_u32 s{sT2}, s{sT2}, s{sT1}")
    A(f"s_add_u32 s{sT3}, s{sT2}, {8*3584}")
    A(f"s_mov_b32 s{sHO}, s{sT2}")
    A(f"s_mov_b32 s{sHS}, s{sT3}")
    A(f"s_lshr_b32 s{sT4}, s{sGW}, 3")
    A(f"s_lshl_b32 s{sT4}, s{sT4}, 14")
    A(f"s_and_b32 s{sT1}, s{sGW}, 7")
    A(f"s_lshl_b32 s{sT1}, s{sT1}, 7")
    A(f"s_add_u32 s{sT4}, s{sT4}, s{sT1}")
    A(f"s_add_u32 s{sT5}, s{sT4}, 8192")
    A("s_branch L_RAW_DONE")
    A.label("L_RAW_WO")
    mk_srd(rR0, P_WO, 512 * 512 * 2)
    mk_srd(rR1, P_WO, 512 * 512 * 2)
    mk_srd(rR2, P_WO, 512 * 512 * 2)
    A(f"v_mov_b32 v{vRA}, v{vRB}")
    A(f"s_sub_u32 s{sT0}, s{sGW}, 896")
    A(f"s_lshr_b32 s{sT2}, s{sT0}, 3")
    A(f"s_lshl_b32 s{sT2}, s{sT2}, 15")
    A(f"s_and_b32 s{sT1}, s{sT0}, 7")
    A(f"s_lshl_b32 s{sT1}, s{sT1}, 7")
    A(f"s_add_u32 s{sT2}, s{sT2}, s{sT1}")
    A(f"s_add_u32 s{sT3}, s{sT2}, 8192")
    A(f"s_add_u32 s{sHO}, s{sT2}, 16384")
    A(f"s_add_u32 s{sHS}, s{sT2}, 24576")
    A(f"s_mov_b32 s{sT4}, s{sT2}")
    A(f"s_mov_b32 s{sT5}, s{sT2}")
    A.label("L_RAW_DONE")
    def raw_load(n):
        r, so, va = [(rR0, sT2, vRA), (rR0, sT3, vRA), (rR1, sHO, vRA), (rR1, sHS, vRA), (rR2, sT4, vRB), (rR2, sT5, vRB)][n]
        A.vmem(f"buffer_load_dwordx4 {vr(vRAW+4*n)}, v{va}, {srd(r)}, s{so} offen", "raw")

    aWQ, aWKV = 0, 128
    vAQ, vAKV, vG, vU, vONE = 16, 48, 56, 60, 64
    vXF = [128, 160]; vX16F = [192, 208]
    vTQ, vTKV = 8, 9
    vSTW, vSTR, vQST, vKVR, vKVS = 68, 69, 70, 71, 88
    def qkv_addrs(layer0):
        for r in range(4): A(f"v_mov_b32 v{vONE+r}, 0x3f803f80")
        A("v_and_b32 v4, 63, v0")
        A(f"s_lshr_b32 s{sT0}, s{sW}, 1")
        if layer0:
            A("v_and_b32 v5, 15, v4")
            A("v_lshrrev_b32 v6, 2, v5")
            A("v_lshrrev_b32 v7, 5, v4")
            A("v_xor_b32 v7, v7, v6")
            A("v_lshlrev_b32 v7, 4, v7")
            A("v_lshl_add_u32 v7, v5, 6, v7")
            A("v_bfe_u32 v8, v4, 4, 1")
            A("v_lshl_add_u32 v7, v8, 10, v7")
            A(f"s_lshl_b32 s{sT0}, s{sT0}, 11")
            A(f"v_add_u32 v{vXE}, s{sT0}, v7")
            A(f"v_xor_b32 v{vXO}, 32, v{vXE}")
            A("v_lshrrev_b32 v7, 4, v4")
            A("v_xor_b32 v7, v7, v6")
            A("v_lshlrev_b32 v7, 4, v7")
            A("v_lshl_add_u32 v7, v5, 6, v7")
            A(f"s_lshl_b32 s{sT0}, s{sW}, 10")
            A(f"v_add_u32 v{vX16}, s{sT0}, v7")
        else:
            A(f"s_lshl_b32 s{sT0}, s{sT0}, 11")
            A(f"v_add_u32 v{vXE}, s{sT0}, v{vL16}")
            A(f"v_add_u32 v{vXO}, 1024, v{vXE}")
            A("v_and_b32 v5, 15, v4")
            A("v_lshrrev_b32 v6, 5, v4")
            A("v_bfe_u32 v7, v4, 4, 1")
            A("v_lshlrev_b32 v5, 4, v5")
            A("v_lshl_add_u32 v5, v7, 9, v5")
            A("v_lshl_add_u32 v5, v6, 10, v5")
            A(f"s_and_b32 s{sT1}, s{sW}, 1")
            A(f"s_lshl_b32 s{sT1}, s{sT1}, 8")
            A(f"s_add_u32 s{sT0}, s{sT0}, s{sT1}")
            A(f"v_add_u32 v{vX16}, s{sT0}, v5")
        A("v_bfe_u32 v5, v4, 2, 2")
        A("v_lshrrev_b32 v6, 5, v4")
        A("v_lshl_add_u32 v6, v6, 3, v5")
        A("v_lshrrev_b32 v5, 1, v5")
        A(f"s_and_b32 s{sT0}, s{sW}, 1")
        A(f"v_xor_b32 v5, s{sT0}, v5")
        A("v_lshlrev_b32 v5, 6, v5")
        A("v_lshl_add_u32 v5, v6, 7, v5")
        A("v_bfe_u32 v6, v4, 4, 1")
        A("v_lshl_add_u32 v5, v6, 5, v5")
        A("v_and_b32 v6, 1, v4")
        A("v_bfe_u32 v7, v4, 1, 1")
        A("v_lshl_add_u32 v6, v6, 1, v7")
        A(f"v_lshl_add_u32 v{vTQ}, v6, 3, v5")
        A(f"v_add_u32 v{vTQ}, {LDS_WQ}, v{vTQ}")
        A("v_and_b32 v7, 3, v4")
        A(f"s_cmp_eq_u32 s{sCB}, 0")
        A(f"s_cselect_b64 vcc, -1, 0")
        A("v_cndmask_b32 v6, v6, v7, vcc")
        A("v_bfe_u32 v5, v4, 2, 2")
        A("v_lshrrev_b32 v7, 4, v4")
        A("v_lshl_add_u32 v5, v7, 3, v5")
        A("v_lshlrev_b32 v5, 5, v5")
        A(f"v_lshl_add_u32 v{vTKV}, v6, 3, v5")
        A(f"v_add_u32 v{vTKV}, {LDS_WKV}, v{vTKV}")
        A("v_and_b32 v5, 3, v4")
        A(f"v_cmp_eq_u32 s[{sM0}:{sM0+1}], 2, v5")
        A(f"v_cmp_eq_u32 s[{sM1}:{sM1+1}], 3, v5")
        A("v_lshrrev_b32 v6, 4, v4")
        A("v_bfe_u32 v7, v4, 2, 2")
        A(f"v_cmp_eq_u32 s[{sM2}:{sM2+1}], v6, v7")
        A("v_and_b32 v7, 15, v4")
        A(f"s_lshl_b32 s{sT0}, s{sW}, 7")
        A(f"s_add_u32 s{sT0}, s{sT0}, {LDS_ST}")
        A(f"v_lshl_add_u32 v{vSTW}, v7, 3, s{sT0}")
        kk = A.newlabel("kart"); kd_ = A.newlabel("kard")
        A("v_lshrrev_b32 v5, 1, v6")
        A(f"s_cmp_eq_u32 s{sCB}, 0")
        A(f"s_cbranch_scc1 {kk}")
        A(f"v_lshl_add_u32 v{vKVR}, v6, 5, s{sT0}")
        A("v_lshlrev_b32 v5, 8, v5")
        A(f"s_lshl_b32 s{sKO}, s{sTB}, 2")
        A(f"s_add_u32 s{sKO}, s{sKO}, s{sW}")
        A(f"s_lshl_b32 s{sKO}, s{sKO}, 9")
        A(f"s_add_u32 s{sKO}, s{sKO}, {hex(L_KV + 0x10000)}")
        A(f"s_branch {kd_}")
        A.label(kk)
        A(f"v_mov_b32 v{vKVR}, v{vSTW}")
        A("v_lshlrev_b32 v5, 9, v5")
        A(f"s_lshl_b32 s{sKO}, s{sTB}, 11")
        A(f"s_lshr_b32 s{sT0}, s{sW}, 1")
        A(f"s_lshl_b32 s{sT0}, s{sT0}, 10")
        A(f"s_add_u32 s{sKO}, s{sKO}, s{sT0}")
        A(f"s_and_b32 s{sT0}, s{sW}, 1")
        A(f"s_lshl_b32 s{sT0}, s{sT0}, 8")
        A(f"s_add_u32 s{sKO}, s{sKO}, s{sT0}")
        A(f"s_add_u32 s{sKO}, s{sKO}, {hex(L_KV)}")
        A.label(kd_)
        A(f"v_lshl_add_u32 v{vKVS}, v7, 4, v5")
        A("v_and_b32 v5, 31, v4")
        A(f"s_lshr_b32 s{sT0}, s{sW}, 1")
        A(f"s_lshl_b32 s{sT1}, s{sT0}, 8")
        A(f"s_add_u32 s{sT1}, s{sT1}, {LDS_ST}")
        A(f"v_lshl_add_u32 v{vSTR}, v5, 3, s{sT1}")
        A("v_lshrrev_b32 v7, 3, v5")
        A("v_lshlrev_b32 v7, 13, v7")
        A("v_and_b32 v5, 7, v4")
        A("v_lshl_add_u32 v7, v5, 4, v7")
        A("v_lshrrev_b32 v5, 5, v4")
        A(f"v_lshl_add_u32 v{vQST}, v5, 9, v7")
        A(f"s_lshl_b32 s{sQO}, s{sTB}, 16")
        A(f"s_lshl_b32 s{sT0}, s{sT0}, 15")
        A(f"s_add_u32 s{sQO}, s{sQO}, s{sT0}")
        A(f"s_lshl_b32 s{sT0}, s{sCB}, 10")
        A(f"s_add_u32 s{sQO}, s{sQO}, s{sT0}")
        A(f"s_and_b32 s{sT0}, s{sW}, 1")
        A(f"s_lshl_b32 s{sT0}, s{sT0}, 8")
        A(f"s_add_u32 s{sQO}, s{sQO}, s{sT0}")
    def tr_reads(c):
        L = []
        for s in range(8 * c, 8 * c + 8):
            L.append(lambda s=s: A.ds(f"ds_read_b64_tr_b16 {ar(aWQ+4*s, 2)}, v{vTQ} offset:{s*2048}", f"w{s}"))
            L.append(lambda s=s: A.ds(f"ds_read_b64_tr_b16 {ar(aWQ+4*s+2, 2)}, v{vTQ} offset:{s*2048+512}", f"w{s}"))
        for j in range(4 * c, 4 * c + 4):
            L.append(lambda j=j: A.ds(f"ds_read_b64_tr_b16 {ar(aWKV+4*j, 2)}, v{vTKV} offset:{j*1024}", f"u{j}"))
            L.append(lambda j=j: A.ds(f"ds_read_b64_tr_b16 {ar(aWKV+4*j+2, 2)}, v{vTKV} offset:{j*1024+128}", f"u{j}"))
        return L
    def x_reads(c):
        b = c % 2; L = []
        for s in range(8):
            L.append(lambda s=s: A.ds(f"ds_read_b128 {vr(vXF[b]+4*s)}, v{vXE if s % 2 == 0 else vXO} offset:{(4*c + s//2)*4096}", f"xf{c}_{s}"))
        for j in range(4):
            L.append(lambda j=j: A.ds(f"ds_read_b128 {vr(vX16F[b]+4*j)}, v{vX16} offset:{(4*c+j)*4096}", f"xg{c}_{j}"))
        return L
    def lds_guard():
        if len(A.lg) >= 14: A.wait_lg(A.lg[len(A.lg) - 13])
    def guarded(L): return [(lambda th=th: (lds_guard(), th())) for th in L]
    def mfmas(c, layer0):
        b = c % 2; L = []
        for s in range(8):
            k = 8 * c + s
            def q(s=s, k=k):
                A.wait_lg([f"xf{c}_{s}", f"w{k}"])
                A(f"v_mfma_f32_32x32x16_bf16 {vr(vAQ,16)}, {ar(aWQ+4*k)}, {vr(vXF[b]+4*s)}, {vr(vAQ,16) if k else 0}")
            L.append(q)
            if layer0:
                L.append(lambda k=k: A(f"v_mfma_f32_32x32x16_bf16 {vr(vCS,16)}, {ar(aWQ+4*k)}, {vr(vONE)}, {vr(vCS,16) if k else 0}"))
        for j in range(4):
            k = 4 * c + j
            def g(j=j, k=k):
                A.wait_lg([f"xg{c}_{j}", f"u{k}"])
                A(f"v_mfma_f32_16x16x32_bf16 {vr(vG)}, {vr(vX16F[b]+4*j)}, {vr(vX16F[b]+4*j)}, {vr(vG) if k else 0}")
            L.append(g)
            L.append(lambda j=j, k=k: A(f"v_mfma_f32_16x16x32_bf16 {vr(vU)}, {vr(vONE)}, {vr(vX16F[b]+4*j)}, {vr(vU) if k else 0}"))
        return L
    def kv_mfmas(c, layer0):
        b = c % 2
        sk = A.newlabel("nokv"); vt = A.newlabel("kvV")
        A(f"s_cmp_ge_u32 s{sCB}, 2")
        A(f"s_cbranch_scc1 {sk}")
        A(f"s_cmp_eq_u32 s{sCB}, 0")
        A(f"s_cbranch_scc0 {vt}")
        for j in range(4):
            k = 4 * c + j
            A(f"v_mfma_f32_16x16x32_bf16 {vr(vAKV)}, {ar(aWKV+4*k)}, {vr(vX16F[b]+4*j)}, {vr(vAKV) if k else 0}")
            if layer0: A(f"v_mfma_f32_16x16x32_bf16 {vr(vCKV)}, {ar(aWKV+4*k)}, {vr(vONE)}, {vr(vCKV) if k else 0}")
        A(f"s_branch {sk}")
        A.label(vt)
        for j in range(4):
            k = 4 * c + j
            A(f"v_mfma_f32_16x16x32_bf16 {vr(vAKV)}, {vr(vX16F[b]+4*j)}, {ar(aWKV+4*k)}, {vr(vAKV) if k else 0}")
            if layer0: A(f"v_mfma_f32_16x16x32_bf16 {vr(vCKV)}, {vr(vONE)}, {ar(aWKV+4*k)}, {vr(vCKV) if k else 0}")
        A.label(sk)
    def qkv_main(layer0, vq):
        def arrive(c):
            A.wait_vm([f"x{c}", f"wq{c}"]); A("s_barrier")
        def reads(c):
            if not layer0: return guarded(x_reads(c))
            t, x = tr_reads(c), x_reads(c)
            out = []
            for s in range(8): out += [t[2 * s], t[2 * s + 1], x[s]]
            for j in range(4): out += [t[16 + 2 * j], t[17 + 2 * j], x[8 + j]]
            return guarded(out)
        arrive(0)
        if layer0: A("s_waitcnt lgkmcnt(0)")
        for th in reads(0): th()
        for c in range(4):
            M = mfmas(c, layer0)
            V = list(vq[c])
            R = []
            half = (len(M) * 3) // 8
            for i_, th in enumerate(M):
                if i_ == half and c < 3:
                    while V: V.pop(0)()
                    arrive(c + 1); R = reads(c + 1)
                th()
                if V and i_ % 1 == 0: V.pop(0)()
                left = len(M) - i_
                for _ in range(-(-len(R) // left) if R else 0):
                    if R: R.pop(0)()
            while V: V.pop(0)()
            kv_mfmas(c, layer0)

    qkv_addrs(True)
    stamp("start")
    vq = [[(lambda n=n: w_dma(2, n)) for n in range(5)] + [(lambda j=j: x_dma(j, False)) for j in range(8, 12)],
          [(lambda n=n: w_dma(3, n)) for n in range(5)] + [(lambda j=j: x_dma(j, False)) for j in range(12, 16)],
          [(lambda n=n: raw_load(n)) for n in range(3)],
          [(lambda n=n: raw_load(n)) for n in range(3, 6)]]
    qkv_main(True, vq)
    A(f"s_mul_i32 s{sTAG}, s{sTAG}, 1664525")
    A(f"s_add_u32 s{sTAG}, s{sTAG}, 1013904223")
    A(f"v_mov_b32 v{vTAG}, s{sTAG}")
    A("s_branch L_QKV_EPI")

    A.label("L_LAYER1")
    A.lg = []; A.vm = []
    stamp("qkv_w")
    x_dma_setup()
    sk = A.newlabel("s4")
    A(f"s_cmp_lg_u32 s{sW}, 0")
    A(f"s_cbranch_scc1 {sk}")
    if cfg.s4 == "smem": s_spin(rWS, sHO, 8, "s4")
    else:
        A("v_and_b32 v5, 7, v0")
        A("v_lshlrev_b32 v5, 7, v5")
        A(f"v_add_u32 v5, s{sHO}, v5")
        spin(5, rWS, "s4")
    A.label(sk)
    A("s_barrier")
    stamp("s4")
    for j in range(8): x_dma(j, True)
    qkv_main(False, [[(lambda j=j: x_dma(j, True)) for j in range(8, 12)], [(lambda j=j: x_dma(j, True)) for j in range(12, 16)], [], []])

    A.label("L_QKV_EPI")
    A.lg = []; A.vm = []
    stamp("qkv_mm")
    A("v_and_b32 v5, 3, v0")
    A("v_cmp_eq_u32 vcc, 1, v5")
    A(f"s_mov_b32 s{sT1}, {hex(f32(1.0/512))}")
    A("s_nop 4")
    A(f"v_cndmask_b32 v5, v{vG}, v{vG+1}, vcc")
    A(f"v_cndmask_b32 v5, v5, v{vG+2}, s[{sM0}:{sM0+1}]")
    A(f"v_cndmask_b32 v5, v5, v{vG+3}, s[{sM1}:{sM1+1}]")
    A(f"v_mul_f32 v10, s{sT1}, v{vU}")
    A(f"v_mul_f32 v5, s{sT1}, v5")
    A("v_fma_f32 v5, -v10, v10, v5")
    A("v_max_f32 v5, 0, v5")
    A(f"v_add_f32 v5, {hex(f32(1e-5))}, v5")
    A("v_rsq_f32 v11, v5")
    A(f"s_mov_b64 exec, s[{sM2}:{sM2+1}]")
    A.ds(f"ds_write_b64 v{vSTW}, v[10:11]")
    A("s_mov_b64 exec, -1")
    A.wait_lg()
    A("s_barrier")
    A.ds(f"ds_read_b64 v[10:11], v{vSTR}")
    sk = A.newlabel("nokvep"); vt = A.newlabel("kvepV"); st = A.newlabel("kvst")
    A(f"s_cmp_ge_u32 s{sCB}, 2")
    A(f"s_cbranch_scc1 {sk}")
    A(f"s_cmp_eq_u32 s{sCB}, 0")
    A(f"s_cbranch_scc0 {vt}")
    A(f"ds_read_b64 v[72:73], v{vKVR}")
    A("s_waitcnt lgkmcnt(0)")
    for r in range(4): A(f"v_fma_f32 v{vAKV+r}, -v72, v{vCKV+r}, v{vAKV+r}")
    for r in range(4): A(f"v_mul_f32 v{vAKV+r}, v73, v{vAKV+r}")
    A(f"s_branch {st}")
    A.label(vt)
    A(f"ds_read_b128 v[72:75], v{vKVR}")
    A(f"ds_read_b128 v[76:79], v{vKVR} offset:16")
    A("s_waitcnt lgkmcnt(0)")
    for r in range(4): A(f"v_fma_f32 v{vAKV+r}, -v{72+2*r}, v{vCKV+r}, v{vAKV+r}")
    for r in range(4): A(f"v_mul_f32 v{vAKV+r}, v{73+2*r}, v{vAKV+r}")
    A.label(st)
    A(f"v_cvt_pk_bf16_f32 v72, v{vAKV}, v{vAKV+1}")
    A(f"v_cvt_pk_bf16_f32 v73, v{vAKV+2}, v{vAKV+3}")
    A("v_mov_b32 v74, v72")
    A("v_mov_b32 v75, v73")
    A(f"s_mov_b32 s{sM0}, 0x0000ffff")
    A(f"s_mov_b32 s{sM0+1}, 0x0000ffff")
    A("v_permlane16_swap_b32 v72, v74")
    A("v_permlane16_swap_b32 v73, v75")
    A(f"s_mov_b64 exec, s[{sM0}:{sM0+1}]")
    A(f"buffer_store_dwordx4 v[72:75], v{vKVS}, {srd(rL)}, s{sKO} offen sc1")
    A("s_mov_b64 exec, -1")
    A.label(sk)
    A.wait_lg()
    QS = 0.25 * math.log2(math.e)
    A(f"v_mul_f32 v11, {hex(f32(QS))}, v11")
    for h in range(2):
        for r in range(8 * h, 8 * h + 8):
            A(f"v_fma_f32 v{vAQ+r}, -v10, v{vCS+r}, v{vAQ+r}")
        for r in range(8 * h, 8 * h + 8):
            A(f"v_mul_f32 v{vAQ+r}, v11, v{vAQ+r}")
            if r % 2 == 1: A(f"v_cvt_pk_bf16_f32 v{80+r//2}, v{vAQ+r-1}, v{vAQ+r}")
        A.vmem(f"buffer_store_dwordx4 {vr(80+4*h)}, v{vQST}, {srd(rL)}, s{sQO} offen offset:{128*h} sc1", "st")
    A("v_and_b32 v5, 11, v0")
    A("v_cmp_eq_u32 vcc, 0, v5")
    A("v_lshlrev_b32 v4, 4, v0")
    A(f"v_add_u32 v4, {LDS_ONES}, v4")
    for r in range(4): A(f"v_cndmask_b32 v{vONE+r}, 0, v{vONE+r}, vcc")
    A.ds(f"ds_write_b128 v4, {vr(vONE)}")
    A.ds(f"ds_write_b128 v4, {vr(vONE)} offset:4096")
    S = [16, 32]; O = [48, 160]; Q = [64, 68]; KB = [72, 76]; V0 = [80, 84]; V1 = [88, 92]
    vIDX = 96; vVA = 97; vVINC = 98; vOXR = 99
    vOXW = 120; vWFL = 121; vRES = 122; vTCH = 123; vJUNK = 124; vRROW = 125; vWFA = 126
    vOF = [128, 132]; vZ = 136; vZR = 152; vPA = 176
    A("v_and_b32 v4, 63, v0")
    A("v_and_b32 v5, 7, v4")
    A("v_bfe_u32 v6, v4, 3, 1")
    A("v_lshrrev_b32 v7, 4, v4")
    A("v_lshlrev_b32 v8, 12, v6")
    A("v_lshrrev_b32 v9, 1, v7")
    A("v_lshl_add_u32 v8, v9, 10, v8")
    A("v_and_b32 v9, 1, v7")
    A("v_lshl_add_u32 v8, v9, 9, v8")
    A("v_lshl_add_u32 v8, v5, 4, v8")
    A(f"s_lshr_b32 s{sT0}, s{sG}, 2")
    A(f"s_lshl_b32 s{sT0}, s{sT0}, 15")
    A(f"s_lshl_b32 s{sT1}, s{sW}, 13")
    A(f"s_add_u32 s{sT0}, s{sT0}, s{sT1}")
    A(f"s_and_b32 s{sT1}, s{sG}, 3")
    A(f"s_lshl_b32 s{sT1}, s{sT1}, 7")
    A(f"s_add_u32 s{sT0}, s{sT0}, s{sT1}")
    A(f"v_add_u32 v{vRES}, s{sT0}, v8")
    A("v_lshlrev_b32 v8, 10, v5")
    A("v_lshl_add_u32 v8, v6, 7, v8")
    A("v_lshl_add_u32 v8, v7, 4, v8")
    A(f"s_lshl_b32 s{sT0}, s{sG}, 13")
    A(f"s_lshl_b32 s{sT1}, s{sW}, 8")
    A(f"s_add_u32 s{sT0}, s{sT0}, s{sT1}")
    A(f"v_add_u32 v8, s{sT0}, v8")
    A(f"s_cmp_eq_u32 s{sLAYER}, 0")
    A("s_cselect_b64 vcc, -1, 0")
    A(f"s_cselect_b32 s{sXA}, 64, 2048")
    A(f"v_cndmask_b32 v{vRROW}, v{vRES}, v8, vcc")
    A("v_and_b32 v5, 15, v4")
    A("v_lshrrev_b32 v6, 5, v4")
    A("v_lshlrev_b32 v5, 4, v5")
    A("v_lshl_add_u32 v5, v6, 8, v5")
    A("v_bfe_u32 v6, v4, 4, 1")
    A("v_cmp_eq_u32 vcc, 0, v6")
    A(f"v_mov_b32 v7, {LDS_ONES}")
    A(f"v_mov_b32 v8, {LDS_V}")
    A("v_cndmask_b32 v7, v7, v8, vcc")
    A(f"v_add_u32 v{vVA}, v5, v7")
    A("v_mov_b32 v7, 0")
    A("v_mov_b32 v8, 0x2000")
    A(f"v_cndmask_b32 v{vVINC}, v7, v8, vcc")
    A(f"v_mov_b32 v{vIDX}, 0xdddd")
    A("v_bfe_u32 v5, v4, 4, 1")
    A("v_lshlrev_b32 v5, 9, v5")
    A("v_bfe_u32 v6, v4, 3, 1")
    A("v_lshl_add_u32 v5, v6, 8, v5")
    A("v_lshrrev_b32 v6, 5, v4")
    A("v_lshl_add_u32 v5, v6, 7, v5")
    A("v_and_b32 v6, 7, v4")
    A("v_lshl_add_u32 v5, v6, 4, v5")
    A(f"s_lshl_b32 s{sT0}, s{sW}, 10")
    A(f"s_add_u32 s{sT0}, s{sT0}, {LDS_OX}")
    A(f"v_add_u32 v{vOXW}, s{sT0}, v5")
    A("v_lshrrev_b32 v5, 4, v4")
    A("v_lshlrev_b32 v5, 7, v5")
    A("v_lshl_add_u32 v5, v6, 4, v5")
    A(f"v_add_u32 v{vOXR}, {LDS_OX}, v5")
    A("v_lshrrev_b32 v5, 2, v4")
    A("v_and_b32 v6, 3, v4")
    A("v_lshlrev_b32 v6, 2, v6")
    A(f"v_lshl_add_u32 v{vTCH}, v5, 7, v6")
    A(f"v_lshlrev_b32 v{vWFA}, 4, v0")
    A(f"v_add_u32 v{vWFA}, {WS_WFLAG}, v{vWFA}")
    A.wait_vm()
    publish(PH_QKV, sG, "st")
    stamp("qkv_pub")
    A(f"s_cmp_eq_u32 s{sLAYER}, 0")
    A("s_cbranch_scc0 L_NORELAY")
    A(f"s_lshl_b32 s{sT0}, s{sW}, 13")
    A(f"v_add_u32 v4, s{sT0}, v{vL16}")
    for n in range(6):
        A(f"ds_write_b128 v4, {vr(vRAW+4*n)} offset:{n*1024}")
    A("v_and_b32 v5, 63, v0")
    A("v_bfe_u32 v6, v5, 2, 2")
    A("v_and_b32 v8, 1, v5")
    A("v_bfe_u32 v7, v5, 1, 1")
    A("v_lshl_add_u32 v8, v8, 1, v7")
    A(f"s_cmp_ge_u32 s{sWG}, 224")
    A("s_cbranch_scc1 L_RELAY_WO")
    A("v_lshrrev_b32 v7, 5, v5")
    A("v_lshl_add_u32 v6, v7, 3, v6")
    A("v_lshlrev_b32 v6, 7, v6")
    A("v_lshl_add_u32 v6, v8, 3, v6")
    A(f"v_add_u32 v6, s{sT0}, v6")
    A("v_bfe_u32 v7, v5, 4, 1")
    A("v_lshl_add_u32 v8, v7, 11, v6")
    A("v_lshl_add_u32 v9, v7, 5, v6")
    A("s_waitcnt lgkmcnt(0)")
    R0 = 192
    for q in range(4):
        A(f"ds_read_b64_tr_b16 {vr(R0+4*q,2)}, v8 offset:{q*32}")
        A(f"ds_read_b64_tr_b16 {vr(R0+2+4*q,2)}, v8 offset:{q*32+512}")
    for ct in range(2):
        A(f"ds_read_b64_tr_b16 {vr(R0+16+4*ct,2)}, v9 offset:{4096+ct*64}")
        A(f"ds_read_b64_tr_b16 {vr(R0+18+4*ct,2)}, v9 offset:{4096+ct*64+512}")
    A(f"s_lshr_b32 s{sT0}, s{sGW}, 5")
    A(f"s_lshl_b32 s{sT0}, s{sT0}, 17")
    A(f"s_and_b32 s{sT1}, s{sGW}, 31")
    A(f"s_lshl_b32 s{sT1}, s{sT1}, 10")
    A(f"s_add_u32 s{sT0}, s{sT0}, s{sT1}")
    A(f"s_add_u32 s{sT0}, s{sT0}, {hex(WS_WGUT)}")
    A(f"s_and_b32 s{sT1}, s{sGW}, 7")
    A(f"s_mul_i32 s{sT1}, s{sT1}, 112")
    A(f"s_lshr_b32 s{sT2}, s{sGW}, 3")
    A(f"s_add_u32 s{sT1}, s{sT1}, s{sT2}")
    A(f"s_lshl_b32 s{sT1}, s{sT1}, 11")
    A(f"s_add_u32 s{sT1}, s{sT1}, {hex(WS_WDT)}")
    A("s_waitcnt lgkmcnt(0)")
    for q in range(4):
        A(f"buffer_store_dwordx4 {vr(R0+4*q)}, v{vL16}, {srd(rWS)}, s{sT0} offen sc1")
        A(f"s_add_u32 s{sT0}, s{sT0}, 32768")
    for ct in range(2):
        A(f"buffer_store_dwordx4 {vr(R0+16+4*ct)}, v{vL16}, {srd(rWS)}, s{sT1} offen offset:{ct*1024} sc1")
    A("s_branch L_RELAY_PUB")
    A.label("L_RELAY_WO")
    A("v_lshrrev_b32 v7, 4, v5")
    A("v_lshl_add_u32 v6, v7, 3, v6")
    A("v_lshlrev_b32 v6, 7, v6")
    A("v_and_b32 v8, 3, v5")
    A("v_lshl_add_u32 v6, v8, 4, v6")
    A(f"v_add_u32 v6, s{sT0}, v6")
    A("s_waitcnt lgkmcnt(0)")
    for P in range(2):
        for b in range(2):
            q = 2 * P + b
            A(f"ds_read_b64_tr_b16 {vr(R0+4*q,2)}, v6 offset:{P*64+b*8}")
            A(f"ds_read_b64_tr_b16 {vr(R0+2+4*q,2)}, v6 offset:{P*64+b*8+512}")
    A(f"s_sub_u32 s{sT2}, s{sGW}, 896")
    A(f"s_lshr_b32 s{sT0}, s{sT2}, 3")
    A(f"s_lshl_b32 s{sT0}, s{sT0}, 13")
    A(f"s_bfe_u32 s{sT1}, s{sT2}, 0x20001")
    A(f"s_lshl_b32 s{sT1}, s{sT1}, 17")
    A(f"s_add_u32 s{sT0}, s{sT0}, s{sT1}")
    A(f"s_and_b32 s{sT1}, s{sT2}, 1")
    A(f"s_lshl_b32 s{sT1}, s{sT1}, 12")
    A(f"s_add_u32 s{sT0}, s{sT0}, s{sT1}")
    A(f"s_add_u32 s{sT0}, s{sT0}, {hex(WS_WOT)}")
    A("s_waitcnt lgkmcnt(0)")
    for q in range(4):
        A(f"buffer_store_dwordx4 {vr(R0+4*q)}, v{vL16}, {srd(rWS)}, s{sT0} offen offset:{q*1024} sc1")
    A.label("L_RELAY_PUB")
    shareGU = 4 if cfg.t512 else 2
    sTOUCH = 8
    for d, kind in ((8, "gu"), (9, "wd")):
        share = shareGU if kind == "gu" else 4
        A(f"s_lshr_b32 s{d}, s{sI}, {3 if share == 4 else 4}")
        A(f"s_lshl_b32 s{d}, s{d}, 2")
        A(f"s_add_u32 s{d}, s{d}, s{sW}")
        A(f"s_mul_i32 s{d}, s{d}, {7 * 32768 // (4 * share)}")
        A(f"s_mul_i32 s{sT1}, s{sSL if kind == 'gu' else sCB}, {7*32768}")
        A(f"s_add_u32 s{d}, s{d}, s{sT1}")
        A(f"s_add_u32 s{d}, s{d}, {hex(WS_WGUT if kind == 'gu' else WS_WDT)}")
    sGUB = 16; sWOB = 17; sWDB = 20
    A(f"s_mul_i32 s{sGUB}, s{sSL}, {7*32768}")
    A(f"s_lshl_b32 s{sT1}, s{sW}, 13")
    A(f"s_add_u32 s{sGUB}, s{sGUB}, s{sT1}")
    A(f"s_add_u32 s{sGUB}, s{sGUB}, {hex(WS_WGUT)}")
    A(f"s_lshl_b32 s{sWOB}, s{sW}, 17")
    A(f"s_add_u32 s{sWOB}, s{sWOB}, {hex(WS_WOT)}")
    A(f"s_lshl_b32 s{sWDB}, s{sCB}, 2")
    A(f"s_add_u32 s{sWDB}, s{sWDB}, s{sW}")
    A(f"s_mul_i32 s{sWDB}, s{sWDB}, {56*1024}")
    A(f"s_add_u32 s{sWDB}, s{sWDB}, {hex(WS_WDT)}")
    A.label("L_NORELAY")
    for r in range(16):
        A(f"v_mov_b32 v{O[0]+r}, 0")
        A(f"v_mov_b32 v{O[1]+r}, 0")
    stamp("relay")

    sk = A.newlabel("s1"); w1 = A.newlabel("s1q"); go = A.newlabel("s1go")
    A(f"s_lshl_b32 s{sT2}, s{sG}, 13")
    A(f"s_lshl_b32 s{sT1}, s{sW}, 10")
    A(f"s_add_u32 s{sT2}, s{sT2}, s{sT1}")
    A(f"s_cmp_ge_u32 s{sW}, 2")
    A(f"s_cbranch_scc1 {sk}")
    A("v_and_b32 v4, 63, v0")
    A(f"s_cmp_eq_u32 s{sW}, 1")
    A(f"s_cbranch_scc1 {w1}")
    A("v_lshrrev_b32 v5, 1, v4")
    A("v_lshlrev_b32 v5, 3, v5")
    A("v_and_b32 v4, 1, v4")
    A("v_add_u32 v5, v5, v4")
    A(f"s_branch {go}")
    A.label(w1)
    A("v_and_b32 v5, 7, v4")
    A(f"s_lshl_b32 s{sT0}, s{sTB}, 3")
    A(f"v_add_u32 v5, s{sT0}, v5")
    A.label(go)
    A("v_lshlrev_b32 v5, 7, v5")
    A(f"v_add_u32 v5, {hex(flagbase(PH_QKV))}, v5")
    poll(5, "s1")
    A.label(sk)
    A("s_waitcnt lgkmcnt(0)"); A.lg = []
    A("s_barrier")
    stamp("s1")
    A.vm = []
    chunks = [(0, 4), (4, 16), (16, 32), (32, 64)]
    def kv_dma_list(ci):
        t0, t1 = chunks[ci]
        n = (t1 - t0) // 4
        return [(ci, base + t0 * 1024, n, u) for base in (0, 0x10000) for u in range(n)]
    sKV = sT4
    def kv_pre(ent):
        ci, base, n, u = ent
        if u % 4 == 0:
            if ci < 2: A(f"s_mul_i32 s{sT5}, s{sW}, {n*1024}")
            src = sT5 if ci < 2 else (sT0 if ci == 2 else sT1)
            A(f"s_add_u32 m0, s{src}, {base + u*1024}")
            A(f"s_add_u32 s{sKV}, s{src}, {hex(L_KV + base + u*1024)}")
    def kv_dma(ent, pre=True):
        ci, base, n, u = ent
        if pre: kv_pre(ent)
        A.vmem(f"buffer_load_dwordx4 v{vL16}, {srd(rL)}, s{sKV} offen offset:{(u%4)*1024} sc1 lds", f"kv{ci}")
    A.vmem(f"buffer_load_dwordx4 {vr(Q[0])}, v{vL16}, {srd(rL)}, s{sT2} offen sc1", "q0")
    for e in kv_dma_list(0): kv_dma(e)
    for e in kv_dma_list(1): kv_dma(e)
    sWO = sT3
    def wo_base(part):
        A(f"s_add_u32 s{sWO}, s{sWOB}, {hex(part * 0x10000)}")
    def wo_load(f, part):
        A.vmem(f"buffer_load_dwordx4 {ar(4*f)}, v{vL16}, {srd(rWS)}, s{sWO} offen offset:{(f%4)*1024} sc1", f"wo{part}")
    A(f"s_lshl_b32 s{sT0}, s{sW}, 12")
    A(f"s_lshl_b32 s{sT1}, s{sW}, 13")
    kv_pre(kv_dma_list(2)[0])
    A(f"s_add_u32 s{sT2}, s{sT2}, 4096")
    A.wait_vm("kv0")
    A("s_barrier")
    sk = A.newlabel("wpub")
    A(f"s_cmp_lg_u32 s{sW}, 3")
    A(f"s_cbranch_scc1 {sk}")
    A(f"s_lshl_b32 s{sCNT}, s{sWG}, 4")
    A(f"s_add_u32 s{sCNT}, s{sCNT}, {WS_WFLAG}")
    A("v_mov_b32 v4, 0")
    A("s_mov_b64 exec, 1")
    A(f"buffer_store_dword v{vTAG}, v4, {srd(rWS)}, s{sCNT} offen sc1")
    A("s_mov_b64 exec, -1")
    A.label(sk)
    stamp("att_kv0")
    def rdK(n): A.ds(f"ds_read_b128 {vr(KB[n%2])}, v{vL16} offset:{(n%64)*1024}", f"K{n}")
    def rdV(n):
        A.ds(f"ds_read_b128 {vr(V0[n%2])}, v{vVA} offset:{(n%8)*1024}", f"V{n}")
        A.ds(f"ds_read_b128 {vr(V1[n%2])}, v{vVA} offset:{(n%8)*1024+512}", f"V{n}")
    def qk(n): A(f"v_mfma_f32_32x32x16_bf16 {vr(S[n%2],16)}, {vr(KB[n%2])}, {vr(Q[n//64])}, 0")
    rdK(0); rdK(1); rdV(0)
    A.wait_lg("K0")
    qk(0)
    def finalize_O(p):
        o = O[p]
        fb = f"L_FB{p}"; bk = f"L_FBR{p}"
        L = []
        L.append(lambda: A(f"v_add_u32 v4, {hex((0x100000000 - 0x21800000) & 0xffffffff)}, v{o+8}"))
        L.append(lambda: A(f"v_cmp_lt_u32 vcc, 0x3c000000, v4"))
        L.append(lambda: (A(f"s_cbranch_vccnz {fb}"), A.label(bk), A(f"v_rcp_f32 v4, v{o+8}")))
        for r in range(8):
            L.append(lambda r=r: A(f"v_mul_f32 v{o+r}, v4, v{o+r}"))
        for r in range(4):
            L.append(lambda r=r: A(f"v_cvt_pk_bf16_f32 v{8+r}, v{o+2*r}, v{o+2*r+1}"))
        L.append(lambda: A.ds(f"ds_write_b128 v{vOXW}, v[8:11] offset:{p*4096}", "oxw"))
        return L
    def oproj_mfma(f, part):
        jl, ctl = f // 8, f % 8
        Pp, b = ctl // 2, ctl % 2
        c = vr(vPA + 4 * ctl)
        if part == 0 and jl == 0: c = vr(vZ + 8 * (Pp % 2) + 4 * b)
        A.wait_lg(f"of{part}_{jl}")
        A(f"v_mfma_f32_16x16x32_bf16 {vr(vPA+4*ctl)}, {ar(4*f)}, {vr(vOF[jl%2])}, {c}")
    def of_read(part, jl): A.ds(f"ds_read_b128 {vr(vOF[jl%2])}, v{vOXR} offset:{part*4096 + jl*512}", f"of{part}_{jl}")
    sGU = sT4
    def gu_pre(tile, u):
        if u % 4: return
        if tile == 4:
            A(f"s_lshl_b32 m0, s{sW}, 13"); A(f"s_add_u32 m0, m0, {0x20000 + u * 1024}")
        else: A(f"s_add_u32 m0, s{sGUL}, {(tile % 5) * 16384 + u * 1024}")
        A(f"s_add_u32 s{sGU}, s{sGUB}, {tile * 32768 + u * 1024}")
    def gu_dma(tile, u, pre=True):
        if pre: gu_pre(tile, u)
        A.vmem(f"buffer_load_dwordx4 v{vL16}, {srd(rWS)}, s{sGU} offen offset:{(u%4)*1024} sc1 lds", f"gu{tile}")
    def gu_addr(j, s):
        if j == 4: return 0x20000 + s * 1024
        return (j % 5) * 16384 + (s // 16) * 0x10000 + (s % 16) * 1024

    postqk = {n: [] for n in range(128)}
    valu = {n: [] for n in range(128)}
    m16 = {n: [] for n in range(128)}
    pre_reads = {n: [] for n in range(128)}
    postsm1 = {n: [] for n in range(128)}
    first = [lambda: A.vmem(f"buffer_load_dword v{vWFL}, v{vWFA}, {srd(rWS)}, 0 offen sc1", "wfl"),
             lambda: A.vmem(f"buffer_load_dwordx4 {vr(Q[1])}, v{vL16}, {srd(rL)}, s{sT2} offen sc1", "q1")]
    dle = kv_dma_list(2) + kv_dma_list(3)
    dl = [(lambda e=e: kv_dma(e, False)) for e in dle]
    last = [lambda: A.vmem(f"buffer_load_dwordx4 {vr(vZR)}, v{vRROW}, {srd(rXIN)}, 0 offen sc1", "res"),
            lambda: A.vmem(f"buffer_load_dwordx4 {vr(vZR+4)}, v{vRROW}, {srd(rXIN)}, s{sXA} offen sc1", "res")]
    for k, th in enumerate(dl + last + first[::-1]): postqk[k // 2].append(th)
    for k, e in enumerate(dle):
        n_ = k // 2
        if e[3] % 4 == 0 and n_ > 0: postsm1[n_ - 1].append(lambda e=e: kv_pre(e))
    def bar(tags):
        def f():
            A.wait_vm(tags); A("s_barrier")
        return f
    for ci in (1, 2, 3):
        pre_reads[chunks[ci][0] - 2].append(bar(f"kv{ci}"))
    W0 = cfg.wo0
    pre_reads[W0].insert(0, lambda: (check_or_spin(vWFL, vWFA, rWS, "wfl", "wfl"), A("s_barrier")))
    postsm1[W0 - 1].append(lambda: wo_base(0))
    for f in range(64):
        postqk[W0 + f // 2].append(lambda f=f: wo_load(f, 0))
        if f % 4 == 3 and f < 63: postsm1[W0 + f // 2].append(lambda: A(f"s_add_u32 s{sWO}, s{sWO}, 4096"))
    def touch(m):
        A.vmem(f"buffer_load_dword v{vJUNK}, v{vTCH}, {srd(rWS)}, s{sT0} offen offset:{(m % 2) * 2048} sc1", "touch")
    tl = ([(8, m) for m in range(28 // shareGU)] if cfg.warm_gu else []) + ([(9, m) for m in range(7)] if cfg.warm_wd else [])
    for k_, (d, m) in enumerate(tl):
        n_ = cfg.warm0 + (k_ * cfg.warm_span) // len(tl)
        if m % 2 == 0: postsm1[n_ - 1].append(lambda d=d, m=m: A(f"s_add_u32 s{sT0}, s{d}, {m * 2048}"))
        postqk[n_].append(lambda m=m: touch(m))
    valu[55].append(lambda: A.wait_vm("res"))
    for k in range(16):
        valu[56 + k // 4].append(lambda k=k: unpack(vZ, vZR, k))
    fin0 = finalize_O(0)
    for k, th in enumerate(fin0[:-1]):
        valu[65 if k < 9 else 66].append(th)
    postqk[67].append(fin0[-1])
    def ox_bar():
        A.wait_lg("oxw"); A.wait_vm("wo0"); A("s_barrier")
    pre_reads[68].append(ox_bar)
    postqk[68].append(lambda: of_read(0, 0))
    postsm1[69].append(lambda: wo_base(1))
    for f in range(64):
        n = 69 + f // 2
        m16[n].append(lambda f=f: oproj_mfma(f, 0))
        postqk[n + 1].append(lambda f=f: wo_load(f, 1))
        if f % 4 == 3 and f < 63: postsm1[n + 1].append(lambda: A(f"s_add_u32 s{sWO}, s{sWO}, 4096"))
        if f % 8 == 0 and f // 8 + 1 < 8:
            postqk[n + 1].append(lambda f=f: of_read(0, f // 8 + 1))
    for j, (nb, n0) in enumerate(cfg.gu_att):
        assert nb >= 64 + 16 * (j + 1) and n0 >= nb
        if j == 0 or cfg.gu_att[j - 1][0] != nb: pre_reads[nb].append(lambda: A("s_barrier"))
        for u in range(8):
            postqk[n0 + u // 2].append(lambda j=j, u=u: gu_dma(j, u, False))
            if u % 4 == 0: postsm1[n0 + u // 2 - 1].append(lambda j=j, u=u: gu_pre(j, u))
    for n in range(128):
        cur, nxt = S[n % 2], S[(n + 1) % 2]
        e = lambda i: A(f"v_exp_f32 v{cur+i}, v{cur+i}")
        e(0); e(1); e(2)
        if n > 0:
            A(f"v_smfmac_f32_32x32x32_bf16 {vr(O[(n-1)//64],16)}, {vr(V1[(n-1)%2])}, {vr(nxt+8,8)}, v{vIDX}")
        A.wait_lg([f"K{n+1}", f"V{n}"])
        e(3); e(4); e(5)
        if n < 127:
            if n + 1 == 64: A.wait_vm("q1")
            qk(n + 1)
        for th in pre_reads[n]: th()
        if n + 2 < 128: rdK(n + 2)
        if n + 1 < 128: rdV(n + 1)
        for th in postqk[n]: th()
        e(6); e(7); e(8)
        if len(m16[n]) > 0: m16[n][0]()
        e(9); e(10)
        A(f"v_smfmac_f32_32x32x32_bf16 {vr(O[n//64],16)}, {vr(V0[n%2])}, {vr(cur,8)}, v{vIDX}")
        for th in postsm1[n]: th()
        e(11); e(12)
        for th in valu[n]: th()
        if n % 8 == 6 and n < 126:
            if n == 62:
                A(f"v_mul_u32_u24 v5, 7, v{vVINC}"); A(f"v_sub_u32 v{vVA}, v{vVA}, v5")
            else: A(f"v_add_u32 v{vVA}, v{vVA}, v{vVINC}")
        e(13)
        if len(m16[n]) > 1: m16[n][1]()
        e(14); e(15)
    A("s_nop 1")
    A(f"v_smfmac_f32_32x32x32_bf16 {vr(O[1],16)}, {vr(V1[1])}, {vr(S[1]+8,8)}, v{vIDX}")
    vY = 16
    A("v_and_b32 v12, 63, v0")
    A("v_bfe_u32 v5, v12, 3, 1")
    A(f"v_cmp_eq_u32 s[{sM0}:{sM0+1}], 0, v5")
    A("v_and_b32 v6, 7, v12")
    A(f"s_lshl_b32 s{sT0}, s{sW}, 3")
    A(f"s_add_u32 s{sT0}, s{sT0}, {LDS_LNX}")
    A(f"v_lshl_add_u32 v13, v6, 5, s{sT0}")
    A(f"v_lshlrev_b32 v6, 5, v6")
    A(f"v_add_u32 v14, {LDS_LNX}, v6")
    stamp("att_main")
    for th in finalize_O(1): th()
    A.wait_lg()
    A.wait_vm(["wo1"] + [f"gu{t}" for t in range(len(cfg.gu_att))])
    A("s_barrier")
    ngu_att = len(cfg.gu_att)
    gul = [(t, u) for t in range(ngu_att, 4) for u in range(8)]
    wdl = list(range(56))
    def wd_load():
        f = wdl.pop(0)
        if f == 0: A(f"s_mov_b32 s{sWDO}, s{sWDB}")
        elif f % 4 == 0: A(f"s_add_u32 s{sWDO}, s{sWDO}, 4096")
        A.vmem(f"buffer_load_dwordx4 {ar(4*f)}, v{vL16}, {srd(rWS)}, s{sWDO} offen offset:{(f%4)*1024} sc1", "wd")
    vOF8 = 208
    for jl in range(8): A.ds(f"ds_read_b128 {vr(vOF8+4*jl)}, v{vOXR} offset:{4096 + jl*512}", f"og{jl}")
    def stat_ops(t):
        L = []
        for k in range(4 * t, 4 * t + 4):
            L.append(lambda k=k: A(f"v_cndmask_b32 v{vY+k}, v{vPA+16+k}, v{vPA+k}, s[{sM0}:{sM0+1}]"))
        for k in range(4 * t, 4 * t + 4):
            if k == 0:
                L.append(lambda: A(f"v_mov_b32 v8, v{vY}")); L.append(lambda: A(f"v_mul_f32 v9, v{vY}, v{vY}"))
            else:
                L.append(lambda k=k: A(f"v_add_f32 v8, v8, v{vY+k}")); L.append(lambda k=k: A(f"v_fmac_f32 v9, v{vY+k}, v{vY+k}"))
        return L
    def pack_ops(t):
        return [(lambda k=k: A(f"v_cvt_pk_bf16_f32 v{vY+16+k}, v{vY+2*k}, v{vY+2*k+1}")) for k in (2 * t, 2 * t + 1)]
    pend = []; nm = 0; done_f = set()
    groups = [(0, 4, 1, 5), (2, 6), (3, 7)]
    for gi, grp in enumerate(groups):
        for jl in range(8):
            for ci, ctl in enumerate(grp):
                f = jl * 8 + ctl
                A.wait_lg(f"og{jl}")
                A(f"v_mfma_f32_16x16x32_bf16 {vr(vPA+4*ctl)}, {ar(4*f)}, {vr(vOF8+4*jl)}, {vr(vPA+4*ctl)}")
                done_f.add(f); nm += 1
                if nm % 5 == 2 and nm < cfg.op_vm * 5:
                    if gul: gu_dma(*gul.pop(0))
                    elif wdl[0] in done_f and wdl[0] != f: wd_load()
                elif pend and (jl > 1):
                    pend.pop(0)()
                    if pend: pend.pop(0)()
        for t in grp:
            if t < 4: pend += stat_ops(t) + (pack_ops(t) if gi < 2 else [])
    stamp("att_oproj")
    while pend: pend.pop(0)()
    A("s_nop 0")
    A(f"v_add_f32_dpp v8, v8, v8 row_ror:8 row_mask:0xf bank_mask:0xf")
    A(f"v_add_f32_dpp v9, v9, v9 row_ror:8 row_mask:0xf bank_mask:0xf")
    for sw in ("v_permlane16_swap_b32", "v_permlane32_swap_b32"):
        A("v_mov_b32 v10, v8")
        A("v_mov_b32 v11, v9")
        A("s_nop 0")
        A(f"{sw} v8, v10")
        A(f"{sw} v9, v11")
        A("v_add_f32 v8, v8, v10")
        A("v_add_f32 v9, v9, v11")
    A("s_mov_b64 exec, 0xff")
    A.ds("ds_write_b64 v13, v[8:9]")
    A("s_mov_b64 exec, -1")
    for th in pack_ops(3): th()
    A.wait_lg()
    A("s_barrier")
    A.ds("ds_read_b128 v[40:43], v14")
    A.ds("ds_read_b128 v[44:47], v14 offset:16")
    A(f"s_mov_b32 s{sT1}, {hex(f32(1.0/512))}")
    A.wait_lg()
    A("v_add_f32 v8, v40, v42")
    A("v_add_f32 v9, v41, v43")
    A("v_add_f32 v10, v44, v46")
    A("v_add_f32 v11, v45, v47")
    A("v_add_f32 v8, v8, v10")
    A("v_add_f32 v9, v9, v11")
    A(f"v_mul_f32 v8, s{sT1}, v8")
    A(f"v_mul_f32 v9, s{sT1}, v9")
    A("v_fma_f32 v9, -v8, v8, v9")
    A("v_max_f32 v9, 0, v9")
    A(f"v_add_f32 v9, {hex(f32(1e-5))}, v9")
    A("v_rsq_f32 v9, v9")
    A(f"s_mov_b32 s{sT1}, {hex(L_XN1)}")
    A("v_mul_f32 v8, v8, v9")
    for k in range(16):
        A(f"v_fma_f32 v{vY+k}, v{vY+k}, v9, -v8")
        if k % 2 == 1: A(f"v_cvt_pk_bf16_f32 v{40+k//2}, v{vY+k-1}, v{vY+k}")
        if k == 7: A.vmem(f"buffer_store_dwordx4 v[40:43], v{vRES}, {srd(rL)}, s{sT1} offen sc1", "st")
    A.vmem(f"buffer_store_dwordx4 v[44:47], v{vRES}, {srd(rL)}, s{sT1} offen offset:2048 sc1", "st")
    A(f"s_mov_b32 s{sT1}, {hex(L_X1)}")
    A.vmem(f"buffer_store_dwordx4 {vr(vY+16)}, v{vRES}, {srd(rL)}, s{sT1} offen sc1", "st")
    A.vmem(f"buffer_store_dwordx4 {vr(vY+20)}, v{vRES}, {srd(rL)}, s{sT1} offen offset:2048 sc1", "st")
    gul += [(4, u) for u in range(7)]
    for _ in range(cfg.ack_vm):
        if gul: gu_dma(*gul.pop(0))
        else: wd_load()
    vTKV_, aTK = 160, 224; ACC = [16, 32, 48, 64]; vWB = 80; NWB = 5; vHP = 120; vX1R = 128; vHA = 8
    vSB = [vL16, 9, 10]; vFE = 12; vFF = 13; vFR = 14
    def tk(s): return vr(vTKV_ + 4 * s) if s < 24 else ar(aTK + 4 * (s - 24))
    A("v_and_b32 v7, 3, v0")
    A(f"s_lshl_b32 s{sT0}, s{sBLK}, 2")
    A(f"s_add_u32 s{sT0}, s{sT0}, s{sW}")
    A(f"s_lshl_b32 s{sT1}, s{sT0}, 2")
    A(f"s_lshl_b32 s{sHO}, s{sT1}, 7")
    A(f"s_add_u32 s{sHO}, s{sHO}, {hex(flagbase(PH_ATT))}")
    A(f"v_add_u32 v{vSB[1]}, 0x10000, v{vL16}")
    A(f"v_add_u32 v{vSB[2]}, 0x20000, v{vL16}")
    A(f"s_mul_i32 s{sT2}, s{sT0}, 112")
    A(f"s_mul_i32 s{sT1}, s{sSL}, 7")
    A(f"s_add_u32 s{sT2}, s{sT2}, s{sT1}")
    A(f"s_lshl_b32 s{sT2}, s{sT2}, 10")
    A(f"s_add_u32 s{sT2}, s{sT2}, {hex(L_H)}")
    A(f"v_add_u32 v{vHA}, s{sT2}, v{vL16}")
    A(f"s_lshl_b32 s{sT0}, s{sT0}, 15")
    A(f"s_add_u32 s{sT0}, s{sT0}, {hex(L_XN1)}")
    A(f"s_lshr_b32 s{sT1}, s{sTB}, 1")
    A(f"s_lshl_b32 s{sT1}, s{sT1}, 2")
    A(f"s_add_u32 s{sT1}, s{sT1}, s{sW}")
    A(f"s_lshl_b32 s{sT1}, s{sT1}, 2")
    A(f"v_add_u32 v7, s{sT1}, v7")
    A("v_lshlrev_b32 v7, 7, v7")
    A(f"v_add_u32 v{vFE}, {hex(flagbase(PH_FF1E))}, v7")
    A(f"s_lshl_b32 s{sXB}, s{sT1}, 7")
    A(f"s_add_u32 s{sXB}, s{sXB}, {hex(flagbase(PH_FF1))}")
    publish(PH_ATT, sG, "st")
    stamp("att_pub")
    while gul: gu_dma(*gul.pop(0))
    gu_dma(4, 7)
    for _ in range(cfg.wd_s2): wd_load()
    assert ngu_att == 3

    s_spin(rL, sHO, 4, "s2")
    stamp("s2")
    def tk_load(s):
        if s % 4 == 0 and s: A(f"s_add_u32 s{sT0}, s{sT0}, 4096")
        A.vmem(f"buffer_load_dwordx4 {tk(s)}, v{vL16}, {srd(rL)}, s{sT0} offen offset:{(s%4)*1024} sc1", f"tk{s}")
    seq = [(j, s) for s in range(32) for j in range(3)] + [(j, s) for j in range(3, 7) for s in range(32)]
    acc_of = {0: 0, 1: 1, 2: 2, 3: 3, 4: 0, 5: 1, 6: 2}
    def w_read(k):
        off = gu_addr(*seq[k])
        A.ds(f"ds_read_b128 {vr(vWB+4*(k%NWB))}, v{vSB[off>>16]} offset:{off & 0xffff}", f"wb{k}")
    def h_epi(j):
        a = ACC[acc_of[j]]
        L = []
        for r in range(8):
            L.append(lambda r=r: A(f"v_max_f32 v{a+r}, 0, v{a+r}"))
            L.append(lambda r=r: A(f"v_mul_f32 v{a+r}, v{a+r}, v{a+8+r}"))
            if r % 2 == 1: L.append(lambda r=r: A(f"v_cvt_pk_bf16_f32 v{vHP+4*(j%2)+r//2}, v{a+r-1}, v{a+r}"))
        L.append(lambda: A.vmem(f"buffer_store_dwordx4 {vr(vHP+4*(j%2))}, v{vHA}, {srd(rL)}, s{sT1} offen offset:{(j%4)*1024} sc1", f"hst{j}"))
        return L
    extras = {k: [] for k in range(len(seq))}
    LOOK = NWB - 1
    k3 = 96
    NTK0 = cfg.tk0
    for s in range(NTK0): tk_load(s)
    for s in range(NTK0, 32): extras[(s - NTK0) * 2].append(lambda s=s: tk_load(s))
    ep = h_epi(0) + h_epi(1) + h_epi(2) + h_epi(3)
    for n, th in enumerate(ep): extras[k3 + 3 + (2 * n) // 3].append(th)
    for j in (4, 5):
        for n, th in enumerate(h_epi(j)): extras[k3 + 32 * (j - 2) + 3 + n // 2].append(th)
    g56 = [(5, u) for u in range(8)] + [(6, u) for u in range(8)]
    for n, e in enumerate(g56):
        extras[k3 + cfg.g56 * n].append(lambda e=e: gu_pre(*e))
        extras[k3 + 1 + cfg.g56 * n].insert(0, lambda e=e: gu_dma(*e, False))
    def x1_load():
        A(f"s_lshl_b32 s{sT0}, s{sTB}, 6")
        A(f"s_lshl_b32 s{sT2}, s{sCB}, 2")
        A(f"s_add_u32 s{sT0}, s{sT0}, s{sT2}")
        A(f"s_and_b32 s{sT2}, s{sW}, 1")
        A(f"s_lshl_b32 s{sT2}, s{sT2}, 1")
        A(f"s_add_u32 s{sT0}, s{sT0}, s{sT2}")
        A(f"s_lshr_b32 s{sT2}, s{sW}, 1")
        A(f"s_add_u32 s{sT0}, s{sT0}, s{sT2}")
        A(f"s_lshl_b32 s{sT0}, s{sT0}, 10")
        A(f"s_add_u32 s{sT0}, s{sT0}, {hex(L_X1)}")
        A(f"s_add_u32 s{sT2}, s{sT0}, 32768")
    split_later = [(x1_load, 82, 2)]
    extras[k3 + 50].append(lambda: A.vmem(f"buffer_load_dwordx4 {vr(vX1R)}, v{vL16}, {srd(rL)}, s{sT0} offen sc1", "x1"))
    extras[k3 + 53].append(lambda: A.vmem(f"buffer_load_dwordx4 {vr(vX1R+4)}, v{vL16}, {srd(rL)}, s{sT2} offen sc1", "x1"))
    slots = list(range((32 - NTK0) * 2 + 1, k3 - 2, 3))
    ntail = len(wdl) - len(slots)
    slots += [k3 + 58 + (n * (122 - 58)) // max(ntail, 1) for n in range(ntail)]
    nrem = len(wdl)
    assert len(slots) >= nrem, (len(slots), nrem)
    for n in range(nrem): extras[slots[n]].append(wd_load)
    def early_pub():
        A.wait_vm("hst4"); A("s_barrier"); flag_store(PH_FF1E, sID1)
    extras[k3 + cfg.epub].append(early_pub)
    extras[k3 + cfg.epoll].append(lambda: A.vmem(f"buffer_load_dword v{vFR}, v{vFE}, {srd(rL)}, 0 offen sc1", "fe"))
    def h_base():
        A(f"s_mul_i32 s{sHO}, s{sTB}, 224")
        A(f"s_mul_i32 s{sHS}, s{sW}, 28")
        A(f"s_add_u32 s{sHO}, s{sHO}, s{sHS}")
        A(f"s_lshl_b32 s{sHO}, s{sHO}, 10")
        A(f"s_add_u32 s{sHO}, s{sHO}, {hex(L_H)}")
    extras[k3 + 116].append(h_base)
    AC = [[16, 32], [48, 64]]; vHR = 156; NHR = 19; vRT = 232; vOA = 152; vRW = 153; vRR = 154; vRS = 136
    def ffn2_addrs():
        A(f"s_lshl_b32 s{sT0}, s{sW}, 11")
        A(f"v_add_u32 v{vRW}, s{sT0}, v{vL16}")
        A(f"s_lshl_b32 s{sT0}, s{sW}, 13")
        A(f"v_add_u32 v{vRR}, s{sT0}, v{vL16}")
        A(f"s_and_b32 s{sT3}, s{sW}, 1")
        A(f"s_lshl_b32 s{sT3}, s{sT3}, 1")
        A(f"s_lshr_b32 s{sT2}, s{sW}, 1")
        A(f"s_add_u32 s{sT3}, s{sT3}, s{sT2}")
        A(f"s_lshl_b32 s{sT2}, s{sCB}, 2")
        A(f"s_add_u32 s{sT3}, s{sT3}, s{sT2}")
        A(f"s_lshl_b32 s{sT0}, s{sTB}, 16")
        A(f"s_cmp_eq_u32 s{sLAYER}, 0")
        A("s_cselect_b64 vcc, -1, 0")
        A(f"s_cselect_b32 s{sT2}, 10, 5")
        A(f"s_lshl_b32 s{sT3}, s{sT3}, s{sT2}")
        A(f"s_add_u32 s{sT0}, s{sT0}, s{sT3}")
        A("v_and_b32 v6, 31, v0")
        A("v_bfe_u32 v7, v0, 5, 1")
        A("v_lshlrev_b32 v6, 10, v6")
        A("v_lshl_add_u32 v6, v7, 4, v6")
        A(f"v_cndmask_b32 v6, v6, v{vL16}, vcc")
        A(f"v_add_u32 v{vOA}, s{sT0}, v6")
    def split(fn, k0, per):
        B = A.L; A.L = []; fn(); ins = A.L; A.L = B
        units = []
        for ln in ins:
            if ln.startswith("s_cselect"): units[-1].append(ln)
            else: units.append([ln])
        for n in range(0, len(units), per):
            extras[k0 + n // per].append(lambda part=sum(units[n:n + per], []): A.L.extend(part))
    for e in split_later: split(*e)
    split(ffn2_addrs, 60, 2)
    split(w_dma_setup, 74, 2)
    for k_ in range(16): extras[k3 + cfg.epub + 1 + k_ // 2].append(lambda k_=k_: unpack(vRS + 8 * (k_ // 8), vX1R + 4 * (k_ // 8), k_ % 8))

    A(f"s_mov_b32 s{sT1}, 0")
    for k in range(LOOK): w_read(k)
    for k, (j, s) in enumerate(seq):
        if k == 0: A.wait_vm("tk0"); A.wait_lg("wb0")
        a = ACC[acc_of[j]]
        A(f"v_mfma_f32_32x32x16_bf16 {vr(a,16)}, {vr(vWB+4*(k%NWB))}, {tk(s)}, {vr(a,16) if s else 0}")
        if k + 1 < len(seq):
            A.wait_lg(f"wb{k+1}")
            if k + 1 < k3 and seq[k + 1][0] == 0: A.wait_vm(f"tk{seq[k+1][1]}")
        if k == k3: A("s_barrier")
        kn = k + LOOK
        if kn < len(seq):
            if kn == k3:
                A.wait_vm(["gu3", "gu4"]); A("s_barrier")
            if kn == k3 + 64:
                A.wait_vm(["gu5", "gu6"]); A("s_barrier")
            w_read(kn)
        if k in (2, k3 - 1, k3 + 63): fstamp(f"f1_k{k}")
        if k == k3 + 64: A(f"s_mov_b32 s{sT1}, 4096")
        for th in extras[k]: th()
    assert not wdl
    for th in h_epi(6): th()
    stamp("ffn1_mm")

    early = [7 * sl + j for sl in range(4) for j in range(5)]; late = [7 * sl + j for sl in range(4) for j in (5, 6)]
    ne = cfg.e1
    order = [(0, k) for k in early] + [(1, k) for k in early[:ne]] + [(0, k) for k in late] + [(1, k) for k in early[ne:]] + [(1, k) for k in late]
    nlate = 20 + ne; nA = 28 + ne
    def h_load(n):
        tt, k = order[n]
        A(f"s_add_u32 s{sHS}, s{sHO}, {tt*112*1024 + (k // 4) * 4096}")
        A.vmem(f"buffer_load_dwordx4 {vr(vHR+4*(n%NHR))}, v{vL16}, {srd(rL)}, s{sHS} offen offset:{(k%4)*1024} sc1", f"h{n}")
    NH0 = cfg.h0
    slow = A.newlabel("eslow"); join = A.newlabel("ejoin")
    A.wait_vm("fe")
    A(f"v_cmp_ne_u32 vcc, v{vFR}, v{vTAG}")
    A(f"s_cbranch_vccnz {slow}")
    sv = list(A.vm)
    for n in range(NH0): h_load(n)
    publish(PH_FF1, sID1, "hst6")
    A(f"s_branch {join}")
    A.label(slow)
    after = list(A.vm); A.vm = sv
    publish(PH_FF1, sID1, "hst6")
    spin(vFE, rL, "s3e", vFR); A.vm = []
    for n in range(NH0): h_load(n)
    assert A.vm == after
    A.label(join)
    stamp("ffn1_pub")
    def red_write(tt):
        L = []
        for own in range(4):
            a = AC[tt][own % 2] + 8 * (own // 2)
            for h in range(2):
                L.append(lambda a=a, own=own, h=h: A.ds(f"ds_write_b128 v{vRW}, {vr(a+4*h)} offset:{tt*32768 + own*8192 + h*1024}", f"rw{tt}"))
        return L
    def out_store(tt):
        A(f"s_mov_b32 s{sT2}, {tt*32768}")
        A.vmem(f"buffer_store_dwordx4 {vr(92+4*tt)}, v{vOA}, {srd(rOUT)}, s{sT2} offen sc1", "ost")
    def red_final(tt):
        L = []
        for src in range(4):
            for h in range(2):
                d = (vRT + 8 * src + 4 * h) if src < 3 else (84 + 4 * h)
                L.append(lambda src=src, h=h, d=d: A.ds(f"ds_read_b128 {vr(d)}, v{vRR} offset:{tt*32768 + src*2048 + h*1024}", f"rr{tt}"))
        L.append(lambda: A.wait_lg(f"rr{tt}"))
        for r in range(8):
            L.append(lambda r=r: A(f"v_add_f32 v{vRT+r}, v{vRT+r}, v{vRT+8+r}"))
            L.append(lambda r=r: A(f"v_add_f32 v{84+r}, v{84+r}, v{vRT+16+r}"))
            L.append(lambda r=r: A(f"v_add_f32 v{vRT+r}, v{vRT+r}, v{vRS+8*tt+r}"))
        for r in range(8):
            L.append(lambda r=r: A(f"v_add_f32 v{vRT+r}, v{vRT+r}, v{84+r}"))
            if r % 2 == 1: L.append(lambda r=r: A(f"v_cvt_pk_bf16_f32 v{92+4*tt+r//2}, v{vRT+r-1}, v{vRT+r}"))
        L.append(lambda: out_store(tt))
        return L
    def red_last():
        dn = A.newlabel("rl")
        labs = [A.newlabel("rlw") for _ in range(4)]
        A("s_nop 9")
        A(f"s_cmp_eq_u32 s{sW}, 1"); A(f"s_cbranch_scc1 {labs[1]}")
        A(f"s_cmp_eq_u32 s{sW}, 2"); A(f"s_cbranch_scc1 {labs[2]}")
        A(f"s_cmp_eq_u32 s{sW}, 3"); A(f"s_cbranch_scc1 {labs[3]}")
        for wv in range(4):
            A.label(labs[wv])
            for own in [(wv + d) % 4 for d in (2, 1, 3)]:
                a = AC[1][own % 2] + 8 * (own // 2)
                for h in range(2):
                    A(f"ds_write_b128 v{vL16}, {vr(a+4*h)} offset:{32768 + own*8192 + ((wv - own) % 4)*2048 + h*1024}")
            a = AC[1][wv % 2] + 8 * (wv // 2)
            for r in range(8): A(f"v_add_f32 v{84+r}, v{a+r}, v{vRS+8+r}")
            if wv < 3: A(f"s_branch {dn}")
        A.label(dn)
        A.wait_lg(); A.wait_vm("wq0")
        A("s_barrier")
        for src in range(3):
            for h in range(2):
                A.ds(f"ds_read_b128 {vr(vRT + 8*src + 4*h)}, v{vRR} offset:{32768 + (src+1)*2048 + h*1024}", f"r{src}")
        for src in range(3):
            A.wait_lg(f"r{src}")
            for r in range(8):
                A(f"v_add_f32 v{84+r}, v{84+r}, v{vRT+8*src+r}")
                if src == 2 and r % 2 == 1: A(f"v_cvt_pk_bf16_f32 v{96+r//2}, v{84+r-1}, v{84+r}")
        out_store(1)
    ex2 = {n: [] for n in range(56)}
    for i_, th in enumerate(red_write(0)): ex2[nA + 1 + i_ // 3].append(th)
    def rbar():
        A.wait_lg("rw0"); A("s_barrier")
    ex2[nA + 5].append(rbar)
    rf = red_final(0)
    for i_, th in enumerate(rf): ex2[min(nA + 5 + i_ // 8, 55)].append(th)
    wl = [(c, n) for c in range(4) for n in range(5)]
    nxt_load = NH0
    ahead = cfg.h_ahead
    for n in range(56):
        tt, k = order[n]
        if n == 0: A.wait_vm("h0")
        for ct in range(2):
            A(f"v_mfma_f32_32x32x16_bf16 {vr(AC[tt][ct],16)}, {ar(4*(2*k+ct))}, {vr(vHR+4*(n%NHR))}, {vr(AC[tt][ct],16) if n not in (0, 20) else 0}")
            if ct == 1 and n < 55: A.wait_vm(f"h{n+1}")
            if nxt_load < 56 and nxt_load <= n + min(ahead, NHR - 1):
                if nxt_load == nlate:
                    if n < cfg.fchk: continue
                    s_spin(rL, sXB, 4, "s3f", issued=True)
                h_load(nxt_load); nxt_load += 1
            elif nxt_load == 56 and ct == 0 and len(wl) > cfg.w_tail:
                w_dma(*wl.pop(0))
        if n == cfg.fpos: s_issue(rL, sXB, 4)
        if n in (0, 19, nA - 1): fstamp(f"f2_n{n}")
        for th in ex2[n]: th()
    assert nxt_load == 56
    stamp("ffn2_mm")
    red_last()
    A(f"s_cmp_eq_u32 s{sLAYER}, 0")
    A("s_cbranch_scc0 L_FINISH")
    while wl: w_dma(*wl.pop(0))
    A(f"s_mov_b32 s{rXIN}, s{rOUT}")
    A(f"s_mov_b32 s{rXIN+1}, s{rOUT+1}")
    A(f"s_mov_b32 s{sXST}, 2048")
    A(f"s_lshl_b32 s{sT0}, s{sTB}, 16")
    A(f"s_lshr_b32 s{sT1}, s{sW}, 1")
    A(f"s_lshl_b32 s{sT1}, s{sT1}, 15")
    A(f"s_add_u32 s{sT0}, s{sT0}, s{sT1}")
    A(f"s_and_b32 s{sT1}, s{sW}, 1")
    A(f"s_lshl_b32 s{sT1}, s{sT1}, 10")
    A(f"s_add_u32 s{sT0}, s{sT0}, s{sT1}")
    A(f"v_add_u32 v{vXS}, s{sT0}, v{vL16}")
    qkv_addrs(False)
    def tr_block(c):
        t = tr_reads(c)
        for th in guarded(t[:16]): th()
        sk = A.newlabel("trkv")
        A(f"s_cmp_ge_u32 s{sCB}, 2")
        A(f"s_cbranch_scc1 {sk}")
        A.wait_lg()
        for th in t[16:]: th()
        A.label(sk)
        A.wait_lg()
    tr_block(0)
    assert A.vm_n("wq1") > A.vm_n("ost")
    publish(PH_FF2, sG, "ost")
    stamp("ffn2_pub")
    tr_block(1)
    A.wait_vm()
    A("s_barrier")
    tr_block(2)
    A(f"s_lshl_b32 s{sHO}, s{sTB}, 10")
    A(f"s_add_u32 s{sHO}, s{sHO}, {hex(WS_L0 + flagbase(PH_FF2))}")
    A(f"s_mov_b32 s{rWS+2}, {hex(WS_L0 + LSTRIDE)}")
    tr_block(3)
    A(f"s_mov_b32 s{sLAYER}, 1")
    A(f"s_add_u32 s{rL}, s{rL}, {hex(LSTRIDE)}")
    A(f"s_addc_u32 s{rL+1}, s{rL+1}, 0")
    A(f"s_mov_b32 s{rOUT}, s{P_OUT}")
    A(f"s_mov_b32 s{rOUT+1}, s{P_OUT+1}")
    A("s_branch L_LAYER1")

    A.label("L_FINISH")
    stamp("finish")
    if cfg.prof:
        A(f"s_lshl_b32 s{sT0}, s{sGW}, 8")
        A(f"s_add_u32 s{sT0}, s{sT0}, {hex(WS_PROF)}")
        A(f"v_lshrrev_b32 v4, 2, v{vL16}")
        A(f"buffer_store_dword v{vPROF}, v4, {srd(rWS)}, s{sT0} offen")
    A(f"s_cmp_lg_u32 s{sGW}, 0")
    A("s_cbranch_scc1 L_END")
    if cfg.dbg:
        A(f"v_readlane_b32 s{sT1}, v{vPROF}, 0")
        A("v_mov_b32 v5, 0")
        for n, j in enumerate(cfg.dbg):
            A(f"v_readlane_b32 s{sT0}, v{vPROF}, {j}")
            A("s_nop 3")
            A(f"s_sub_u32 s{sT0}, s{sT0}, s{sT1}")
            A(f"v_writelane_b32 v5, s{sT0}, {n}")
        mk_srd(rR0, P_DBG, 256)
        A(f"v_lshrrev_b32 v4, 2, v{vL16}")
        A(f"buffer_store_dword v5, v4, {srd(rR0)}, 0 offen")
    A("v_mov_b32 v4, 0")
    A("s_mov_b64 exec, 1")
    A(f"buffer_store_dword v{vTAG}, v4, {srd(rWS)}, 0 offen")
    A.label("L_END")
    A("s_endpgm")
    A.label("L_TIMEOUT")
    A("s_endpgm")

    for p in range(2):
        o = O[p]; q = Q[p]
        fS, fN, fK, fV0, fV1, fM, fA = 208, 224, 240, 244, 248, 252, 253
        A.label(f"L_FB{p}")
        A(f"v_mov_b32 v{fM}, 0xff800000")
        A(f"s_mov_b32 s{sT0}, {hex(L_KV)}")
        A.label(f"L_FB{p}_a")
        A(f"buffer_load_dwordx4 {vr(fK)}, v{vL16}, {srd(rL)}, s{sT0} offen sc1")
        A(f"s_add_u32 s{sT0}, s{sT0}, 1024")
        A("s_waitcnt vmcnt(0)")
        A(f"v_mfma_f32_32x32x16_bf16 {vr(fS,16)}, {vr(fK)}, {vr(q)}, 0")
        A("s_nop 7"); A("s_nop 7")
        for r in range(8): A(f"v_max3_f32 v{fM}, v{fS+2*r}, v{fS+2*r+1}, v{fM}")
        A(f"s_cmp_lg_u32 s{sT0}, {hex(L_KV + 0x10000)}")
        A(f"s_cbranch_scc1 L_FB{p}_a")
        A(f"v_mov_b32 v{fA}, v{fM}")
        A("s_nop 1")
        A(f"v_permlane32_swap_b32 v{fM}, v{fA}")
        A(f"v_max_f32 v{fM}, v{fM}, v{fA}")
        for r in range(16):
            A(f"v_sub_f32 v{fN+r}, 0, v{fM}")
            A(f"v_mov_b32 v{o+r}, 0")
        A("v_and_b32 v4, 63, v0")
        A("v_and_b32 v5, 27, v4")
        A("v_cmp_eq_u32 vcc, 16, v5")
        A("v_mov_b32 v6, 0x3f803f80")
        for r in range(8): A(f"v_cndmask_b32 v{fV0+r}, 0, v6, vcc")
        A("v_and_b32 v5, 15, v4")
        A("v_lshrrev_b32 v6, 5, v4")
        A("v_lshlrev_b32 v5, 4, v5")
        A("v_lshl_add_u32 v5, v6, 8, v5")
        A(f"v_add_u32 v5, 0x10000, v5")
        A(f"s_mov_b32 s{sT0}, {hex(L_KV)}")
        A(f"s_mov_b32 s{sM1}, 0x0000ffff")
        A(f"s_mov_b32 s{sM1+1}, 0x0000ffff")
        A.label(f"L_FB{p}_b")
        A(f"buffer_load_dwordx4 {vr(fK)}, v{vL16}, {srd(rL)}, s{sT0} offen sc1")
        A(f"s_mov_b64 exec, s[{sM1}:{sM1+1}]")
        A(f"buffer_load_dwordx4 {vr(fV0)}, v5, {srd(rL)}, s{sT0} offen sc1")
        A(f"buffer_load_dwordx4 {vr(fV1)}, v5, {srd(rL)}, s{sT0} offen offset:512 sc1")
        A("s_mov_b64 exec, -1")
        A(f"s_add_u32 s{sT0}, s{sT0}, 1024")
        A("s_waitcnt vmcnt(0)")
        A(f"v_mfma_f32_32x32x16_bf16 {vr(fS,16)}, {vr(fK)}, {vr(q)}, {vr(fN,16)}")
        A("s_nop 7"); A("s_nop 7")
        for r in range(16): A(f"v_exp_f32 v{fS+r}, v{fS+r}")
        A("s_nop 1")
        A(f"v_smfmac_f32_32x32x32_bf16 {vr(o,16)}, {vr(fV0)}, {vr(fS,8)}, v{vIDX}")
        A(f"v_smfmac_f32_32x32x32_bf16 {vr(o,16)}, {vr(fV1)}, {vr(fS+8,8)}, v{vIDX}")
        A(f"s_cmp_lg_u32 s{sT0}, {hex(L_KV + 0x10000)}")
        A(f"s_cbranch_scc1 L_FB{p}_b")
        A("s_nop 7"); A("s_nop 7")
        A(f"s_branch L_FBR{p}")
    A.label("L_CODE_END")
    lines, nfix, probs = check_hazards(A.L)
    for p_ in probs: print("HAZARD:", p_, file=sys.stderr)
    print(f"auto nops: {nfix}", file=sys.stderr)
    body = "\n".join(l if l.endswith(":") else "    " + l for l in lines)
    hdr = open("cdna_kernels/" + NAME + ".s.ref").read().split("; Override launch")[0]
    out = hdr + f"""; Persistent kernel: 256 workgroups (one per CU), flag-based hand-offs through d_ws. Generated by gen2.py.
; @launch grid=(256,1,1) block=(256,1,1) lds={LDS_TOTAL}
.amdgcn_target "amdgcn-amd-amdhsa--gfx950"
.text
.globl {NAME}_kernel
.p2align 8
.type {NAME}_kernel,@function
{NAME}_kernel:
L_CODE_START:
{body}
.section .rodata,"a"
.p2align 6
.amdhsa_kernel {NAME}_kernel
  .amdhsa_next_free_vgpr 512
  .amdhsa_next_free_sgpr 102
  .amdhsa_accum_offset 256
  .amdhsa_group_segment_fixed_size 0
  .amdhsa_kernarg_size 96
  .amdhsa_user_sgpr_count 2
  .amdhsa_user_sgpr_kernarg_segment_ptr 1
  .amdhsa_system_sgpr_workgroup_id_x 1
.end_amdhsa_kernel
"""
    return out

DEFAULTS = dict(prof=None, fine=False, dbg=None, t512=True, spin_limit=200000,
                warm_gu=True, warm_wd=True, warm0=22, warm_span=76, gu_att=[(96, 103), (96, 107), (112, 113)],
                op_vm=12, ack_vm=12, wd_s2=14, s4='smem', g56=2, wo0=18, tk0=10, epub=102, epoll=124, e1=16, h0=12, h_ahead=14, fpos=14, fchk=22, w_tail=8)
if __name__ == "__main__":
    import argparse, json, ast
    ap = argparse.ArgumentParser()
    ap.add_argument("-o", default="cdna_kernels/" + NAME + ".s")
    ap.add_argument("opts", nargs="*")
    a = ap.parse_args()
    cfg = Cfg()
    for k, v in DEFAULTS.items(): setattr(cfg, k, v)
    for o in a.opts:
        k, v = o.split("=", 1)
        assert k in DEFAULTS, k
        try: v = ast.literal_eval(v)
        except Exception: pass
        setattr(cfg, k, v)
    s = gen(cfg)
    open(a.o, "w").write(s)
    json.dump(cfg.stamps, open(a.o + ".stamps.json", "w"))
```

```python
import sys, math, struct
sys.path.insert(0, "gen")
from asmlib import Asm, check_hazards

NAME = "interleave_layers__grouped_kv_mqa__glu_gated_reglu__prompt"

WS_EPOCH = 0
WS_WFLAG = 0x1000
WS_PROF = 0x10000
WS_WOT = 0x100000
WS_WDT = 0x200000
WS_WGUT = 0x400000
WS_X2 = 0x800000
WS_L0 = 0x1000000
LSTRIDE = 0x1000000
L_Q = 0
L_KV = 0x200000
L_FLAG = 0x280000
L_X1 = 0x300000
L_XN1 = 0x500000
L_H = 0x700000
PH_QKV, PH_ATT, PH_FF1, PH_FF2, PH_FF1E = 0, 1, 2, 3, 4
def flagbase(ph): return L_FLAG + ph * 256 * 128

LDS_WQ = 0x10000
LDS_WKV = 0x20000
LDS_ST = 0x24400
LDS_V = 0x10000
LDS_ONES = 0x20000
LDS_OX = 0x22000
LDS_LNX = 0x27f00
LDS_TOTAL = 160 * 1024

sWG = 2; sW = 3; sX = 4; sI = 5; sLAYER = 6; sTAG = 7
P_X, P_WQ, P_WK, P_WV, P_WO, P_BX, P_WG, P_WU, P_WD, P_OUT, P_DBG, P_WS = [8 + 2 * i for i in range(12)]
rXIN = 32; rWQ = 36; rWKV = 40; rL = 44; rWS = 48; rOUT = 52; rR0 = 56; rR1 = 60; rR2 = 64
sTB = 68; sCB = 69; sG = 70; sBLK = 71; sSL = 72; sID1 = 73; sXST = 74; sGW = 75
sT0 = 76; sT1 = 77; sT2 = 78; sT3 = 79; sT4 = 80; sT5 = 81
sCNT = 82; sGUL = 83
sM0 = 84; sM1 = 86; sM2 = 88
sWA = 90; sWB = 91
sTS = 92
sWDO = 94; sXA = 95; sXB = 99; sQO = 100; sKO = 101
sHO = 18; sHS = 19

def srd(n): return f"s[{n}:{n+3}]"
def vr(a, n=4): return f"v[{a}:{a+n-1}]"
def ar(a, n=4): return f"a[{a}:{a+n-1}]"
def f32(x): return struct.unpack("<I", struct.pack("<f", x))[0]

vL16 = 1; vTAG = 2; vPROF = 3; vCS = 100; vCKV = 116

class Cfg: pass

def gen(cfg):
    A = Asm()
    stamp_idx = [0]
    cfg.stamps = []
    clk = "s_memtime" if cfg.prof == "clk" else "s_memrealtime"
    def stamp(name):
        if not cfg.prof: return
        A(f"{clk} s[{sTS}:{sTS+1}]")
        A("s_waitcnt lgkmcnt(0)"); A.lg = []
        k = stamp_idx[0]; stamp_idx[0] += 1
        assert k < 32
        A(f"s_lshl_b32 s{sTS+1}, s{sLAYER}, 5")
        A(f"s_add_u32 s{sTS+1}, s{sTS+1}, {k}")
        A("s_mov_b32 s98, m0")
        A(f"s_mov_b32 m0, s{sTS+1}")
        A("s_nop 1")
        A(f"v_writelane_b32 v{vPROF}, s{sTS}, m0")
        A("s_mov_b32 m0, s98")
        cfg.stamps.append(name)
    def fstamp(name):
        if cfg.fine: stamp(name)

    def spin(vaddr, r, name, tmp=4):
        lp = A.newlabel("poll_" + name); dn = A.newlabel("polld_" + name)
        A(f"s_mov_b32 s{sCNT}, {cfg.spin_limit}")
        A.label(lp)
        A(f"buffer_load_dword v{tmp}, v{vaddr}, {srd(r)}, 0 offen sc1")
        A("s_waitcnt vmcnt(0)")
        A(f"v_cmp_ne_u32 vcc, v{tmp}, v{vTAG}")
        A(f"s_cbranch_vccz {dn}")
        A(f"s_sub_u32 s{sCNT}, s{sCNT}, 1")
        A(f"s_cmp_lg_u32 s{sCNT}, 0")
        A(f"s_cbranch_scc1 {lp}")
        A("s_branch L_TIMEOUT")
        A.label(dn)
    def poll(vaddr, name, tmp=4):
        spin(vaddr, rL, name, tmp); A.vm = []
    sPF = 56
    def s_issue(r, sbase, n):
        for q in range(n): A(f"s_buffer_load_dword s{sPF+q}, {srd(r)}, s{sbase} offset:{q*128} glc")
    def s_test(n):
        A("s_waitcnt lgkmcnt(0)"); A.lg = []
        for q in range(n): A(f"s_xor_b32 s{sPF+q}, s{sPF+q}, s{sTAG}")
        m = n
        while m > 1:
            for q in range(m // 2): A(f"s_or_b32 s{sPF+q}, s{sPF+q}, s{sPF+q+m//2}")
            m //= 2
    def s_spin(r, sbase, n, name, issued=False):
        lp = A.newlabel("sp_" + name); dn = A.newlabel("spd_" + name); ck = A.newlabel("spc_" + name)
        A(f"s_mov_b32 s{sCNT}, {cfg.spin_limit}")
        if issued: A(f"s_branch {ck}")
        A.label(lp)
        s_issue(r, sbase, n)
        A(f"s_sub_u32 s{sCNT}, s{sCNT}, 1")
        A("s_cbranch_scc1 L_TIMEOUT")
        A.label(ck)
        s_test(n)
        A(f"s_cbranch_scc1 {lp}")
    def check_or_spin(vres, vaddr, r, tag, name):
        ok = A.newlabel("ok_" + name)
        A.wait_vm(tag)
        A(f"v_cmp_ne_u32 vcc, v{vres}, v{vTAG}")
        A(f"s_cbranch_vccz {ok}")
        spin(vaddr, r, name, vres)
        A.label(ok)
    def flag_store(phase, sid, tmp=4):
        sk = A.newlabel("pub")
        A(f"s_cmp_lg_u32 s{sW}, 0")
        A(f"s_cbranch_scc1 {sk}")
        A(f"s_lshl_b32 s{sCNT}, s{sid}, 7")
        A(f"s_add_u32 s{sCNT}, s{sCNT}, {hex(flagbase(phase))}")
        A(f"v_mov_b32 v{tmp}, 0")
        A("s_mov_b64 exec, 1")
        A(f"buffer_store_dword v{vTAG}, v{tmp}, {srd(rL)}, s{sCNT} offen sc1")
        A("s_mov_b64 exec, -1")
        A.label(sk)
    def publish(phase, sid, tags, tmp=4):
        A.wait_vm(tags)
        A("s_barrier")
        flag_store(phase, sid, tmp)
    def unpack(dst, src, k):
        if k % 2 == 0: A(f"v_lshlrev_b32 v{dst+k}, 16, v{src+k//2}")
        else: A(f"v_and_b32 v{dst+k}, 0xffff0000, v{src+k//2}")
    def mk_srd(r, p, size, add=0):
        if add:
            A(f"s_add_u32 s{r}, s{p}, {hex(add)}")
            A(f"s_addc_u32 s{r+1}, s{p+1}, 0")
        else:
            A(f"s_mov_b32 s{r}, s{p}")
            A(f"s_mov_b32 s{r+1}, s{p+1}")
        A(f"s_mov_b32 s{r+2}, {hex(size)}")
        A(f"s_mov_b32 s{r+3}, 0x20000")

    vWS_ = 11
    def w_dma_setup():
        A("v_and_b32 v4, 63, v0")
        A("v_lshrrev_b32 v5, 3, v4")
        A("v_bfe_u32 v6, v4, 4, 1")
        A("v_lshlrev_b32 v6, 2, v6")
        A("v_and_b32 v4, 7, v4")
        A("v_xor_b32 v4, v4, v6")
        A("v_lshlrev_b32 v4, 4, v4")
        A(f"v_lshl_add_u32 v{vWS_}, v5, 10, v4")
        A(f"s_lshl_b32 s{sWA}, s{sW}, 15")
        A(f"s_lshl_b32 s{sWB}, s{sCB}, 7")
        A(f"s_add_u32 s{sWA}, s{sWA}, s{sWB}")
        A(f"s_lshl_b32 s{sWB}, s{sW}, 12")
        A(f"s_add_u32 s{sWB}, s{sWB}, {LDS_WQ}")
    def w_dma(c, n):
        if n < 4:
            A(f"s_mov_b32 m0, s{sWB}")
            A(f"s_add_u32 s{sWB}, s{sWB}, {1024 if n < 3 else 16384 - 3072}")
            A.vmem(f"buffer_load_dwordx4 v{vWS_}, {srd(rWQ)}, s{sWA} offen lds", f"wq{c}")
            A(f"s_add_u32 s{sWA}, s{sWA}, {8192 if n < 3 else 131072 - 3 * 8192}")
        else:
            A(f"s_lshl_b32 s{sCNT}, s{sW}, 10")
            A(f"s_add_u32 m0, s{sCNT}, {LDS_WKV + c*4096}")
            A(f"s_add_u32 s{sCNT}, s{sCNT}, {c*4096}")
            A.vmem(f"buffer_load_dwordx4 v{vL16}, {srd(rWKV)}, s{sCNT} offen lds", f"wq{c}")
    vXS, vXE, vXO, vX16 = 12, 13, 14, 15
    def x_dma_setup():
        A(f"s_lshl_b32 s{sXB}, s{sW}, 10")
        A(f"s_mov_b32 s{sXA}, 0")
    def x_dma(j, sc1):
        A(f"s_mov_b32 m0, s{sXB}")
        A(f"s_add_u32 s{sXB}, s{sXB}, 4096")
        A.vmem(f"buffer_load_dwordx4 v{vXS}, {srd(rXIN)}, s{sXA} offen{' sc1' if sc1 else ''} lds", f"x{j//4}")
        A(f"s_add_u32 s{sXA}, s{sXA}, s{sXST}")

    A(f"s_cmp_ge_u32 s{sWG}, 256")
    A("s_cbranch_scc1 L_END")
    if cfg.prof: A(f"{clk} s[96:97]")
    A("s_load_dwordx16 s[8:23], s[0:1], 0")
    A("s_load_dwordx8 s[24:31], s[0:1], 64")
    A(f"s_getpc_b64 s[{sM0}:{sM0+1}]")
    A(f"s_and_b32 s{sM0}, s{sM0}, 0xffffffc0")
    A(f"v_and_b32 v4, 63, v0")
    A(f"v_lshlrev_b32 v{vL16}, 4, v4")
    A(f"v_lshrrev_b32 v5, 6, v0")
    A(f"s_and_b32 s{sX}, s{sWG}, 7")
    A(f"s_lshr_b32 s{sI}, s{sWG}, 3")
    A(f"v_readfirstlane_b32 s{sW}, v5")
    A(f"s_and_b32 s{sT0}, s{sI}, 1")
    A(f"s_lshl_b32 s{sT0}, s{sT0}, 15")
    A(f"v_lshlrev_b32 v6, 7, v0")
    A(f"v_add_u32 v6, s{sT0}, v6")
    A(f"v_min_u32 v6, L_CODE_END-L_CODE_START-64, v6")
    A(f"global_load_dword v248, v6, s[{sM0}:{sM0+1}]")
    A.vm.append("code")
    A(f"s_lshr_b32 s{sT0}, s{sI}, 3")
    A(f"s_lshl_b32 s{sTB}, s{sX}, 2")
    A(f"s_add_u32 s{sTB}, s{sTB}, s{sT0}")
    A(f"s_and_b32 s{sCB}, s{sI}, 7")
    w_dma_setup()
    A("v_and_b32 v4, 63, v0")
    A("v_lshrrev_b32 v5, 2, v4")
    A("v_lshrrev_b32 v6, 4, v4")
    A("v_and_b32 v4, 3, v4")
    A("v_xor_b32 v4, v4, v6")
    A("v_lshlrev_b32 v4, 4, v4")
    A(f"v_lshl_add_u32 v{vXS}, v5, 10, v4")
    A(f"s_lshl_b32 s{sT0}, s{sTB}, 16")
    A(f"s_lshl_b32 s{sT1}, s{sW}, 14")
    A(f"s_add_u32 s{sT0}, s{sT0}, s{sT1}")
    A(f"v_add_u32 v{vXS}, s{sT0}, v{vXS}")
    A(f"s_mov_b32 s{sXST}, 64")
    x_dma_setup()
    A(f"s_mov_b32 s{sLAYER}, 0")
    if cfg.prof: A(f"v_mov_b32 v{vPROF}, 0")
    A("s_waitcnt lgkmcnt(0)")
    if cfg.prof:
        A(f"v_writelane_b32 v{vPROF}, s96, 0")
        stamp_idx[0] = 1; cfg.stamps.append("entry")
    mk_srd(rWQ, P_WQ, 512 * 512 * 2)
    mk_srd(rXIN, P_X, 2048 * 512 * 2)
    A(f"s_cmp_eq_u32 s{sCB}, 0")
    A(f"s_cselect_b32 s{rWKV}, s{P_WK}, s{P_WV}")
    A(f"s_cselect_b32 s{rWKV+1}, s{P_WK+1}, s{P_WV+1}")
    A(f"s_mov_b32 s{rWKV+2}, {512*16*2}")
    A(f"s_mov_b32 s{rWKV+3}, 0x20000")
    for n in range(5): w_dma(0, n)
    for j in range(4): x_dma(j, False)
    A(f"s_load_dword s{sTAG}, s[{P_WS}:{P_WS+1}], {WS_EPOCH}")
    for n in range(5): w_dma(1, n)
    for j in range(4, 8): x_dma(j, False)
    A(f"s_lshl_b32 s{sG}, s{sX}, 5")
    A(f"s_add_u32 s{sG}, s{sG}, s{sI}")
    if cfg.t512:
        A(f"s_lshr_b32 s{sT0}, s{sI}, 3")
        A(f"s_lshr_b32 s{sBLK}, s{sX}, 1")
        A(f"s_lshl_b32 s{sBLK}, s{sBLK}, 2")
        A(f"s_add_u32 s{sBLK}, s{sBLK}, s{sT0}")
        A(f"s_and_b32 s{sSL}, s{sX}, 1")
        A(f"s_lshl_b32 s{sSL}, s{sSL}, 3")
        A(f"s_add_u32 s{sSL}, s{sSL}, s{sCB}")
    else:
        A(f"s_lshr_b32 s{sBLK}, s{sG}, 4")
        A(f"s_and_b32 s{sSL}, s{sG}, 15")
    A(f"s_lshl_b32 s{sID1}, s{sBLK}, 4")
    A(f"s_add_u32 s{sID1}, s{sID1}, s{sSL}")
    A(f"s_lshl_b32 s{sGW}, s{sWG}, 2")
    A(f"s_add_u32 s{sGW}, s{sGW}, s{sW}")
    A(f"s_and_b32 s{sGUL}, s{sW}, 1")
    A(f"s_lshl_b32 s{sGUL}, s{sGUL}, 13")
    A(f"s_lshr_b32 s{sT0}, s{sW}, 1")
    A(f"s_lshl_b32 s{sT0}, s{sT0}, 16")
    A(f"s_add_u32 s{sGUL}, s{sGUL}, s{sT0}")
    mk_srd(rL, P_WS, LSTRIDE, WS_L0)
    mk_srd(rWS, P_WS, WS_L0)
    mk_srd(rOUT, P_WS, 2048 * 512 * 2, WS_X2)
    vRAW = 224; vRA = 250; vRB = 251
    A("v_and_b32 v4, 63, v0")
    A("v_lshrrev_b32 v5, 3, v4")
    A("v_and_b32 v4, 7, v4")
    A("v_lshlrev_b32 v4, 4, v4")
    A(f"v_lshl_add_u32 v{vRB}, v5, 10, v4")
    A("v_mul_u32_u24 v5, 3584, v5")
    A(f"v_add_u32 v{vRA}, v5, v4")
    A(f"s_cmp_ge_u32 s{sWG}, 224")
    A("s_cbranch_scc1 L_RAW_WO")
    mk_srd(rR0, P_WG, 512 * 1792 * 2)
    mk_srd(rR1, P_WU, 512 * 1792 * 2)
    mk_srd(rR2, P_WD, 512 * 1792 * 2)
    A(f"s_and_b32 s{sT2}, s{sGW}, 31")
    A(f"s_mul_i32 s{sT2}, s{sT2}, {16*3584}")
    A(f"s_lshr_b32 s{sT1}, s{sGW}, 5")
    A(f"s_lshl_b32 s{sT1}, s{sT1}, 7")
    A(f"s_add_u32 s{sT2}, s{sT2}, s{sT1}")
    A(f"s_add_u32 s{sT3}, s{sT2}, {8*3584}")
    A(f"s_mov_b32 s{sHO}, s{sT2}")
    A(f"s_mov_b32 s{sHS}, s{sT3}")
    A(f"s_lshr_b32 s{sT4}, s{sGW}, 3")
    A(f"s_lshl_b32 s{sT4}, s{sT4}, 14")
    A(f"s_and_b32 s{sT1}, s{sGW}, 7")
    A(f"s_lshl_b32 s{sT1}, s{sT1}, 7")
    A(f"s_add_u32 s{sT4}, s{sT4}, s{sT1}")
    A(f"s_add_u32 s{sT5}, s{sT4}, 8192")
    A("s_branch L_RAW_DONE")
    A.label("L_RAW_WO")
    mk_srd(rR0, P_WO, 512 * 512 * 2)
    mk_srd(rR1, P_WO, 512 * 512 * 2)
    mk_srd(rR2, P_WO, 512 * 512 * 2)
    A(f"v_mov_b32 v{vRA}, v{vRB}")
    A(f"s_sub_u32 s{sT0}, s{sGW}, 896")
    A(f"s_lshr_b32 s{sT2}, s{sT0}, 3")
    A(f"s_lshl_b32 s{sT2}, s{sT2}, 15")
    A(f"s_and_b32 s{sT1}, s{sT0}, 7")
    A(f"s_lshl_b32 s{sT1}, s{sT1}, 7")
    A(f"s_add_u32 s{sT2}, s{sT2}, s{sT1}")
    A(f"s_add_u32 s{sT3}, s{sT2}, 8192")
    A(f"s_add_u32 s{sHO}, s{sT2}, 16384")
    A(f"s_add_u32 s{sHS}, s{sT2}, 24576")
    A(f"s_mov_b32 s{sT4}, s{sT2}")
    A(f"s_mov_b32 s{sT5}, s{sT2}")
    A.label("L_RAW_DONE")
    def raw_load(n):
        r, so, va = [(rR0, sT2, vRA), (rR0, sT3, vRA), (rR1, sHO, vRA), (rR1, sHS, vRA), (rR2, sT4, vRB), (rR2, sT5, vRB)][n]
        A.vmem(f"buffer_load_dwordx4 {vr(vRAW+4*n)}, v{va}, {srd(r)}, s{so} offen", "raw")

    aWQ, aWKV = 0, 128
    vAQ, vAKV, vG, vU, vONE = 16, 48, 56, 60, 64
    vXF = [128, 160]; vX16F = [192, 208]
    vTQ, vTKV = 8, 9
    vSTW, vSTR, vQST, vKVR, vKVS = 68, 69, 70, 71, 88
    def qkv_addrs(layer0):
        for r in range(4): A(f"v_mov_b32 v{vONE+r}, 0x3f803f80")
        A("v_and_b32 v4, 63, v0")
        A(f"s_lshr_b32 s{sT0}, s{sW}, 1")
        if layer0:
            A("v_and_b32 v5, 15, v4")
            A("v_lshrrev_b32 v6, 2, v5")
            A("v_lshrrev_b32 v7, 5, v4")
            A("v_xor_b32 v7, v7, v6")
            A("v_lshlrev_b32 v7, 4, v7")
            A("v_lshl_add_u32 v7, v5, 6, v7")
            A("v_bfe_u32 v8, v4, 4, 1")
            A("v_lshl_add_u32 v7, v8, 10, v7")
            A(f"s_lshl_b32 s{sT0}, s{sT0}, 11")
            A(f"v_add_u32 v{vXE}, s{sT0}, v7")
            A(f"v_xor_b32 v{vXO}, 32, v{vXE}")
            A("v_lshrrev_b32 v7, 4, v4")
            A("v_xor_b32 v7, v7, v6")
            A("v_lshlrev_b32 v7, 4, v7")
            A("v_lshl_add_u32 v7, v5, 6, v7")
            A(f"s_lshl_b32 s{sT0}, s{sW}, 10")
            A(f"v_add_u32 v{vX16}, s{sT0}, v7")
        else:
            A(f"s_lshl_b32 s{sT0}, s{sT0}, 11")
            A(f"v_add_u32 v{vXE}, s{sT0}, v{vL16}")
            A(f"v_add_u32 v{vXO}, 1024, v{vXE}")
            A("v_and_b32 v5, 15, v4")
            A("v_lshrrev_b32 v6, 5, v4")
            A("v_bfe_u32 v7, v4, 4, 1")
            A("v_lshlrev_b32 v5, 4, v5")
            A("v_lshl_add_u32 v5, v7, 9, v5")
            A("v_lshl_add_u32 v5, v6, 10, v5")
            A(f"s_and_b32 s{sT1}, s{sW}, 1")
            A(f"s_lshl_b32 s{sT1}, s{sT1}, 8")
            A(f"s_add_u32 s{sT0}, s{sT0}, s{sT1}")
            A(f"v_add_u32 v{vX16}, s{sT0}, v5")
        A("v_bfe_u32 v5, v4, 2, 2")
        A("v_lshrrev_b32 v6, 5, v4")
        A("v_lshl_add_u32 v6, v6, 3, v5")
        A("v_lshrrev_b32 v5, 1, v5")
        A(f"s_and_b32 s{sT0}, s{sW}, 1")
        A(f"v_xor_b32 v5, s{sT0}, v5")
        A("v_lshlrev_b32 v5, 6, v5")
        A("v_lshl_add_u32 v5, v6, 7, v5")
        A("v_bfe_u32 v6, v4, 4, 1")
        A("v_lshl_add_u32 v5, v6, 5, v5")
        A("v_and_b32 v6, 1, v4")
        A("v_bfe_u32 v7, v4, 1, 1")
        A("v_lshl_add_u32 v6, v6, 1, v7")
        A(f"v_lshl_add_u32 v{vTQ}, v6, 3, v5")
        A(f"v_add_u32 v{vTQ}, {LDS_WQ}, v{vTQ}")
        A("v_and_b32 v7, 3, v4")
        A(f"s_cmp_eq_u32 s{sCB}, 0")
        A(f"s_cselect_b64 vcc, -1, 0")
        A("v_cndmask_b32 v6, v6, v7, vcc")
        A("v_bfe_u32 v5, v4, 2, 2")
        A("v_lshrrev_b32 v7, 4, v4")
        A("v_lshl_add_u32 v5, v7, 3, v5")
        A("v_lshlrev_b32 v5, 5, v5")
        A(f"v_lshl_add_u32 v{vTKV}, v6, 3, v5")
        A(f"v_add_u32 v{vTKV}, {LDS_WKV}, v{vTKV}")
        A("v_and_b32 v5, 3, v4")
        A(f"v_cmp_eq_u32 s[{sM0}:{sM0+1}], 2, v5")
        A(f"v_cmp_eq_u32 s[{sM1}:{sM1+1}], 3, v5")
        A("v_lshrrev_b32 v6, 4, v4")
        A("v_bfe_u32 v7, v4, 2, 2")
        A(f"v_cmp_eq_u32 s[{sM2}:{sM2+1}], v6, v7")
        A("v_and_b32 v7, 15, v4")
        A(f"s_lshl_b32 s{sT0}, s{sW}, 7")
        A(f"s_add_u32 s{sT0}, s{sT0}, {LDS_ST}")
        A(f"v_lshl_add_u32 v{vSTW}, v7, 3, s{sT0}")
        kk = A.newlabel("kart"); kd_ = A.newlabel("kard")
        A("v_lshrrev_b32 v5, 1, v6")
        A(f"s_cmp_eq_u32 s{sCB}, 0")
        A(f"s_cbranch_scc1 {kk}")
        A(f"v_lshl_add_u32 v{vKVR}, v6, 5, s{sT0}")
        A("v_lshlrev_b32 v5, 8, v5")
        A(f"s_lshl_b32 s{sKO}, s{sTB}, 2")
        A(f"s_add_u32 s{sKO}, s{sKO}, s{sW}")
        A(f"s_lshl_b32 s{sKO}, s{sKO}, 9")
        A(f"s_add_u32 s{sKO}, s{sKO}, {hex(L_KV + 0x10000)}")
        A(f"s_branch {kd_}")
        A.label(kk)
        A(f"v_mov_b32 v{vKVR}, v{vSTW}")
        A("v_lshlrev_b32 v5, 9, v5")
        A(f"s_lshl_b32 s{sKO}, s{sTB}, 11")
        A(f"s_lshr_b32 s{sT0}, s{sW}, 1")
        A(f"s_lshl_b32 s{sT0}, s{sT0}, 10")
        A(f"s_add_u32 s{sKO}, s{sKO}, s{sT0}")
        A(f"s_and_b32 s{sT0}, s{sW}, 1")
        A(f"s_lshl_b32 s{sT0}, s{sT0}, 8")
        A(f"s_add_u32 s{sKO}, s{sKO}, s{sT0}")
        A(f"s_add_u32 s{sKO}, s{sKO}, {hex(L_KV)}")
        A.label(kd_)
        A(f"v_lshl_add_u32 v{vKVS}, v7, 4, v5")
        A("v_and_b32 v5, 31, v4")
        A(f"s_lshr_b32 s{sT0}, s{sW}, 1")
        A(f"s_lshl_b32 s{sT1}, s{sT0}, 8")
        A(f"s_add_u32 s{sT1}, s{sT1}, {LDS_ST}")
        A(f"v_lshl_add_u32 v{vSTR}, v5, 3, s{sT1}")
        A("v_lshrrev_b32 v7, 3, v5")
        A("v_lshlrev_b32 v7, 13, v7")
        A("v_and_b32 v5, 7, v4")
        A("v_lshl_add_u32 v7, v5, 4, v7")
        A("v_lshrrev_b32 v5, 5, v4")
        A(f"v_lshl_add_u32 v{vQST}, v5, 9, v7")
        A(f"s_lshl_b32 s{sQO}, s{sTB}, 16")
        A(f"s_lshl_b32 s{sT0}, s{sT0}, 15")
        A(f"s_add_u32 s{sQO}, s{sQO}, s{sT0}")
        A(f"s_lshl_b32 s{sT0}, s{sCB}, 10")
        A(f"s_add_u32 s{sQO}, s{sQO}, s{sT0}")
        A(f"s_and_b32 s{sT0}, s{sW}, 1")
        A(f"s_lshl_b32 s{sT0}, s{sT0}, 8")
        A(f"s_add_u32 s{sQO}, s{sQO}, s{sT0}")
    def tr_reads(c):
        L = []
        for s in range(8 * c, 8 * c + 8):
            L.append(lambda s=s: A.ds(f"ds_read_b64_tr_b16 {ar(aWQ+4*s, 2)}, v{vTQ} offset:{s*2048}", f"w{s}"))
            L.append(lambda s=s: A.ds(f"ds_read_b64_tr_b16 {ar(aWQ+4*s+2, 2)}, v{vTQ} offset:{s*2048+512}", f"w{s}"))
        for j in range(4 * c, 4 * c + 4):
            L.append(lambda j=j: A.ds(f"ds_read_b64_tr_b16 {ar(aWKV+4*j, 2)}, v{vTKV} offset:{j*1024}", f"u{j}"))
            L.append(lambda j=j: A.ds(f"ds_read_b64_tr_b16 {ar(aWKV+4*j+2, 2)}, v{vTKV} offset:{j*1024+128}", f"u{j}"))
        return L
    def x_reads(c):
        b = c % 2; L = []
        for s in range(8):
            L.append(lambda s=s: A.ds(f"ds_read_b128 {vr(vXF[b]+4*s)}, v{vXE if s % 2 == 0 else vXO} offset:{(4*c + s//2)*4096}", f"xf{c}_{s}"))
        for j in range(4):
            L.append(lambda j=j: A.ds(f"ds_read_b128 {vr(vX16F[b]+4*j)}, v{vX16} offset:{(4*c+j)*4096}", f"xg{c}_{j}"))
        return L
    def lds_guard():
        if len(A.lg) >= 14: A.wait_lg(A.lg[len(A.lg) - 13])
    def guarded(L): return [(lambda th=th: (lds_guard(), th())) for th in L]
    def mfmas(c, layer0):
        b = c % 2; L = []
        for s in range(8):
            k = 8 * c + s
            def q(s=s, k=k):
                A.wait_lg([f"xf{c}_{s}", f"w{k}"])
                A(f"v_mfma_f32_32x32x16_bf16 {vr(vAQ,16)}, {ar(aWQ+4*k)}, {vr(vXF[b]+4*s)}, {vr(vAQ,16) if k else 0}")
            L.append(q)
            if layer0:
                L.append(lambda k=k: A(f"v_mfma_f32_32x32x16_bf16 {vr(vCS,16)}, {ar(aWQ+4*k)}, {vr(vONE)}, {vr(vCS,16) if k else 0}"))
        for j in range(4):
            k = 4 * c + j
            def g(j=j, k=k):
                A.wait_lg([f"xg{c}_{j}", f"u{k}"])
                A(f"v_mfma_f32_16x16x32_bf16 {vr(vG)}, {vr(vX16F[b]+4*j)}, {vr(vX16F[b]+4*j)}, {vr(vG) if k else 0}")
            L.append(g)
            L.append(lambda j=j, k=k: A(f"v_mfma_f32_16x16x32_bf16 {vr(vU)}, {vr(vONE)}, {vr(vX16F[b]+4*j)}, {vr(vU) if k else 0}"))
        return L
    def kv_mfmas(c, layer0):
        b = c % 2
        sk = A.newlabel("nokv"); vt = A.newlabel("kvV")
        A(f"s_cmp_ge_u32 s{sCB}, 2")
        A(f"s_cbranch_scc1 {sk}")
        A(f"s_cmp_eq_u32 s{sCB}, 0")
        A(f"s_cbranch_scc0 {vt}")
        for j in range(4):
            k = 4 * c + j
            A(f"v_mfma_f32_16x16x32_bf16 {vr(vAKV)}, {ar(aWKV+4*k)}, {vr(vX16F[b]+4*j)}, {vr(vAKV) if k else 0}")
            if layer0: A(f"v_mfma_f32_16x16x32_bf16 {vr(vCKV)}, {ar(aWKV+4*k)}, {vr(vONE)}, {vr(vCKV) if k else 0}")
        A(f"s_branch {sk}")
        A.label(vt)
        for j in range(4):
            k = 4 * c + j
            A(f"v_mfma_f32_16x16x32_bf16 {vr(vAKV)}, {vr(vX16F[b]+4*j)}, {ar(aWKV+4*k)}, {vr(vAKV) if k else 0}")
            if layer0: A(f"v_mfma_f32_16x16x32_bf16 {vr(vCKV)}, {vr(vONE)}, {ar(aWKV+4*k)}, {vr(vCKV) if k else 0}")
        A.label(sk)
    def qkv_main(layer0, vq):
        def arrive(c):
            A.wait_vm([f"x{c}", f"wq{c}"]); A("s_barrier")
        def reads(c):
            if not layer0: return guarded(x_reads(c))
            t, x = tr_reads(c), x_reads(c)
            out = []
            for s in range(8): out += [t[2 * s], t[2 * s + 1], x[s]]
            for j in range(4): out += [t[16 + 2 * j], t[17 + 2 * j], x[8 + j]]
            return guarded(out)
        arrive(0)
        if layer0: A("s_waitcnt lgkmcnt(0)")
        for th in reads(0): th()
        for c in range(4):
            M = mfmas(c, layer0)
            V = list(vq[c])
            R = []
            half = (len(M) * 3) // 8
            for i_, th in enumerate(M):
                if i_ == half and c < 3:
                    while V: V.pop(0)()
                    arrive(c + 1); R = reads(c + 1)
                th()
                if V and i_ % 1 == 0: V.pop(0)()
                left = len(M) - i_
                for _ in range(-(-len(R) // left) if R else 0):
                    if R: R.pop(0)()
            while V: V.pop(0)()
            kv_mfmas(c, layer0)

    if cfg.raw_early:
        for n in range(6): raw_load(n)
    if cfg.flag_touch:
        A("v_and_b32 v4, 7, v0")
        A("v_min_u32 v4, 4, v4")
        A("v_bfe_u32 v5, v0, 3, 1")
        A("v_and_b32 v6, 1, v4")
        A("v_cmp_eq_u32 vcc, 0, v4")
        A(f"v_mov_b32 v7, s{sG}")
        A(f"v_mov_b32 v8, s{sID1}")
        A("v_cndmask_b32 v6, v6, 1, vcc")
        A("v_cmp_eq_u32 vcc, 1, v6")
        A("v_lshlrev_b32 v4, 15, v4")
        A("v_lshl_add_u32 v4, v5, 24, v4")
        A("v_cndmask_b32 v7, v8, v7, vcc")
        A("v_lshl_add_u32 v4, v7, 7, v4")
        A(f"s_mov_b32 s{sT0}, {hex(WS_L0 + L_FLAG)}")
        A(f"s_mov_b32 s{rWS+2}, {hex(WS_L0 + 2 * LSTRIDE)}")
        A.vmem(f"buffer_load_dword v249, v4, {srd(rWS)}, s{sT0} offen", "ft")
        A(f"s_lshl_b32 s{sT0}, s{sWG}, 4")
        A(f"s_add_u32 s{sT0}, s{sT0}, {WS_WFLAG}")
        A("v_mov_b32 v4, 0")
        A.vmem(f"buffer_load_dword v249, v4, {srd(rWS)}, s{sT0} offen", "ft")
    qkv_addrs(True)
    stamp("start")
    vq = [[(lambda n=n: w_dma(2, n)) for n in range(5)] + [(lambda j=j: x_dma(j, False)) for j in range(8, 12)],
          [(lambda n=n: w_dma(3, n)) for n in range(5)] + [(lambda j=j: x_dma(j, False)) for j in range(12, 16)],
          [(lambda n=n: raw_load(n)) for n in range(3) if not cfg.raw_early],
          [(lambda n=n: raw_load(n)) for n in range(3, 6) if not cfg.raw_early]]
    qkv_main(True, vq)
    A(f"s_mul_i32 s{sTAG}, s{sTAG}, 1664525")
    A(f"s_add_u32 s{sTAG}, s{sTAG}, 1013904223")
    A(f"v_mov_b32 v{vTAG}, s{sTAG}")
    A("s_branch L_QKV_EPI")

    A.label("L_LAYER1")
    A.lg = []; A.vm = []
    stamp("qkv_w")
    x_dma_setup()
    sk = A.newlabel("s4")
    A(f"s_cmp_lg_u32 s{sW}, 0")
    A(f"s_cbranch_scc1 {sk}")
    if cfg.s4 == "smem": s_spin(rWS, sHO, 8, "s4")
    else:
        A("v_and_b32 v5, 7, v0")
        A("v_lshlrev_b32 v5, 7, v5")
        A(f"v_add_u32 v5, s{sHO}, v5")
        spin(5, rWS, "s4")
    A.label(sk)
    A("s_barrier")
    stamp("s4")
    for j in range(8): x_dma(j, True)
    qkv_main(False, [[(lambda j=j: x_dma(j, True)) for j in range(8, 12)], [(lambda j=j: x_dma(j, True)) for j in range(12, 16)], [], []])

    A.label("L_QKV_EPI")
    A.lg = []; A.vm = []
    stamp("qkv_mm")
    A("v_and_b32 v5, 3, v0")
    A("v_cmp_eq_u32 vcc, 1, v5")
    A(f"s_mov_b32 s{sT1}, {hex(f32(1.0/512))}")
    A("s_nop 4")
    A(f"v_cndmask_b32 v5, v{vG}, v{vG+1}, vcc")
    A(f"v_cndmask_b32 v5, v5, v{vG+2}, s[{sM0}:{sM0+1}]")
    A(f"v_cndmask_b32 v5, v5, v{vG+3}, s[{sM1}:{sM1+1}]")
    A(f"v_mul_f32 v10, s{sT1}, v{vU}")
    A(f"v_mul_f32 v5, s{sT1}, v5")
    A("v_fma_f32 v5, -v10, v10, v5")
    A("v_max_f32 v5, 0, v5")
    A(f"v_add_f32 v5, {hex(f32(1e-5))}, v5")
    A("v_rsq_f32 v11, v5")
    A(f"s_mov_b64 exec, s[{sM2}:{sM2+1}]")
    A.ds(f"ds_write_b64 v{vSTW}, v[10:11]")
    A("s_mov_b64 exec, -1")
    A.wait_lg()
    A("s_barrier")
    A.ds(f"ds_read_b64 v[10:11], v{vSTR}")
    sk = A.newlabel("nokvep"); vt = A.newlabel("kvepV"); st = A.newlabel("kvst")
    A(f"s_cmp_ge_u32 s{sCB}, 2")
    A(f"s_cbranch_scc1 {sk}")
    A(f"s_cmp_eq_u32 s{sCB}, 0")
    A(f"s_cbranch_scc0 {vt}")
    A(f"ds_read_b64 v[72:73], v{vKVR}")
    A("s_waitcnt lgkmcnt(0)")
    for r in range(4): A(f"v_fma_f32 v{vAKV+r}, -v72, v{vCKV+r}, v{vAKV+r}")
    for r in range(4): A(f"v_mul_f32 v{vAKV+r}, v73, v{vAKV+r}")
    A(f"s_branch {st}")
    A.label(vt)
    A(f"ds_read_b128 v[72:75], v{vKVR}")
    A(f"ds_read_b128 v[76:79], v{vKVR} offset:16")
    A("s_waitcnt lgkmcnt(0)")
    for r in range(4): A(f"v_fma_f32 v{vAKV+r}, -v{72+2*r}, v{vCKV+r}, v{vAKV+r}")
    for r in range(4): A(f"v_mul_f32 v{vAKV+r}, v{73+2*r}, v{vAKV+r}")
    A.label(st)
    A(f"v_cvt_pk_bf16_f32 v72, v{vAKV}, v{vAKV+1}")
    A(f"v_cvt_pk_bf16_f32 v73, v{vAKV+2}, v{vAKV+3}")
    A("v_mov_b32 v74, v72")
    A("v_mov_b32 v75, v73")
    A(f"s_mov_b32 s{sM0}, 0x0000ffff")
    A(f"s_mov_b32 s{sM0+1}, 0x0000ffff")
    A("v_permlane16_swap_b32 v72, v74")
    A("v_permlane16_swap_b32 v73, v75")
    A(f"s_mov_b64 exec, s[{sM0}:{sM0+1}]")
    A(f"buffer_store_dwordx4 v[72:75], v{vKVS}, {srd(rL)}, s{sKO} offen sc1")
    A("s_mov_b64 exec, -1")
    A.label(sk)
    A.wait_lg()
    QS = 0.25 * math.log2(math.e)
    A(f"v_mul_f32 v11, {hex(f32(QS))}, v11")
    for h in range(2):
        for r in range(8 * h, 8 * h + 8):
            A(f"v_fma_f32 v{vAQ+r}, -v10, v{vCS+r}, v{vAQ+r}")
        for r in range(8 * h, 8 * h + 8):
            A(f"v_mul_f32 v{vAQ+r}, v11, v{vAQ+r}")
            if r % 2 == 1: A(f"v_cvt_pk_bf16_f32 v{80+r//2}, v{vAQ+r-1}, v{vAQ+r}")
        A.vmem(f"buffer_store_dwordx4 {vr(80+4*h)}, v{vQST}, {srd(rL)}, s{sQO} offen offset:{128*h} sc1", "st")
    A("v_and_b32 v5, 11, v0")
    A("v_cmp_eq_u32 vcc, 0, v5")
    A("v_lshlrev_b32 v4, 4, v0")
    A(f"v_add_u32 v4, {LDS_ONES}, v4")
    for r in range(4): A(f"v_cndmask_b32 v{vONE+r}, 0, v{vONE+r}, vcc")
    A.ds(f"ds_write_b128 v4, {vr(vONE)}")
    A.ds(f"ds_write_b128 v4, {vr(vONE)} offset:4096")
    S = [16, 32]; O = [48, 160]; Q = [64, 68]; KB = [72, 76]; V0 = [80, 84]; V1 = [88, 92]
    vIDX = 96; vVA = 97; vVINC = 98; vOXR = 99
    vOXW = 120; vWFL = 121; vRES = 122; vTCH = 123; vJUNK = 124; vRROW = 125; vWFA = 126
    vOF = [128, 132]; vZ = 136; vZR = 152; vPA = 176
    A("v_and_b32 v4, 63, v0")
    A("v_and_b32 v5, 7, v4")
    A("v_bfe_u32 v6, v4, 3, 1")
    A("v_lshrrev_b32 v7, 4, v4")
    A("v_lshlrev_b32 v8, 12, v6")
    A("v_lshrrev_b32 v9, 1, v7")
    A("v_lshl_add_u32 v8, v9, 10, v8")
    A("v_and_b32 v9, 1, v7")
    A("v_lshl_add_u32 v8, v9, 9, v8")
    A("v_lshl_add_u32 v8, v5, 4, v8")
    A(f"s_lshr_b32 s{sT0}, s{sG}, 2")
    A(f"s_lshl_b32 s{sT0}, s{sT0}, 15")
    A(f"s_lshl_b32 s{sT1}, s{sW}, 13")
    A(f"s_add_u32 s{sT0}, s{sT0}, s{sT1}")
    A(f"s_and_b32 s{sT1}, s{sG}, 3")
    A(f"s_lshl_b32 s{sT1}, s{sT1}, 7")
    A(f"s_add_u32 s{sT0}, s{sT0}, s{sT1}")
    A(f"v_add_u32 v{vRES}, s{sT0}, v8")
    A("v_lshlrev_b32 v8, 10, v5")
    A("v_lshl_add_u32 v8, v6, 7, v8")
    A("v_lshl_add_u32 v8, v7, 4, v8")
    A(f"s_lshl_b32 s{sT0}, s{sG}, 13")
    A(f"s_lshl_b32 s{sT1}, s{sW}, 8")
    A(f"s_add_u32 s{sT0}, s{sT0}, s{sT1}")
    A(f"v_add_u32 v8, s{sT0}, v8")
    A(f"s_cmp_eq_u32 s{sLAYER}, 0")
    A("s_cselect_b64 vcc, -1, 0")
    A(f"s_cselect_b32 s{sXA}, 64, 2048")
    A(f"v_cndmask_b32 v{vRROW}, v{vRES}, v8, vcc")
    A("v_and_b32 v5, 15, v4")
    A("v_lshrrev_b32 v6, 5, v4")
    A("v_lshlrev_b32 v5, 4, v5")
    A("v_lshl_add_u32 v5, v6, 8, v5")
    A("v_bfe_u32 v6, v4, 4, 1")
    A("v_cmp_eq_u32 vcc, 0, v6")
    A(f"v_mov_b32 v7, {LDS_ONES}")
    A(f"v_mov_b32 v8, {LDS_V}")
    A("v_cndmask_b32 v7, v7, v8, vcc")
    A(f"v_add_u32 v{vVA}, v5, v7")
    A("v_mov_b32 v7, 0")
    A("v_mov_b32 v8, 0x2000")
    A(f"v_cndmask_b32 v{vVINC}, v7, v8, vcc")
    A(f"v_mov_b32 v{vIDX}, 0xdddd")
    A("v_bfe_u32 v5, v4, 4, 1")
    A("v_lshlrev_b32 v5, 9, v5")
    A("v_bfe_u32 v6, v4, 3, 1")
    A("v_lshl_add_u32 v5, v6, 8, v5")
    A("v_lshrrev_b32 v6, 5, v4")
    A("v_lshl_add_u32 v5, v6, 7, v5")
    A("v_and_b32 v6, 7, v4")
    A("v_lshl_add_u32 v5, v6, 4, v5")
    A(f"s_lshl_b32 s{sT0}, s{sW}, 10")
    A(f"s_add_u32 s{sT0}, s{sT0}, {LDS_OX}")
    A(f"v_add_u32 v{vOXW}, s{sT0}, v5")
    A("v_lshrrev_b32 v5, 4, v4")
    A("v_lshlrev_b32 v5, 7, v5")
    A("v_lshl_add_u32 v5, v6, 4, v5")
    A(f"v_add_u32 v{vOXR}, {LDS_OX}, v5")
    A("v_lshrrev_b32 v5, 2, v4")
    A("v_and_b32 v6, 3, v4")
    A("v_lshlrev_b32 v6, 2, v6")
    A(f"v_lshl_add_u32 v{vTCH}, v5, 7, v6")
    A(f"v_lshlrev_b32 v{vWFA}, 4, v0")
    A(f"v_add_u32 v{vWFA}, {WS_WFLAG}, v{vWFA}")
    A.wait_vm()
    publish(PH_QKV, sG, "st")
    stamp("qkv_pub")
    A(f"s_cmp_eq_u32 s{sLAYER}, 0")
    A("s_cbranch_scc0 L_NORELAY")
    A(f"s_lshl_b32 s{sT0}, s{sW}, 13")
    A(f"v_add_u32 v4, s{sT0}, v{vL16}")
    for n in range(6):
        A(f"ds_write_b128 v4, {vr(vRAW+4*n)} offset:{n*1024}")
    A("v_and_b32 v5, 63, v0")
    A("v_bfe_u32 v6, v5, 2, 2")
    A("v_and_b32 v8, 1, v5")
    A("v_bfe_u32 v7, v5, 1, 1")
    A("v_lshl_add_u32 v8, v8, 1, v7")
    A(f"s_cmp_ge_u32 s{sWG}, 224")
    A("s_cbranch_scc1 L_RELAY_WO")
    A("v_lshrrev_b32 v7, 5, v5")
    A("v_lshl_add_u32 v6, v7, 3, v6")
    A("v_lshlrev_b32 v6, 7, v6")
    A("v_lshl_add_u32 v6, v8, 3, v6")
    A(f"v_add_u32 v6, s{sT0}, v6")
    A("v_bfe_u32 v7, v5, 4, 1")
    A("v_lshl_add_u32 v8, v7, 11, v6")
    A("v_lshl_add_u32 v9, v7, 5, v6")
    A("s_waitcnt lgkmcnt(0)")
    R0 = 192
    for q in range(4):
        A(f"ds_read_b64_tr_b16 {vr(R0+4*q,2)}, v8 offset:{q*32}")
        A(f"ds_read_b64_tr_b16 {vr(R0+2+4*q,2)}, v8 offset:{q*32+512}")
    for ct in range(2):
        A(f"ds_read_b64_tr_b16 {vr(R0+16+4*ct,2)}, v9 offset:{4096+ct*64}")
        A(f"ds_read_b64_tr_b16 {vr(R0+18+4*ct,2)}, v9 offset:{4096+ct*64+512}")
    A(f"s_lshr_b32 s{sT0}, s{sGW}, 5")
    A(f"s_lshl_b32 s{sT0}, s{sT0}, 17")
    A(f"s_and_b32 s{sT1}, s{sGW}, 31")
    A(f"s_lshl_b32 s{sT1}, s{sT1}, 10")
    A(f"s_add_u32 s{sT0}, s{sT0}, s{sT1}")
    A(f"s_add_u32 s{sT0}, s{sT0}, {hex(WS_WGUT)}")
    A(f"s_and_b32 s{sT1}, s{sGW}, 7")
    A(f"s_mul_i32 s{sT1}, s{sT1}, 112")
    A(f"s_lshr_b32 s{sT2}, s{sGW}, 3")
    A(f"s_add_u32 s{sT1}, s{sT1}, s{sT2}")
    A(f"s_lshl_b32 s{sT1}, s{sT1}, 11")
    A(f"s_add_u32 s{sT1}, s{sT1}, {hex(WS_WDT)}")
    A("s_waitcnt lgkmcnt(0)")
    for q in range(4):
        A(f"buffer_store_dwordx4 {vr(R0+4*q)}, v{vL16}, {srd(rWS)}, s{sT0} offen sc1")
        A(f"s_add_u32 s{sT0}, s{sT0}, 32768")
    for ct in range(2):
        A(f"buffer_store_dwordx4 {vr(R0+16+4*ct)}, v{vL16}, {srd(rWS)}, s{sT1} offen offset:{ct*1024} sc1")
    A("s_branch L_RELAY_PUB")
    A.label("L_RELAY_WO")
    A("v_lshrrev_b32 v7, 4, v5")
    A("v_lshl_add_u32 v6, v7, 3, v6")
    A("v_lshlrev_b32 v6, 7, v6")
    A("v_and_b32 v8, 3, v5")
    A("v_lshl_add_u32 v6, v8, 4, v6")
    A(f"v_add_u32 v6, s{sT0}, v6")
    A("s_waitcnt lgkmcnt(0)")
    for P in range(2):
        for b in range(2):
            q = 2 * P + b
            A(f"ds_read_b64_tr_b16 {vr(R0+4*q,2)}, v6 offset:{P*64+b*8}")
            A(f"ds_read_b64_tr_b16 {vr(R0+2+4*q,2)}, v6 offset:{P*64+b*8+512}")
    A(f"s_sub_u32 s{sT2}, s{sGW}, 896")
    A(f"s_lshr_b32 s{sT0}, s{sT2}, 3")
    A(f"s_lshl_b32 s{sT0}, s{sT0}, 13")
    A(f"s_bfe_u32 s{sT1}, s{sT2}, 0x20001")
    A(f"s_lshl_b32 s{sT1}, s{sT1}, 17")
    A(f"s_add_u32 s{sT0}, s{sT0}, s{sT1}")
    A(f"s_and_b32 s{sT1}, s{sT2}, 1")
    A(f"s_lshl_b32 s{sT1}, s{sT1}, 12")
    A(f"s_add_u32 s{sT0}, s{sT0}, s{sT1}")
    A(f"s_add_u32 s{sT0}, s{sT0}, {hex(WS_WOT)}")
    A("s_waitcnt lgkmcnt(0)")
    for q in range(4):
        A(f"buffer_store_dwordx4 {vr(R0+4*q)}, v{vL16}, {srd(rWS)}, s{sT0} offen offset:{q*1024} sc1")
    A.label("L_RELAY_PUB")
    shareGU = 4 if cfg.t512 else 2
    sTOUCH = 8
    for d, kind in ((8, "gu"), (9, "wd")):
        share = shareGU if kind == "gu" else 4
        A(f"s_lshr_b32 s{d}, s{sI}, {3 if share == 4 else 4}")
        A(f"s_lshl_b32 s{d}, s{d}, 2")
        A(f"s_add_u32 s{d}, s{d}, s{sW}")
        A(f"s_mul_i32 s{d}, s{d}, {7 * 32768 // (4 * share)}")
        A(f"s_mul_i32 s{sT1}, s{sSL if kind == 'gu' else sCB}, {7*32768}")
        A(f"s_add_u32 s{d}, s{d}, s{sT1}")
        A(f"s_add_u32 s{d}, s{d}, {hex(WS_WGUT if kind == 'gu' else WS_WDT)}")
    sGUB = 16; sWOB = 17; sWDB = 20
    A(f"s_mul_i32 s{sGUB}, s{sSL}, {7*32768}")
    A(f"s_lshl_b32 s{sT1}, s{sW}, 13")
    A(f"s_add_u32 s{sGUB}, s{sGUB}, s{sT1}")
    A(f"s_add_u32 s{sGUB}, s{sGUB}, {hex(WS_WGUT)}")
    A(f"s_lshl_b32 s{sWOB}, s{sW}, 17")
    A(f"s_add_u32 s{sWOB}, s{sWOB}, {hex(WS_WOT)}")
    A(f"s_lshl_b32 s{sWDB}, s{sCB}, 2")
    A(f"s_add_u32 s{sWDB}, s{sWDB}, s{sW}")
    A(f"s_mul_i32 s{sWDB}, s{sWDB}, {56*1024}")
    A(f"s_add_u32 s{sWDB}, s{sWDB}, {hex(WS_WDT)}")
    A.label("L_NORELAY")
    for r in range(16):
        A(f"v_mov_b32 v{O[0]+r}, 0")
        A(f"v_mov_b32 v{O[1]+r}, 0")
    stamp("relay")

    sk = A.newlabel("s1"); w1 = A.newlabel("s1q"); go = A.newlabel("s1go")
    A(f"s_lshl_b32 s{sT2}, s{sG}, 13")
    A(f"s_lshl_b32 s{sT1}, s{sW}, 10")
    A(f"s_add_u32 s{sT2}, s{sT2}, s{sT1}")
    A(f"s_cmp_ge_u32 s{sW}, 2")
    A(f"s_cbranch_scc1 {sk}")
    A("v_and_b32 v4, 63, v0")
    A(f"s_cmp_eq_u32 s{sW}, 1")
    A(f"s_cbranch_scc1 {w1}")
    A("v_lshrrev_b32 v5, 1, v4")
    A("v_lshlrev_b32 v5, 3, v5")
    A("v_and_b32 v4, 1, v4")
    A("v_add_u32 v5, v5, v4")
    A(f"s_branch {go}")
    A.label(w1)
    A("v_and_b32 v5, 7, v4")
    A(f"s_lshl_b32 s{sT0}, s{sTB}, 3")
    A(f"v_add_u32 v5, s{sT0}, v5")
    A.label(go)
    A("v_lshlrev_b32 v5, 7, v5")
    A(f"v_add_u32 v5, {hex(flagbase(PH_QKV))}, v5")
    poll(5, "s1")
    A.label(sk)
    A("s_waitcnt lgkmcnt(0)"); A.lg = []
    A("s_barrier")
    stamp("s1")
    A.vm = []
    chunks = [(0, 4), (4, 16), (16, 32), (32, 64)]
    def kv_dma_list(ci):
        t0, t1 = chunks[ci]
        n = (t1 - t0) // 4
        return [(ci, base + t0 * 1024, n, u) for base in (0, 0x10000) for u in range(n)]
    sKV = sT4
    def kv_pre(ent):
        ci, base, n, u = ent
        if u % 4 == 0:
            if ci < 2: A(f"s_mul_i32 s{sT5}, s{sW}, {n*1024}")
            src = sT5 if ci < 2 else (sT0 if ci == 2 else sT1)
            A(f"s_add_u32 m0, s{src}, {base + u*1024}")
            A(f"s_add_u32 s{sKV}, s{src}, {hex(L_KV + base + u*1024)}")
    def kv_dma(ent, pre=True):
        ci, base, n, u = ent
        if pre: kv_pre(ent)
        A.vmem(f"buffer_load_dwordx4 v{vL16}, {srd(rL)}, s{sKV} offen offset:{(u%4)*1024} sc1 lds", f"kv{ci}")
    A.vmem(f"buffer_load_dwordx4 {vr(Q[0])}, v{vL16}, {srd(rL)}, s{sT2} offen sc1", "q0")
    for e in kv_dma_list(0): kv_dma(e)
    for e in kv_dma_list(1): kv_dma(e)
    sWO = sT3
    def wo_base(part):
        A(f"s_add_u32 s{sWO}, s{sWOB}, {hex(part * 0x10000)}")
    def wo_load(f, part):
        A.vmem(f"buffer_load_dwordx4 {ar(4*f)}, v{vL16}, {srd(rWS)}, s{sWO} offen offset:{(f%4)*1024} sc1", f"wo{part}")
    A(f"s_lshl_b32 s{sT0}, s{sW}, 12")
    A(f"s_lshl_b32 s{sT1}, s{sW}, 13")
    kv_pre(kv_dma_list(2)[0])
    A(f"s_add_u32 s{sT2}, s{sT2}, 4096")
    A.wait_vm("kv0")
    A("s_barrier")
    sk = A.newlabel("wpub")
    A(f"s_cmp_lg_u32 s{sW}, 3")
    A(f"s_cbranch_scc1 {sk}")
    A(f"s_lshl_b32 s{sCNT}, s{sWG}, 4")
    A(f"s_add_u32 s{sCNT}, s{sCNT}, {WS_WFLAG}")
    A("v_mov_b32 v4, 0")
    A("s_mov_b64 exec, 1")
    A(f"buffer_store_dword v{vTAG}, v4, {srd(rWS)}, s{sCNT} offen sc1")
    A("s_mov_b64 exec, -1")
    A.label(sk)
    stamp("att_kv0")
    def rdK(n): A.ds(f"ds_read_b128 {vr(KB[n%2])}, v{vL16} offset:{(n%64)*1024}", f"K{n}")
    def rdV(n):
        A.ds(f"ds_read_b128 {vr(V0[n%2])}, v{vVA} offset:{(n%8)*1024}", f"V{n}")
        A.ds(f"ds_read_b128 {vr(V1[n%2])}, v{vVA} offset:{(n%8)*1024+512}", f"V{n}")
    def qk(n): A(f"v_mfma_f32_32x32x16_bf16 {vr(S[n%2],16)}, {vr(KB[n%2])}, {vr(Q[n//64])}, 0")
    rdK(0); rdK(1); rdV(0)
    A.wait_lg("K0")
    qk(0)
    def finalize_O(p):
        o = O[p]
        fb = f"L_FB{p}"; bk = f"L_FBR{p}"
        L = []
        L.append(lambda: A(f"v_add_u32 v4, {hex((0x100000000 - 0x21800000) & 0xffffffff)}, v{o+8}"))
        L.append(lambda: A(f"v_cmp_lt_u32 vcc, 0x3c000000, v4"))
        L.append(lambda: (A(f"s_cbranch_vccnz {fb}"), A.label(bk), A(f"v_rcp_f32 v4, v{o+8}")))
        for r in range(8):
            L.append(lambda r=r: A(f"v_mul_f32 v{o+r}, v4, v{o+r}"))
        for r in range(4):
            L.append(lambda r=r: A(f"v_cvt_pk_bf16_f32 v{8+r}, v{o+2*r}, v{o+2*r+1}"))
        L.append(lambda: A.ds(f"ds_write_b128 v{vOXW}, v[8:11] offset:{p*4096}", "oxw"))
        return L
    def oproj_mfma(f, part):
        jl, ctl = f // 8, f % 8
        Pp, b = ctl // 2, ctl % 2
        c = vr(vPA + 4 * ctl)
        if part == 0 and jl == 0: c = vr(vZ + 8 * (Pp % 2) + 4 * b)
        A.wait_lg(f"of{part}_{jl}")
        A(f"v_mfma_f32_16x16x32_bf16 {vr(vPA+4*ctl)}, {ar(4*f)}, {vr(vOF[jl%2])}, {c}")
    def of_read(part, jl): A.ds(f"ds_read_b128 {vr(vOF[jl%2])}, v{vOXR} offset:{part*4096 + jl*512}", f"of{part}_{jl}")
    sGU = sT4
    def gu_pre(tile, u):
        if u % 4: return
        if tile == 4:
            A(f"s_lshl_b32 m0, s{sW}, 13"); A(f"s_add_u32 m0, m0, {0x20000 + u * 1024}")
        else: A(f"s_add_u32 m0, s{sGUL}, {(tile % 5) * 16384 + u * 1024}")
        A(f"s_add_u32 s{sGU}, s{sGUB}, {tile * 32768 + u * 1024}")
    def gu_dma(tile, u, pre=True):
        if pre: gu_pre(tile, u)
        A.vmem(f"buffer_load_dwordx4 v{vL16}, {srd(rWS)}, s{sGU} offen offset:{(u%4)*1024} sc1 lds", f"gu{tile}")
    def gu_addr(j, s):
        if j == 4: return 0x20000 + s * 1024
        return (j % 5) * 16384 + (s // 16) * 0x10000 + (s % 16) * 1024

    postqk = {n: [] for n in range(128)}
    valu = {n: [] for n in range(128)}
    m16 = {n: [] for n in range(128)}
    pre_reads = {n: [] for n in range(128)}
    postsm1 = {n: [] for n in range(128)}
    first = [lambda: A.vmem(f"buffer_load_dword v{vWFL}, v{vWFA}, {srd(rWS)}, 0 offen sc1", "wfl"),
             lambda: A.vmem(f"buffer_load_dwordx4 {vr(Q[1])}, v{vL16}, {srd(rL)}, s{sT2} offen sc1", "q1")]
    dle = kv_dma_list(2) + kv_dma_list(3)
    dl = [(lambda e=e: kv_dma(e, False)) for e in dle]
    last = [lambda: A.vmem(f"buffer_load_dwordx4 {vr(vZR)}, v{vRROW}, {srd(rXIN)}, 0 offen sc1", "res"),
            lambda: A.vmem(f"buffer_load_dwordx4 {vr(vZR+4)}, v{vRROW}, {srd(rXIN)}, s{sXA} offen sc1", "res")]
    for k, th in enumerate(dl + last + first[::-1]): postqk[k // 2].append(th)
    for k, e in enumerate(dle):
        n_ = k // 2
        if e[3] % 4 == 0 and n_ > 0: postsm1[n_ - 1].append(lambda e=e: kv_pre(e))
    def bar(tags):
        def f():
            A.wait_vm(tags); A("s_barrier")
        return f
    for ci in (1, 2, 3):
        pre_reads[chunks[ci][0] - 2].append(bar(f"kv{ci}"))
    W0 = cfg.wo0
    pre_reads[W0].insert(0, lambda: (check_or_spin(vWFL, vWFA, rWS, "wfl", "wfl"), A("s_barrier")))
    postsm1[W0 - 1].append(lambda: wo_base(0))
    for f in range(64):
        postqk[W0 + f // 2].append(lambda f=f: wo_load(f, 0))
        if f % 4 == 3 and f < 63: postsm1[W0 + f // 2].append(lambda: A(f"s_add_u32 s{sWO}, s{sWO}, 4096"))
    def touch(m):
        A.vmem(f"buffer_load_dword v{vJUNK}, v{vTCH}, {srd(rWS)}, s{sT0} offen offset:{(m % 2) * 2048} sc1", "touch")
    tl = ([(8, m) for m in range(28 // shareGU)] if cfg.warm_gu else []) + ([(9, m) for m in range(7)] if cfg.warm_wd else [])
    for k_, (d, m) in enumerate(tl):
        n_ = cfg.warm0 + (k_ * cfg.warm_span) // len(tl)
        if m % 2 == 0: postsm1[n_ - 1].append(lambda d=d, m=m: A(f"s_add_u32 s{sT0}, s{d}, {m * 2048}"))
        postqk[n_].append(lambda m=m: touch(m))
    valu[55].append(lambda: A.wait_vm("res"))
    for k in range(16):
        valu[56 + k // 4].append(lambda k=k: unpack(vZ, vZR, k))
    fin0 = finalize_O(0)
    for k, th in enumerate(fin0[:-1]):
        valu[65 if k < 9 else 66].append(th)
    postqk[67].append(fin0[-1])
    def ox_bar():
        A.wait_lg("oxw"); A.wait_vm("wo0"); A("s_barrier")
    pre_reads[68].append(ox_bar)
    postqk[68].append(lambda: of_read(0, 0))
    postsm1[69].append(lambda: wo_base(1))
    for f in range(64):
        n = 69 + f // 2
        m16[n].append(lambda f=f: oproj_mfma(f, 0))
        postqk[n + 1].append(lambda f=f: wo_load(f, 1))
        if f % 4 == 3 and f < 63: postsm1[n + 1].append(lambda: A(f"s_add_u32 s{sWO}, s{sWO}, 4096"))
        if f % 8 == 0 and f // 8 + 1 < 8:
            postqk[n + 1].append(lambda f=f: of_read(0, f // 8 + 1))
    for j, (nb, n0) in enumerate(cfg.gu_att):
        assert nb >= 64 + 16 * (j + 1) and n0 >= nb
        if j == 0 or cfg.gu_att[j - 1][0] != nb: pre_reads[nb].append(lambda: A("s_barrier"))
        for u in range(8):
            postqk[n0 + u // 2].append(lambda j=j, u=u: gu_dma(j, u, False))
            if u % 4 == 0: postsm1[n0 + u // 2 - 1].append(lambda j=j, u=u: gu_pre(j, u))
    for n in range(128):
        cur, nxt = S[n % 2], S[(n + 1) % 2]
        e = lambda i: A(f"v_exp_f32 v{cur+i}, v{cur+i}")
        e(0); e(1); e(2)
        if n > 0:
            A(f"v_smfmac_f32_32x32x32_bf16 {vr(O[(n-1)//64],16)}, {vr(V1[(n-1)%2])}, {vr(nxt+8,8)}, v{vIDX}")
        A.wait_lg([f"K{n+1}", f"V{n}"])
        e(3); e(4); e(5)
        if n < 127:
            if n + 1 == 64: A.wait_vm("q1")
            qk(n + 1)
        for th in pre_reads[n]: th()
        if n + 2 < 128: rdK(n + 2)
        if n + 1 < 128: rdV(n + 1)
        for th in postqk[n]: th()
        e(6); e(7); e(8)
        if len(m16[n]) > 0: m16[n][0]()
        e(9); e(10)
        A(f"v_smfmac_f32_32x32x32_bf16 {vr(O[n//64],16)}, {vr(V0[n%2])}, {vr(cur,8)}, v{vIDX}")
        for th in postsm1[n]: th()
        e(11); e(12)
        for th in valu[n]: th()
        if n % 8 == 6 and n < 126:
            if n == 62:
                A(f"v_mul_u32_u24 v5, 7, v{vVINC}"); A(f"v_sub_u32 v{vVA}, v{vVA}, v5")
            else: A(f"v_add_u32 v{vVA}, v{vVA}, v{vVINC}")
        e(13)
        if len(m16[n]) > 1: m16[n][1]()
        e(14); e(15)
    A("s_nop 1")
    A(f"v_smfmac_f32_32x32x32_bf16 {vr(O[1],16)}, {vr(V1[1])}, {vr(S[1]+8,8)}, v{vIDX}")
    vY = 16
    A("v_and_b32 v12, 63, v0")
    A("v_bfe_u32 v5, v12, 3, 1")
    A(f"v_cmp_eq_u32 s[{sM0}:{sM0+1}], 0, v5")
    A("v_and_b32 v6, 7, v12")
    A(f"s_lshl_b32 s{sT0}, s{sW}, 3")
    A(f"s_add_u32 s{sT0}, s{sT0}, {LDS_LNX}")
    A(f"v_lshl_add_u32 v13, v6, 5, s{sT0}")
    A(f"v_lshlrev_b32 v6, 5, v6")
    A(f"v_add_u32 v14, {LDS_LNX}, v6")
    stamp("att_main")
    for th in finalize_O(1): th()
    A.wait_lg()
    A.wait_vm(["wo1"] + [f"gu{t}" for t in range(len(cfg.gu_att))])
    A("s_barrier")
    ngu_att = len(cfg.gu_att)
    gul = [(t, u) for t in range(ngu_att, 4) for u in range(8)]
    wdl = list(range(56))
    def wd_load():
        f = wdl.pop(0)
        if f == 0: A(f"s_mov_b32 s{sWDO}, s{sWDB}")
        elif f % 4 == 0: A(f"s_add_u32 s{sWDO}, s{sWDO}, 4096")
        A.vmem(f"buffer_load_dwordx4 {ar(4*f)}, v{vL16}, {srd(rWS)}, s{sWDO} offen offset:{(f%4)*1024} sc1", "wd")
    vOF8 = 208
    for jl in range(8): A.ds(f"ds_read_b128 {vr(vOF8+4*jl)}, v{vOXR} offset:{4096 + jl*512}", f"og{jl}")
    def stat_ops(t):
        L = []
        for k in range(4 * t, 4 * t + 4):
            L.append(lambda k=k: A(f"v_cndmask_b32 v{vY+k}, v{vPA+16+k}, v{vPA+k}, s[{sM0}:{sM0+1}]"))
        for k in range(4 * t, 4 * t + 4):
            if k == 0:
                L.append(lambda: A(f"v_mov_b32 v8, v{vY}")); L.append(lambda: A(f"v_mul_f32 v9, v{vY}, v{vY}"))
            else:
                L.append(lambda k=k: A(f"v_add_f32 v8, v8, v{vY+k}")); L.append(lambda k=k: A(f"v_fmac_f32 v9, v{vY+k}, v{vY+k}"))
        return L
    def pack_ops(t):
        return [(lambda k=k: A(f"v_cvt_pk_bf16_f32 v{vY+16+k}, v{vY+2*k}, v{vY+2*k+1}")) for k in (2 * t, 2 * t + 1)]
    pend = []; nm = 0; done_f = set()
    groups = [(0, 4, 1, 5), (2, 6), (3, 7)]
    for gi, grp in enumerate(groups):
        for jl in range(8):
            for ci, ctl in enumerate(grp):
                f = jl * 8 + ctl
                A.wait_lg(f"og{jl}")
                A(f"v_mfma_f32_16x16x32_bf16 {vr(vPA+4*ctl)}, {ar(4*f)}, {vr(vOF8+4*jl)}, {vr(vPA+4*ctl)}")
                done_f.add(f); nm += 1
                if nm % 5 == 2 and nm < cfg.op_vm * 5:
                    if gul: gu_dma(*gul.pop(0))
                    elif wdl[0] in done_f and wdl[0] != f: wd_load()
                elif pend and (jl > 1):
                    pend.pop(0)()
                    if pend: pend.pop(0)()
        for t in grp:
            if t < 4: pend += stat_ops(t) + (pack_ops(t) if gi < 2 else [])
    stamp("att_oproj")
    while pend: pend.pop(0)()
    A("s_nop 0")
    A(f"v_add_f32_dpp v8, v8, v8 row_ror:8 row_mask:0xf bank_mask:0xf")
    A(f"v_add_f32_dpp v9, v9, v9 row_ror:8 row_mask:0xf bank_mask:0xf")
    for sw in ("v_permlane16_swap_b32", "v_permlane32_swap_b32"):
        A("v_mov_b32 v10, v8")
        A("v_mov_b32 v11, v9")
        A("s_nop 0")
        A(f"{sw} v8, v10")
        A(f"{sw} v9, v11")
        A("v_add_f32 v8, v8, v10")
        A("v_add_f32 v9, v9, v11")
    A("s_mov_b64 exec, 0xff")
    A.ds("ds_write_b64 v13, v[8:9]")
    A("s_mov_b64 exec, -1")
    for th in pack_ops(3): th()
    A.wait_lg()
    A("s_barrier")
    A.ds("ds_read_b128 v[40:43], v14")
    A.ds("ds_read_b128 v[44:47], v14 offset:16")
    A(f"s_mov_b32 s{sT1}, {hex(f32(1.0/512))}")
    A.wait_lg()
    A("v_add_f32 v8, v40, v42")
    A("v_add_f32 v9, v41, v43")
    A("v_add_f32 v10, v44, v46")
    A("v_add_f32 v11, v45, v47")
    A("v_add_f32 v8, v8, v10")
    A("v_add_f32 v9, v9, v11")
    A(f"v_mul_f32 v8, s{sT1}, v8")
    A(f"v_mul_f32 v9, s{sT1}, v9")
    A("v_fma_f32 v9, -v8, v8, v9")
    A("v_max_f32 v9, 0, v9")
    A(f"v_add_f32 v9, {hex(f32(1e-5))}, v9")
    A("v_rsq_f32 v9, v9")
    A(f"s_mov_b32 s{sT1}, {hex(L_XN1)}")
    A("v_mul_f32 v8, v8, v9")
    for k in range(16):
        A(f"v_fma_f32 v{vY+k}, v{vY+k}, v9, -v8")
        if k % 2 == 1: A(f"v_cvt_pk_bf16_f32 v{40+k//2}, v{vY+k-1}, v{vY+k}")
        if k == 7: A.vmem(f"buffer_store_dwordx4 v[40:43], v{vRES}, {srd(rL)}, s{sT1} offen sc1", "st")
    A.vmem(f"buffer_store_dwordx4 v[44:47], v{vRES}, {srd(rL)}, s{sT1} offen offset:2048 sc1", "st")
    A(f"s_mov_b32 s{sT1}, {hex(L_X1)}")
    A.vmem(f"buffer_store_dwordx4 {vr(vY+16)}, v{vRES}, {srd(rL)}, s{sT1} offen sc1", "st")
    A.vmem(f"buffer_store_dwordx4 {vr(vY+20)}, v{vRES}, {srd(rL)}, s{sT1} offen offset:2048 sc1", "st")
    gul += [(4, u) for u in range(7)]
    for _ in range(cfg.ack_vm):
        if gul: gu_dma(*gul.pop(0))
        else: wd_load()
    vTKV_, aTK = 160, 224; ACC = [16, 32, 48, 64]; vWB = 80; NWB = 5; vHP = 120; vX1R = 128; vHA = 8
    vSB = [vL16, 9, 10]; vFE = 12; vFF = 13; vFR = 14
    def tk(s): return vr(vTKV_ + 4 * s) if s < 24 else ar(aTK + 4 * (s - 24))
    A("v_and_b32 v7, 3, v0")
    A(f"s_lshl_b32 s{sT0}, s{sBLK}, 2")
    A(f"s_add_u32 s{sT0}, s{sT0}, s{sW}")
    A(f"s_lshl_b32 s{sT1}, s{sT0}, 2")
    A(f"s_lshl_b32 s{sHO}, s{sT1}, 7")
    A(f"s_add_u32 s{sHO}, s{sHO}, {hex(flagbase(PH_ATT))}")
    A(f"v_add_u32 v{vSB[1]}, 0x10000, v{vL16}")
    A(f"v_add_u32 v{vSB[2]}, 0x20000, v{vL16}")
    A(f"s_mul_i32 s{sT2}, s{sT0}, 112")
    A(f"s_mul_i32 s{sT1}, s{sSL}, 7")
    A(f"s_add_u32 s{sT2}, s{sT2}, s{sT1}")
    A(f"s_lshl_b32 s{sT2}, s{sT2}, 10")
    A(f"s_add_u32 s{sT2}, s{sT2}, {hex(L_H)}")
    A(f"v_add_u32 v{vHA}, s{sT2}, v{vL16}")
    A(f"s_lshl_b32 s{sT0}, s{sT0}, 15")
    A(f"s_add_u32 s{sT0}, s{sT0}, {hex(L_XN1)}")
    A(f"s_lshr_b32 s{sT1}, s{sTB}, 1")
    A(f"s_lshl_b32 s{sT1}, s{sT1}, 2")
    A(f"s_add_u32 s{sT1}, s{sT1}, s{sW}")
    A(f"s_lshl_b32 s{sT1}, s{sT1}, 2")
    A(f"v_add_u32 v7, s{sT1}, v7")
    A("v_lshlrev_b32 v7, 7, v7")
    A(f"v_add_u32 v{vFE}, {hex(flagbase(PH_FF1E))}, v7")
    A(f"s_lshl_b32 s{sXB}, s{sT1}, 7")
    A(f"s_add_u32 s{sXB}, s{sXB}, {hex(flagbase(PH_FF1))}")
    publish(PH_ATT, sG, "st")
    stamp("att_pub")
    while gul: gu_dma(*gul.pop(0))
    gu_dma(4, 7)
    for _ in range(cfg.wd_s2): wd_load()
    assert ngu_att == 3

    s_spin(rL, sHO, 4, "s2")
    stamp("s2")
    def tk_load(s):
        if s % 4 == 0 and s: A(f"s_add_u32 s{sT0}, s{sT0}, 4096")
        A.vmem(f"buffer_load_dwordx4 {tk(s)}, v{vL16}, {srd(rL)}, s{sT0} offen offset:{(s%4)*1024} sc1", f"tk{s}")
    seq = [(j, s) for s in range(32) for j in range(3)] + [(j, s) for j in range(3, 7) for s in range(32)]
    acc_of = {0: 0, 1: 1, 2: 2, 3: 3, 4: 0, 5: 1, 6: 2}
    def w_read(k):
        off = gu_addr(*seq[k])
        A.ds(f"ds_read_b128 {vr(vWB+4*(k%NWB))}, v{vSB[off>>16]} offset:{off & 0xffff}", f"wb{k}")
    def h_epi(j):
        a = ACC[acc_of[j]]
        L = []
        for r in range(8):
            L.append(lambda r=r: A(f"v_max_f32 v{a+r}, 0, v{a+r}"))
            L.append(lambda r=r: A(f"v_mul_f32 v{a+r}, v{a+r}, v{a+8+r}"))
            if r % 2 == 1: L.append(lambda r=r: A(f"v_cvt_pk_bf16_f32 v{vHP+4*(j%2)+r//2}, v{a+r-1}, v{a+r}"))
        L.append(lambda: A.vmem(f"buffer_store_dwordx4 {vr(vHP+4*(j%2))}, v{vHA}, {srd(rL)}, s{sT1} offen offset:{(j%4)*1024} sc1", f"hst{j}"))
        return L
    extras = {k: [] for k in range(len(seq))}
    LOOK = NWB - 1
    k3 = 96
    NTK0 = cfg.tk0
    for s in range(NTK0): tk_load(s)
    for s in range(NTK0, 32): extras[(s - NTK0) * 2].append(lambda s=s: tk_load(s))
    ep = h_epi(0) + h_epi(1) + h_epi(2) + h_epi(3)
    for n, th in enumerate(ep): extras[k3 + 3 + (2 * n) // 3].append(th)
    for j in (4, 5):
        for n, th in enumerate(h_epi(j)): extras[k3 + 32 * (j - 2) + 3 + n // 2].append(th)
    g56 = [(5, u) for u in range(8)] + [(6, u) for u in range(8)]
    for n, e in enumerate(g56):
        extras[k3 + cfg.g56 * n].append(lambda e=e: gu_pre(*e))
        extras[k3 + 1 + cfg.g56 * n].insert(0, lambda e=e: gu_dma(*e, False))
    def x1_load():
        A(f"s_lshl_b32 s{sT0}, s{sTB}, 6")
        A(f"s_lshl_b32 s{sT2}, s{sCB}, 2")
        A(f"s_add_u32 s{sT0}, s{sT0}, s{sT2}")
        A(f"s_and_b32 s{sT2}, s{sW}, 1")
        A(f"s_lshl_b32 s{sT2}, s{sT2}, 1")
        A(f"s_add_u32 s{sT0}, s{sT0}, s{sT2}")
        A(f"s_lshr_b32 s{sT2}, s{sW}, 1")
        A(f"s_add_u32 s{sT0}, s{sT0}, s{sT2}")
        A(f"s_lshl_b32 s{sT0}, s{sT0}, 10")
        A(f"s_add_u32 s{sT0}, s{sT0}, {hex(L_X1)}")
        A(f"s_add_u32 s{sT2}, s{sT0}, 32768")
    split_later = [(x1_load, 82, 2)]
    extras[k3 + 50].append(lambda: A.vmem(f"buffer_load_dwordx4 {vr(vX1R)}, v{vL16}, {srd(rL)}, s{sT0} offen sc1", "x1"))
    extras[k3 + 53].append(lambda: A.vmem(f"buffer_load_dwordx4 {vr(vX1R+4)}, v{vL16}, {srd(rL)}, s{sT2} offen sc1", "x1"))
    slots = list(range((32 - NTK0) * 2 + 1, k3 - 2, 3))
    ntail = len(wdl) - len(slots)
    slots += [k3 + 58 + (n * (122 - 58)) // max(ntail, 1) for n in range(ntail)]
    nrem = len(wdl)
    assert len(slots) >= nrem, (len(slots), nrem)
    for n in range(nrem): extras[slots[n]].append(wd_load)
    def early_pub():
        A.wait_vm("hst4"); A("s_barrier"); flag_store(PH_FF1E, sID1)
    extras[k3 + cfg.epub].append(early_pub)
    extras[k3 + cfg.epoll].append(lambda: A.vmem(f"buffer_load_dword v{vFR}, v{vFE}, {srd(rL)}, 0 offen sc1", "fe"))
    def h_base():
        A(f"s_mul_i32 s{sHO}, s{sTB}, 224")
        A(f"s_mul_i32 s{sHS}, s{sW}, 28")
        A(f"s_add_u32 s{sHO}, s{sHO}, s{sHS}")
        A(f"s_lshl_b32 s{sHO}, s{sHO}, 10")
        A(f"s_add_u32 s{sHO}, s{sHO}, {hex(L_H)}")
    extras[k3 + 116].append(h_base)
    AC = [[16, 32], [48, 64]]; vHR = 156; NHR = 19; vRT = 232; vOA = 152; vRW = 153; vRR = 154; vRS = 136
    def ffn2_addrs():
        A(f"s_lshl_b32 s{sT0}, s{sW}, 11")
        A(f"v_add_u32 v{vRW}, s{sT0}, v{vL16}")
        A(f"s_lshl_b32 s{sT0}, s{sW}, 13")
        A(f"v_add_u32 v{vRR}, s{sT0}, v{vL16}")
        A(f"s_and_b32 s{sT3}, s{sW}, 1")
        A(f"s_lshl_b32 s{sT3}, s{sT3}, 1")
        A(f"s_lshr_b32 s{sT2}, s{sW}, 1")
        A(f"s_add_u32 s{sT3}, s{sT3}, s{sT2}")
        A(f"s_lshl_b32 s{sT2}, s{sCB}, 2")
        A(f"s_add_u32 s{sT3}, s{sT3}, s{sT2}")
        A(f"s_lshl_b32 s{sT0}, s{sTB}, 16")
        A(f"s_cmp_eq_u32 s{sLAYER}, 0")
        A("s_cselect_b64 vcc, -1, 0")
        A(f"s_cselect_b32 s{sT2}, 10, 5")
        A(f"s_lshl_b32 s{sT3}, s{sT3}, s{sT2}")
        A(f"s_add_u32 s{sT0}, s{sT0}, s{sT3}")
        A("v_and_b32 v6, 31, v0")
        A("v_bfe_u32 v7, v0, 5, 1")
        A("v_lshlrev_b32 v6, 10, v6")
        A("v_lshl_add_u32 v6, v7, 4, v6")
        A(f"v_cndmask_b32 v6, v6, v{vL16}, vcc")
        A(f"v_add_u32 v{vOA}, s{sT0}, v6")
    def split(fn, k0, per):
        B = A.L; A.L = []; fn(); ins = A.L; A.L = B
        units = []
        for ln in ins:
            if ln.startswith("s_cselect"): units[-1].append(ln)
            else: units.append([ln])
        for n in range(0, len(units), per):
            extras[k0 + n // per].append(lambda part=sum(units[n:n + per], []): A.L.extend(part))
    for e in split_later: split(*e)
    split(ffn2_addrs, 60, 2)
    split(w_dma_setup, 74, 2)
    for k_ in range(16): extras[k3 + cfg.epub + 1 + k_ // 2].append(lambda k_=k_: unpack(vRS + 8 * (k_ // 8), vX1R + 4 * (k_ // 8), k_ % 8))

    A(f"s_mov_b32 s{sT1}, 0")
    for k in range(LOOK): w_read(k)
    for k, (j, s) in enumerate(seq):
        if k == 0: A.wait_vm("tk0"); A.wait_lg("wb0")
        a = ACC[acc_of[j]]
        A(f"v_mfma_f32_32x32x16_bf16 {vr(a,16)}, {vr(vWB+4*(k%NWB))}, {tk(s)}, {vr(a,16) if s else 0}")
        if k + 1 < len(seq):
            A.wait_lg(f"wb{k+1}")
            if k + 1 < k3 and seq[k + 1][0] == 0: A.wait_vm(f"tk{seq[k+1][1]}")
        if k == k3: A("s_barrier")
        kn = k + LOOK
        if kn < len(seq):
            if kn == k3:
                A.wait_vm(["gu3", "gu4"]); A("s_barrier")
            if kn == k3 + 64:
                A.wait_vm(["gu5", "gu6"]); A("s_barrier")
            w_read(kn)
        if k in (2, k3 - 1, k3 + 63): fstamp(f"f1_k{k}")
        if k == k3 + 64: A(f"s_mov_b32 s{sT1}, 4096")
        for th in extras[k]: th()
    assert not wdl
    for th in h_epi(6): th()
    stamp("ffn1_mm")

    early = [7 * sl + j for sl in range(4) for j in range(5)]; late = [7 * sl + j for sl in range(4) for j in (5, 6)]
    ne = cfg.e1
    order = [(0, k) for k in early] + [(1, k) for k in early[:ne]] + [(0, k) for k in late] + [(1, k) for k in early[ne:]] + [(1, k) for k in late]
    nlate = 20 + ne; nA = 28 + ne
    def h_load(n):
        tt, k = order[n]
        A(f"s_add_u32 s{sHS}, s{sHO}, {tt*112*1024 + (k // 4) * 4096}")
        A.vmem(f"buffer_load_dwordx4 {vr(vHR+4*(n%NHR))}, v{vL16}, {srd(rL)}, s{sHS} offen offset:{(k%4)*1024} sc1", f"h{n}")
    NH0 = cfg.h0
    slow = A.newlabel("eslow"); join = A.newlabel("ejoin")
    A.wait_vm("fe")
    A(f"v_cmp_ne_u32 vcc, v{vFR}, v{vTAG}")
    A(f"s_cbranch_vccnz {slow}")
    sv = list(A.vm)
    for n in range(NH0): h_load(n)
    publish(PH_FF1, sID1, "hst6")
    A(f"s_branch {join}")
    A.label(slow)
    after = list(A.vm); A.vm = sv
    publish(PH_FF1, sID1, "hst6")
    spin(vFE, rL, "s3e", vFR); A.vm = []
    for n in range(NH0): h_load(n)
    assert A.vm == after
    A.label(join)
    stamp("ffn1_pub")
    def red_write(tt):
        L = []
        for own in range(4):
            a = AC[tt][own % 2] + 8 * (own // 2)
            for h in range(2):
                L.append(lambda a=a, own=own, h=h: A.ds(f"ds_write_b128 v{vRW}, {vr(a+4*h)} offset:{tt*32768 + own*8192 + h*1024}", f"rw{tt}"))
        return L
    def out_store(tt):
        A(f"s_mov_b32 s{sT2}, {tt*32768}")
        if cfg.out_plain:
            pl = A.newlabel("opl"); dn = A.newlabel("odn")
            A(f"s_cmp_eq_u32 s{sLAYER}, 0")
            A(f"s_cbranch_scc0 {pl}")
            A.vmem(f"buffer_store_dwordx4 {vr(92+4*tt)}, v{vOA}, {srd(rOUT)}, s{sT2} offen sc1", "ost")
            A(f"s_branch {dn}")
            A.label(pl)
            A(f"buffer_store_dwordx4 {vr(92+4*tt)}, v{vOA}, {srd(rOUT)}, s{sT2} offen")
            A.label(dn)
        else:
            A.vmem(f"buffer_store_dwordx4 {vr(92+4*tt)}, v{vOA}, {srd(rOUT)}, s{sT2} offen sc1", "ost")
    def red_final(tt):
        L = []
        for src in range(4):
            for h in range(2):
                d = (vRT + 8 * src + 4 * h) if src < 3 else (84 + 4 * h)
                L.append(lambda src=src, h=h, d=d: A.ds(f"ds_read_b128 {vr(d)}, v{vRR} offset:{tt*32768 + src*2048 + h*1024}", f"rr{tt}"))
        L.append(lambda: A.wait_lg(f"rr{tt}"))
        for r in range(8):
            L.append(lambda r=r: A(f"v_add_f32 v{vRT+r}, v{vRT+r}, v{vRT+8+r}"))
            L.append(lambda r=r: A(f"v_add_f32 v{84+r}, v{84+r}, v{vRT+16+r}"))
            L.append(lambda r=r: A(f"v_add_f32 v{vRT+r}, v{vRT+r}, v{vRS+8*tt+r}"))
        for r in range(8):
            L.append(lambda r=r: A(f"v_add_f32 v{vRT+r}, v{vRT+r}, v{84+r}"))
            if r % 2 == 1: L.append(lambda r=r: A(f"v_cvt_pk_bf16_f32 v{92+4*tt+r//2}, v{vRT+r-1}, v{vRT+r}"))
        L.append(lambda: out_store(tt))
        return L
    def red_last():
        dn = A.newlabel("rl")
        labs = [A.newlabel("rlw") for _ in range(4)]
        A("s_nop 9")
        A(f"s_cmp_eq_u32 s{sW}, 1"); A(f"s_cbranch_scc1 {labs[1]}")
        A(f"s_cmp_eq_u32 s{sW}, 2"); A(f"s_cbranch_scc1 {labs[2]}")
        A(f"s_cmp_eq_u32 s{sW}, 3"); A(f"s_cbranch_scc1 {labs[3]}")
        for wv in range(4):
            A.label(labs[wv])
            for own in [(wv + d) % 4 for d in (2, 1, 3)]:
                a = AC[1][own % 2] + 8 * (own // 2)
                for h in range(2):
                    A(f"ds_write_b128 v{vL16}, {vr(a+4*h)} offset:{32768 + own*8192 + ((wv - own) % 4)*2048 + h*1024}")
            a = AC[1][wv % 2] + 8 * (wv // 2)
            for r in range(8): A(f"v_add_f32 v{84+r}, v{a+r}, v{vRS+8+r}")
            if wv < 3: A(f"s_branch {dn}")
        A.label(dn)
        A.wait_lg(); A.wait_vm("wq0")
        A("s_barrier")
        for src in range(3):
            for h in range(2):
                A.ds(f"ds_read_b128 {vr(vRT + 8*src + 4*h)}, v{vRR} offset:{32768 + (src+1)*2048 + h*1024}", f"r{src}")
        for src in range(3):
            A.wait_lg(f"r{src}")
            for r in range(8):
                A(f"v_add_f32 v{84+r}, v{84+r}, v{vRT+8*src+r}")
                if src == 2 and r % 2 == 1: A(f"v_cvt_pk_bf16_f32 v{96+r//2}, v{84+r-1}, v{84+r}")
        out_store(1)
    ex2 = {n: [] for n in range(56)}
    for i_, th in enumerate(red_write(0)): ex2[nA + 1 + i_ // 3].append(th)
    def rbar():
        A.wait_lg("rw0"); A("s_barrier")
    ex2[nA + 5].append(rbar)
    rf = red_final(0)
    for i_, th in enumerate(rf): ex2[min(nA + 5 + i_ // 8, 55)].append(th)
    wl = [(c, n) for c in range(4) for n in range(5)]
    nxt_load = NH0
    ahead = cfg.h_ahead
    for n in range(56):
        tt, k = order[n]
        if n == 0: A.wait_vm("h0")
        for ct in range(2):
            A(f"v_mfma_f32_32x32x16_bf16 {vr(AC[tt][ct],16)}, {ar(4*(2*k+ct))}, {vr(vHR+4*(n%NHR))}, {vr(AC[tt][ct],16) if n not in (0, 20) else 0}")
            if ct == 1 and n < 55: A.wait_vm(f"h{n+1}")
            if nxt_load < 56 and nxt_load <= n + min(ahead, NHR - 1):
                if nxt_load == nlate:
                    if n < cfg.fchk: continue
                    s_spin(rL, sXB, 4, "s3f", issued=True)
                h_load(nxt_load); nxt_load += 1
            elif nxt_load == 56 and ct == 0 and len(wl) > cfg.w_tail:
                w_dma(*wl.pop(0))
        if n == cfg.fpos: s_issue(rL, sXB, 4)
        if n in (0, 19, nA - 1): fstamp(f"f2_n{n}")
        for th in ex2[n]: th()
    assert nxt_load == 56
    stamp("ffn2_mm")
    red_last()
    A(f"s_cmp_eq_u32 s{sLAYER}, 0")
    A("s_cbranch_scc0 L_FINISH")
    while wl: w_dma(*wl.pop(0))
    A(f"s_mov_b32 s{rXIN}, s{rOUT}")
    A(f"s_mov_b32 s{rXIN+1}, s{rOUT+1}")
    A(f"s_mov_b32 s{sXST}, 2048")
    A(f"s_lshl_b32 s{sT0}, s{sTB}, 16")
    A(f"s_lshr_b32 s{sT1}, s{sW}, 1")
    A(f"s_lshl_b32 s{sT1}, s{sT1}, 15")
    A(f"s_add_u32 s{sT0}, s{sT0}, s{sT1}")
    A(f"s_and_b32 s{sT1}, s{sW}, 1")
    A(f"s_lshl_b32 s{sT1}, s{sT1}, 10")
    A(f"s_add_u32 s{sT0}, s{sT0}, s{sT1}")
    A(f"v_add_u32 v{vXS}, s{sT0}, v{vL16}")
    qkv_addrs(False)
    def tr_block(c):
        t = tr_reads(c)
        for th in guarded(t[:16]): th()
        sk = A.newlabel("trkv")
        A(f"s_cmp_ge_u32 s{sCB}, 2")
        A(f"s_cbranch_scc1 {sk}")
        A.wait_lg()
        for th in t[16:]: th()
        A.label(sk)
        A.wait_lg()
    tr_block(0)
    assert A.vm_n("wq1") > A.vm_n("ost")
    publish(PH_FF2, sG, "ost")
    stamp("ffn2_pub")
    tr_block(1)
    A.wait_vm()
    A("s_barrier")
    tr_block(2)
    A(f"s_lshl_b32 s{sHO}, s{sTB}, 10")
    A(f"s_add_u32 s{sHO}, s{sHO}, {hex(WS_L0 + flagbase(PH_FF2))}")
    A(f"s_mov_b32 s{rWS+2}, {hex(WS_L0 + 2 * LSTRIDE)}")
    tr_block(3)
    A(f"s_mov_b32 s{sLAYER}, 1")
    A(f"s_add_u32 s{rL}, s{rL}, {hex(LSTRIDE)}")
    A(f"s_addc_u32 s{rL+1}, s{rL+1}, 0")
    A(f"s_mov_b32 s{rOUT}, s{P_OUT}")
    A(f"s_mov_b32 s{rOUT+1}, s{P_OUT+1}")
    A("s_branch L_LAYER1")

    A.label("L_FINISH")
    stamp("finish")
    if cfg.prof:
        A(f"s_lshl_b32 s{sT0}, s{sGW}, 8")
        A(f"s_add_u32 s{sT0}, s{sT0}, {hex(WS_PROF)}")
        A(f"v_lshrrev_b32 v4, 2, v{vL16}")
        A(f"buffer_store_dword v{vPROF}, v4, {srd(rWS)}, s{sT0} offen")
    A(f"s_cmp_lg_u32 s{sGW}, 0")
    A("s_cbranch_scc1 L_END")
    if cfg.dbg:
        A(f"v_readlane_b32 s{sT1}, v{vPROF}, 0")
        A("v_mov_b32 v5, 0")
        for n, j in enumerate(cfg.dbg):
            A(f"v_readlane_b32 s{sT0}, v{vPROF}, {j}")
            A("s_nop 3")
            A(f"s_sub_u32 s{sT0}, s{sT0}, s{sT1}")
            A(f"v_writelane_b32 v5, s{sT0}, {n}")
        mk_srd(rR0, P_DBG, 256)
        A(f"v_lshrrev_b32 v4, 2, v{vL16}")
        A(f"buffer_store_dword v5, v4, {srd(rR0)}, 0 offen")
    A("v_mov_b32 v4, 0")
    A("s_mov_b64 exec, 1")
    A(f"buffer_store_dword v{vTAG}, v4, {srd(rWS)}, 0 offen")
    A.label("L_END")
    A("s_endpgm")
    A.label("L_TIMEOUT")
    A("s_endpgm")

    for p in range(2):
        o = O[p]; q = Q[p]
        fS, fN, fK, fV0, fV1, fM, fA = 208, 224, 240, 244, 248, 252, 253
        A.label(f"L_FB{p}")
        A(f"v_mov_b32 v{fM}, 0xff800000")
        A(f"s_mov_b32 s{sT0}, {hex(L_KV)}")
        A.label(f"L_FB{p}_a")
        A(f"buffer_load_dwordx4 {vr(fK)}, v{vL16}, {srd(rL)}, s{sT0} offen sc1")
        A(f"s_add_u32 s{sT0}, s{sT0}, 1024")
        A("s_waitcnt vmcnt(0)")
        A(f"v_mfma_f32_32x32x16_bf16 {vr(fS,16)}, {vr(fK)}, {vr(q)}, 0")
        A("s_nop 7"); A("s_nop 7")
        for r in range(8): A(f"v_max3_f32 v{fM}, v{fS+2*r}, v{fS+2*r+1}, v{fM}")
        A(f"s_cmp_lg_u32 s{sT0}, {hex(L_KV + 0x10000)}")
        A(f"s_cbranch_scc1 L_FB{p}_a")
        A(f"v_mov_b32 v{fA}, v{fM}")
        A("s_nop 1")
        A(f"v_permlane32_swap_b32 v{fM}, v{fA}")
        A(f"v_max_f32 v{fM}, v{fM}, v{fA}")
        for r in range(16):
            A(f"v_sub_f32 v{fN+r}, 0, v{fM}")
            A(f"v_mov_b32 v{o+r}, 0")
        A("v_and_b32 v4, 63, v0")
        A("v_and_b32 v5, 27, v4")
        A("v_cmp_eq_u32 vcc, 16, v5")
        A("v_mov_b32 v6, 0x3f803f80")
        for r in range(8): A(f"v_cndmask_b32 v{fV0+r}, 0, v6, vcc")
        A("v_and_b32 v5, 15, v4")
        A("v_lshrrev_b32 v6, 5, v4")
        A("v_lshlrev_b32 v5, 4, v5")
        A("v_lshl_add_u32 v5, v6, 8, v5")
        A(f"v_add_u32 v5, 0x10000, v5")
        A(f"s_mov_b32 s{sT0}, {hex(L_KV)}")
        A(f"s_mov_b32 s{sM1}, 0x0000ffff")
        A(f"s_mov_b32 s{sM1+1}, 0x0000ffff")
        A.label(f"L_FB{p}_b")
        A(f"buffer_load_dwordx4 {vr(fK)}, v{vL16}, {srd(rL)}, s{sT0} offen sc1")
        A(f"s_mov_b64 exec, s[{sM1}:{sM1+1}]")
        A(f"buffer_load_dwordx4 {vr(fV0)}, v5, {srd(rL)}, s{sT0} offen sc1")
        A(f"buffer_load_dwordx4 {vr(fV1)}, v5, {srd(rL)}, s{sT0} offen offset:512 sc1")
        A("s_mov_b64 exec, -1")
        A(f"s_add_u32 s{sT0}, s{sT0}, 1024")
        A("s_waitcnt vmcnt(0)")
        A(f"v_mfma_f32_32x32x16_bf16 {vr(fS,16)}, {vr(fK)}, {vr(q)}, {vr(fN,16)}")
        A("s_nop 7"); A("s_nop 7")
        for r in range(16): A(f"v_exp_f32 v{fS+r}, v{fS+r}")
        A("s_nop 1")
        A(f"v_smfmac_f32_32x32x32_bf16 {vr(o,16)}, {vr(fV0)}, {vr(fS,8)}, v{vIDX}")
        A(f"v_smfmac_f32_32x32x32_bf16 {vr(o,16)}, {vr(fV1)}, {vr(fS+8,8)}, v{vIDX}")
        A(f"s_cmp_lg_u32 s{sT0}, {hex(L_KV + 0x10000)}")
        A(f"s_cbranch_scc1 L_FB{p}_b")
        A("s_nop 7"); A("s_nop 7")
        A(f"s_branch L_FBR{p}")
    A.label("L_CODE_END")
    lines, nfix, probs = check_hazards(A.L)
    for p_ in probs: print("HAZARD:", p_, file=sys.stderr)
    print(f"auto nops: {nfix}", file=sys.stderr)
    body = "\n".join(l if l.endswith(":") else "    " + l for l in lines)
    hdr = open("cdna_kernels/" + NAME + ".s.ref").read().split("; Override launch")[0]
    out = hdr + f"""; Persistent kernel: 256 workgroups (one per CU), flag-based hand-offs through d_ws. Generated by gen2.py.
; @launch grid=(256,1,1) block=(256,1,1) lds={LDS_TOTAL}
.amdgcn_target "amdgcn-amd-amdhsa--gfx950"
.text
.globl {NAME}_kernel
.p2align 8
.type {NAME}_kernel,@function
{NAME}_kernel:
L_CODE_START:
{body}
.section .rodata,"a"
.p2align 6
.amdhsa_kernel {NAME}_kernel
  .amdhsa_next_free_vgpr 512
  .amdhsa_next_free_sgpr 102
  .amdhsa_accum_offset 256
  .amdhsa_group_segment_fixed_size 0
  .amdhsa_kernarg_size 96
  .amdhsa_user_sgpr_count 2
  .amdhsa_user_sgpr_kernarg_segment_ptr 1
  .amdhsa_system_sgpr_workgroup_id_x 1
.end_amdhsa_kernel
"""
    return out

DEFAULTS = dict(prof=None, fine=False, dbg=None, t512=True, spin_limit=200000,
                warm_gu=True, warm_wd=True, warm0=22, warm_span=76, gu_att=[(96, 103), (96, 107), (112, 113)],
                op_vm=12, ack_vm=12, wd_s2=14, s4='vec', raw_early=True, flag_touch=True, out_plain=True, g56=2, wo0=18, tk0=10, epub=102, epoll=124, e1=16, h0=12, h_ahead=14, fpos=14, fchk=22, w_tail=8)
if __name__ == "__main__":
    import argparse, json, ast
    ap = argparse.ArgumentParser()
    ap.add_argument("-o", default="cdna_kernels/" + NAME + ".s")
    ap.add_argument("opts", nargs="*")
    a = ap.parse_args()
    cfg = Cfg()
    for k, v in DEFAULTS.items(): setattr(cfg, k, v)
    for o in a.opts:
        k, v = o.split("=", 1)
        assert k in DEFAULTS, k
        try: v = ast.literal_eval(v)
        except Exception: pass
        setattr(cfg, k, v)
    s = gen(cfg)
    open(a.o, "w").write(s)
    json.dump(cfg.stamps, open(a.o + ".stamps.json", "w"))
```

```python
import sys, math, struct
sys.path.insert(0, "gen")
from asmlib import Asm, check_hazards

NAME = "interleave_layers__grouped_kv_mqa__glu_gated_reglu__prompt"

WS_EPOCH = 0
WS_WFLAG = 0x1000
WS_PROF = 0x10000
WS_WOT = 0x100000
WS_WDT = 0x200000
WS_WGUT = 0x400000
WS_X2 = 0x800000
WS_L0 = 0x1000000
LSTRIDE = 0x1000000
L_Q = 0
L_KV = 0x200000
L_FLAG = 0x280000
L_X1 = 0x300000
L_XN1 = 0x500000
L_H = 0x700000
PH_QKV, PH_ATT, PH_FF1, PH_FF2, PH_FF1E = 0, 1, 2, 3, 4
def flagbase(ph): return L_FLAG + ph * 256 * 128

LDS_WQ = 0x10000
LDS_WKV = 0x20000
LDS_ST = 0x24400
LDS_V = 0x10000
LDS_ONES = 0x20000
LDS_OX = 0x22000
LDS_LNX = 0x27f00
LDS_TOTAL = 160 * 1024

sWG = 2; sW = 3; sX = 4; sI = 5; sLAYER = 6; sTAG = 7
P_X, P_WQ, P_WK, P_WV, P_WO, P_BX, P_WG, P_WU, P_WD, P_OUT, P_DBG, P_WS = [8 + 2 * i for i in range(12)]
rXIN = 32; rWQ = 36; rWKV = 40; rL = 44; rWS = 48; rOUT = 52; rR0 = 56; rR1 = 60; rR2 = 64
sTB = 68; sCB = 69; sG = 70; sBLK = 71; sSL = 72; sID1 = 73; sXST = 74; sGW = 75
sT0 = 76; sT1 = 77; sT2 = 78; sT3 = 79; sT4 = 80; sT5 = 81
sCNT = 82; sGUL = 83
sM0 = 84; sM1 = 86; sM2 = 88
sWA = 90; sWB = 91
sTS = 92
sWDO = 94; sXA = 95; sXB = 99; sQO = 100; sKO = 101
sHO = 18; sHS = 19

def srd(n): return f"s[{n}:{n+3}]"
def vr(a, n=4): return f"v[{a}:{a+n-1}]"
def ar(a, n=4): return f"a[{a}:{a+n-1}]"
def f32(x): return struct.unpack("<I", struct.pack("<f", x))[0]

vL16 = 1; vTAG = 2; vPROF = 3; vCS = 100; vCKV = 116

class Cfg: pass

def gen(cfg):
    A = Asm()
    stamp_idx = [0]
    cfg.stamps = []
    clk = "s_memtime" if cfg.prof == "clk" else "s_memrealtime"
    def stamp(name):
        if not cfg.prof: return
        A(f"{clk} s[{sTS}:{sTS+1}]")
        A("s_waitcnt lgkmcnt(0)"); A.lg = []
        k = stamp_idx[0]; stamp_idx[0] += 1
        assert k < 32
        A(f"s_lshl_b32 s{sTS+1}, s{sLAYER}, 5")
        A(f"s_add_u32 s{sTS+1}, s{sTS+1}, {k}")
        A("s_mov_b32 s98, m0")
        A(f"s_mov_b32 m0, s{sTS+1}")
        A("s_nop 1")
        A(f"v_writelane_b32 v{vPROF}, s{sTS}, m0")
        A("s_mov_b32 m0, s98")
        cfg.stamps.append(name)
    def fstamp(name):
        if cfg.fine: stamp(name)

    def spin(vaddr, r, name, tmp=4):
        lp = A.newlabel("poll_" + name); dn = A.newlabel("polld_" + name)
        A(f"s_mov_b32 s{sCNT}, {cfg.spin_limit}")
        A.label(lp)
        A(f"buffer_load_dword v{tmp}, v{vaddr}, {srd(r)}, 0 offen sc1")
        A("s_waitcnt vmcnt(0)")
        A(f"v_cmp_ne_u32 vcc, v{tmp}, v{vTAG}")
        A(f"s_cbranch_vccz {dn}")
        A(f"s_sub_u32 s{sCNT}, s{sCNT}, 1")
        A(f"s_cmp_lg_u32 s{sCNT}, 0")
        A(f"s_cbranch_scc1 {lp}")
        A("s_branch L_TIMEOUT")
        A.label(dn)
    def poll(vaddr, name, tmp=4):
        spin(vaddr, rL, name, tmp); A.vm = []
    sPF = 56
    def s_issue(r, sbase, n):
        for q in range(n): A(f"s_buffer_load_dword s{sPF+q}, {srd(r)}, s{sbase} offset:{q*128} glc")
    def s_test(n):
        A("s_waitcnt lgkmcnt(0)"); A.lg = []
        for q in range(n): A(f"s_xor_b32 s{sPF+q}, s{sPF+q}, s{sTAG}")
        m = n
        while m > 1:
            for q in range(m // 2): A(f"s_or_b32 s{sPF+q}, s{sPF+q}, s{sPF+q+m//2}")
            m //= 2
    def s_spin(r, sbase, n, name, issued=False):
        lp = A.newlabel("sp_" + name); dn = A.newlabel("spd_" + name); ck = A.newlabel("spc_" + name)
        A(f"s_mov_b32 s{sCNT}, {cfg.spin_limit}")
        if issued: A(f"s_branch {ck}")
        A.label(lp)
        s_issue(r, sbase, n)
        A(f"s_sub_u32 s{sCNT}, s{sCNT}, 1")
        A("s_cbranch_scc1 L_TIMEOUT")
        A.label(ck)
        s_test(n)
        A(f"s_cbranch_scc1 {lp}")
    def check_or_spin(vres, vaddr, r, tag, name):
        ok = A.newlabel("ok_" + name)
        A.wait_vm(tag)
        A(f"v_cmp_ne_u32 vcc, v{vres}, v{vTAG}")
        A(f"s_cbranch_vccz {ok}")
        spin(vaddr, r, name, vres)
        A.label(ok)
    def flag_store(phase, sid, tmp=4):
        sk = A.newlabel("pub")
        A(f"s_cmp_lg_u32 s{sW}, 0")
        A(f"s_cbranch_scc1 {sk}")
        A(f"s_lshl_b32 s{sCNT}, s{sid}, 7")
        A(f"s_add_u32 s{sCNT}, s{sCNT}, {hex(flagbase(phase))}")
        A(f"v_mov_b32 v{tmp}, 0")
        A("s_mov_b64 exec, 1")
        A(f"buffer_store_dword v{vTAG}, v{tmp}, {srd(rL)}, s{sCNT} offen sc1")
        A("s_mov_b64 exec, -1")
        A.label(sk)
    def publish(phase, sid, tags, tmp=4):
        A.wait_vm(tags)
        A("s_barrier")
        flag_store(phase, sid, tmp)
    def unpack(dst, src, k):
        if k % 2 == 0: A(f"v_lshlrev_b32 v{dst+k}, 16, v{src+k//2}")
        else: A(f"v_and_b32 v{dst+k}, 0xffff0000, v{src+k//2}")
    def mk_srd(r, p, size, add=0):
        if add:
            A(f"s_add_u32 s{r}, s{p}, {hex(add)}")
            A(f"s_addc_u32 s{r+1}, s{p+1}, 0")
        else:
            A(f"s_mov_b32 s{r}, s{p}")
            A(f"s_mov_b32 s{r+1}, s{p+1}")
        A(f"s_mov_b32 s{r+2}, {hex(size)}")
        A(f"s_mov_b32 s{r+3}, 0x20000")

    vWS_ = 11
    def w_dma_setup():
        A("v_and_b32 v4, 63, v0")
        A("v_lshrrev_b32 v5, 3, v4")
        A("v_bfe_u32 v6, v4, 4, 1")
        A("v_lshlrev_b32 v6, 2, v6")
        A("v_and_b32 v4, 7, v4")
        A("v_xor_b32 v4, v4, v6")
        A("v_lshlrev_b32 v4, 4, v4")
        A(f"v_lshl_add_u32 v{vWS_}, v5, 10, v4")
        A(f"s_lshl_b32 s{sWA}, s{sW}, 15")
        A(f"s_lshl_b32 s{sWB}, s{sCB}, 7")
        A(f"s_add_u32 s{sWA}, s{sWA}, s{sWB}")
        A(f"s_lshl_b32 s{sWB}, s{sW}, 12")
        A(f"s_add_u32 s{sWB}, s{sWB}, {LDS_WQ}")
    def w_dma(c, n):
        if n < 4:
            A(f"s_mov_b32 m0, s{sWB}")
            A(f"s_add_u32 s{sWB}, s{sWB}, {1024 if n < 3 else 16384 - 3072}")
            A.vmem(f"buffer_load_dwordx4 v{vWS_}, {srd(rWQ)}, s{sWA} offen lds", f"wq{c}")
            A(f"s_add_u32 s{sWA}, s{sWA}, {8192 if n < 3 else 131072 - 3 * 8192}")
        else:
            A(f"s_lshl_b32 s{sCNT}, s{sW}, 10")
            A(f"s_add_u32 m0, s{sCNT}, {LDS_WKV + c*4096}")
            A(f"s_add_u32 s{sCNT}, s{sCNT}, {c*4096}")
            A.vmem(f"buffer_load_dwordx4 v{vL16}, {srd(rWKV)}, s{sCNT} offen lds", f"wq{c}")
    vXS, vXE, vXO, vX16 = 12, 13, 14, 15
    def x_dma_setup():
        A(f"s_lshl_b32 s{sXB}, s{sW}, 10")
        A(f"s_mov_b32 s{sXA}, 0")
    def x_dma(j, sc1):
        A(f"s_mov_b32 m0, s{sXB}")
        A(f"s_add_u32 s{sXB}, s{sXB}, 4096")
        A.vmem(f"buffer_load_dwordx4 v{vXS}, {srd(rXIN)}, s{sXA} offen{' sc1' if sc1 else ''} lds", f"x{j//4}")
        A(f"s_add_u32 s{sXA}, s{sXA}, s{sXST}")

    A(f"s_cmp_ge_u32 s{sWG}, 256")
    A("s_cbranch_scc1 L_END")
    if cfg.prof: A(f"{clk} s[96:97]")
    A("s_load_dwordx16 s[8:23], s[0:1], 0")
    A("s_load_dwordx8 s[24:31], s[0:1], 64")
    A(f"s_getpc_b64 s[{sM0}:{sM0+1}]")
    A(f"s_and_b32 s{sM0}, s{sM0}, 0xffffffc0")
    A(f"v_and_b32 v4, 63, v0")
    A(f"v_lshlrev_b32 v{vL16}, 4, v4")
    A(f"v_lshrrev_b32 v5, 6, v0")
    A(f"s_and_b32 s{sX}, s{sWG}, 7")
    A(f"s_lshr_b32 s{sI}, s{sWG}, 3")
    A(f"v_readfirstlane_b32 s{sW}, v5")
    A(f"s_and_b32 s{sT0}, s{sI}, 1")
    A(f"s_lshl_b32 s{sT0}, s{sT0}, 15")
    A(f"v_lshlrev_b32 v6, 7, v0")
    A(f"v_add_u32 v6, s{sT0}, v6")
    A(f"v_min_u32 v6, L_CODE_END-L_CODE_START-64, v6")
    A(f"global_load_dword v248, v6, s[{sM0}:{sM0+1}]")
    A.vm.append("code")
    A(f"s_lshr_b32 s{sT0}, s{sI}, 3")
    A(f"s_lshl_b32 s{sTB}, s{sX}, 2")
    A(f"s_add_u32 s{sTB}, s{sTB}, s{sT0}")
    A(f"s_and_b32 s{sCB}, s{sI}, 7")
    w_dma_setup()
    A("v_and_b32 v4, 63, v0")
    A("v_lshrrev_b32 v5, 2, v4")
    A("v_lshrrev_b32 v6, 4, v4")
    A("v_and_b32 v4, 3, v4")
    A("v_xor_b32 v4, v4, v6")
    A("v_lshlrev_b32 v4, 4, v4")
    A(f"v_lshl_add_u32 v{vXS}, v5, 10, v4")
    A(f"s_lshl_b32 s{sT0}, s{sTB}, 16")
    A(f"s_lshl_b32 s{sT1}, s{sW}, 14")
    A(f"s_add_u32 s{sT0}, s{sT0}, s{sT1}")
    A(f"v_add_u32 v{vXS}, s{sT0}, v{vXS}")
    A(f"s_mov_b32 s{sXST}, 64")
    x_dma_setup()
    A(f"s_mov_b32 s{sLAYER}, 0")
    if cfg.prof: A(f"v_mov_b32 v{vPROF}, 0")
    A("s_waitcnt lgkmcnt(0)")
    if cfg.prof:
        A(f"v_writelane_b32 v{vPROF}, s96, 0")
        stamp_idx[0] = 1; cfg.stamps.append("entry")
    mk_srd(rWQ, P_WQ, 512 * 512 * 2)
    mk_srd(rXIN, P_X, 2048 * 512 * 2)
    A(f"s_cmp_eq_u32 s{sCB}, 0")
    A(f"s_cselect_b32 s{rWKV}, s{P_WK}, s{P_WV}")
    A(f"s_cselect_b32 s{rWKV+1}, s{P_WK+1}, s{P_WV+1}")
    A(f"s_mov_b32 s{rWKV+2}, {512*16*2}")
    A(f"s_mov_b32 s{rWKV+3}, 0x20000")
    for n in range(5): w_dma(0, n)
    for j in range(4): x_dma(j, False)
    A(f"s_load_dword s{sTAG}, s[{P_WS}:{P_WS+1}], {WS_EPOCH}")
    for n in range(5): w_dma(1, n)
    for j in range(4, 8): x_dma(j, False)
    A(f"s_lshl_b32 s{sG}, s{sX}, 5")
    A(f"s_add_u32 s{sG}, s{sG}, s{sI}")
    if cfg.t512:
        A(f"s_lshr_b32 s{sT0}, s{sI}, 3")
        A(f"s_lshr_b32 s{sBLK}, s{sX}, 1")
        A(f"s_lshl_b32 s{sBLK}, s{sBLK}, 2")
        A(f"s_add_u32 s{sBLK}, s{sBLK}, s{sT0}")
        A(f"s_and_b32 s{sSL}, s{sX}, 1")
        A(f"s_lshl_b32 s{sSL}, s{sSL}, 3")
        A(f"s_add_u32 s{sSL}, s{sSL}, s{sCB}")
    else:
        A(f"s_lshr_b32 s{sBLK}, s{sG}, 4")
        A(f"s_and_b32 s{sSL}, s{sG}, 15")
    A(f"s_lshl_b32 s{sID1}, s{sBLK}, 4")
    A(f"s_add_u32 s{sID1}, s{sID1}, s{sSL}")
    A(f"s_lshl_b32 s{sGW}, s{sWG}, 2")
    A(f"s_add_u32 s{sGW}, s{sGW}, s{sW}")
    A(f"s_and_b32 s{sGUL}, s{sW}, 1")
    A(f"s_lshl_b32 s{sGUL}, s{sGUL}, 13")
    A(f"s_lshr_b32 s{sT0}, s{sW}, 1")
    A(f"s_lshl_b32 s{sT0}, s{sT0}, 16")
    A(f"s_add_u32 s{sGUL}, s{sGUL}, s{sT0}")
    mk_srd(rL, P_WS, LSTRIDE, WS_L0)
    mk_srd(rWS, P_WS, WS_L0)
    mk_srd(rOUT, P_WS, 2048 * 512 * 2, WS_X2)
    vRAW = 224; vRA = 250; vRB = 251
    A("v_and_b32 v4, 63, v0")
    A("v_lshrrev_b32 v5, 3, v4")
    A("v_and_b32 v4, 7, v4")
    A("v_lshlrev_b32 v4, 4, v4")
    A(f"v_lshl_add_u32 v{vRB}, v5, 10, v4")
    A("v_mul_u32_u24 v5, 3584, v5")
    A(f"v_add_u32 v{vRA}, v5, v4")
    A(f"s_cmp_ge_u32 s{sWG}, 224")
    A("s_cbranch_scc1 L_RAW_WO")
    mk_srd(rR0, P_WG, 512 * 1792 * 2)
    mk_srd(rR1, P_WU, 512 * 1792 * 2)
    mk_srd(rR2, P_WD, 512 * 1792 * 2)
    A(f"s_and_b32 s{sT2}, s{sGW}, 31")
    A(f"s_mul_i32 s{sT2}, s{sT2}, {16*3584}")
    A(f"s_lshr_b32 s{sT1}, s{sGW}, 5")
    A(f"s_lshl_b32 s{sT1}, s{sT1}, 7")
    A(f"s_add_u32 s{sT2}, s{sT2}, s{sT1}")
    A(f"s_add_u32 s{sT3}, s{sT2}, {8*3584}")
    A(f"s_mov_b32 s{sHO}, s{sT2}")
    A(f"s_mov_b32 s{sHS}, s{sT3}")
    A(f"s_lshr_b32 s{sT4}, s{sGW}, 3")
    A(f"s_lshl_b32 s{sT4}, s{sT4}, 14")
    A(f"s_and_b32 s{sT1}, s{sGW}, 7")
    A(f"s_lshl_b32 s{sT1}, s{sT1}, 7")
    A(f"s_add_u32 s{sT4}, s{sT4}, s{sT1}")
    A(f"s_add_u32 s{sT5}, s{sT4}, 8192")
    A("s_branch L_RAW_DONE")
    A.label("L_RAW_WO")
    mk_srd(rR0, P_WO, 512 * 512 * 2)
    mk_srd(rR1, P_WO, 512 * 512 * 2)
    mk_srd(rR2, P_WO, 512 * 512 * 2)
    A(f"v_mov_b32 v{vRA}, v{vRB}")
    A(f"s_sub_u32 s{sT0}, s{sGW}, 896")
    A(f"s_lshr_b32 s{sT2}, s{sT0}, 3")
    A(f"s_lshl_b32 s{sT2}, s{sT2}, 15")
    A(f"s_and_b32 s{sT1}, s{sT0}, 7")
    A(f"s_lshl_b32 s{sT1}, s{sT1}, 7")
    A(f"s_add_u32 s{sT2}, s{sT2}, s{sT1}")
    A(f"s_add_u32 s{sT3}, s{sT2}, 8192")
    A(f"s_add_u32 s{sHO}, s{sT2}, 16384")
    A(f"s_add_u32 s{sHS}, s{sT2}, 24576")
    A(f"s_mov_b32 s{sT4}, s{sT2}")
    A(f"s_mov_b32 s{sT5}, s{sT2}")
    A.label("L_RAW_DONE")
    def raw_load(n):
        r, so, va = [(rR0, sT2, vRA), (rR0, sT3, vRA), (rR1, sHO, vRA), (rR1, sHS, vRA), (rR2, sT4, vRB), (rR2, sT5, vRB)][n]
        A.vmem(f"buffer_load_dwordx4 {vr(vRAW+4*n)}, v{va}, {srd(r)}, s{so} offen", "raw")

    aWQ, aWKV = 0, 128
    vAQ, vAKV, vG, vU, vONE = 16, 48, 56, 60, 64
    vXF = [128, 160]; vX16F = [192, 208]
    vTQ, vTKV = 8, 9
    vSTW, vSTR, vQST, vKVR, vKVS = 68, 69, 70, 71, 88
    def qkv_addrs(layer0):
        for r in range(4): A(f"v_mov_b32 v{vONE+r}, 0x3f803f80")
        A("v_and_b32 v4, 63, v0")
        A(f"s_lshr_b32 s{sT0}, s{sW}, 1")
        if layer0:
            A("v_and_b32 v5, 15, v4")
            A("v_lshrrev_b32 v6, 2, v5")
            A("v_lshrrev_b32 v7, 5, v4")
            A("v_xor_b32 v7, v7, v6")
            A("v_lshlrev_b32 v7, 4, v7")
            A("v_lshl_add_u32 v7, v5, 6, v7")
            A("v_bfe_u32 v8, v4, 4, 1")
            A("v_lshl_add_u32 v7, v8, 10, v7")
            A(f"s_lshl_b32 s{sT0}, s{sT0}, 11")
            A(f"v_add_u32 v{vXE}, s{sT0}, v7")
            A(f"v_xor_b32 v{vXO}, 32, v{vXE}")
            A("v_lshrrev_b32 v7, 4, v4")
            A("v_xor_b32 v7, v7, v6")
            A("v_lshlrev_b32 v7, 4, v7")
            A("v_lshl_add_u32 v7, v5, 6, v7")
            A(f"s_lshl_b32 s{sT0}, s{sW}, 10")
            A(f"v_add_u32 v{vX16}, s{sT0}, v7")
        else:
            A(f"s_lshl_b32 s{sT0}, s{sT0}, 11")
            A(f"v_add_u32 v{vXE}, s{sT0}, v{vL16}")
            A(f"v_add_u32 v{vXO}, 1024, v{vXE}")
            A("v_and_b32 v5, 15, v4")
            A("v_lshrrev_b32 v6, 5, v4")
            A("v_bfe_u32 v7, v4, 4, 1")
            A("v_lshlrev_b32 v5, 4, v5")
            A("v_lshl_add_u32 v5, v7, 9, v5")
            A("v_lshl_add_u32 v5, v6, 10, v5")
            A(f"s_and_b32 s{sT1}, s{sW}, 1")
            A(f"s_lshl_b32 s{sT1}, s{sT1}, 8")
            A(f"s_add_u32 s{sT0}, s{sT0}, s{sT1}")
            A(f"v_add_u32 v{vX16}, s{sT0}, v5")
        A("v_bfe_u32 v5, v4, 2, 2")
        A("v_lshrrev_b32 v6, 5, v4")
        A("v_lshl_add_u32 v6, v6, 3, v5")
        A("v_lshrrev_b32 v5, 1, v5")
        A(f"s_and_b32 s{sT0}, s{sW}, 1")
        A(f"v_xor_b32 v5, s{sT0}, v5")
        A("v_lshlrev_b32 v5, 6, v5")
        A("v_lshl_add_u32 v5, v6, 7, v5")
        A("v_bfe_u32 v6, v4, 4, 1")
        A("v_lshl_add_u32 v5, v6, 5, v5")
        A("v_and_b32 v6, 1, v4")
        A("v_bfe_u32 v7, v4, 1, 1")
        A("v_lshl_add_u32 v6, v6, 1, v7")
        A(f"v_lshl_add_u32 v{vTQ}, v6, 3, v5")
        A(f"v_add_u32 v{vTQ}, {LDS_WQ}, v{vTQ}")
        A("v_and_b32 v7, 3, v4")
        A(f"s_cmp_eq_u32 s{sCB}, 0")
        A(f"s_cselect_b64 vcc, -1, 0")
        A("v_cndmask_b32 v6, v6, v7, vcc")
        A("v_bfe_u32 v5, v4, 2, 2")
        A("v_lshrrev_b32 v7, 4, v4")
        A("v_lshl_add_u32 v5, v7, 3, v5")
        A("v_lshlrev_b32 v5, 5, v5")
        A(f"v_lshl_add_u32 v{vTKV}, v6, 3, v5")
        A(f"v_add_u32 v{vTKV}, {LDS_WKV}, v{vTKV}")
        A("v_and_b32 v5, 3, v4")
        A(f"v_cmp_eq_u32 s[{sM0}:{sM0+1}], 2, v5")
        A(f"v_cmp_eq_u32 s[{sM1}:{sM1+1}], 3, v5")
        A("v_lshrrev_b32 v6, 4, v4")
        A("v_bfe_u32 v7, v4, 2, 2")
        A(f"v_cmp_eq_u32 s[{sM2}:{sM2+1}], v6, v7")
        A("v_and_b32 v7, 15, v4")
        A(f"s_lshl_b32 s{sT0}, s{sW}, 7")
        A(f"s_add_u32 s{sT0}, s{sT0}, {LDS_ST}")
        A(f"v_lshl_add_u32 v{vSTW}, v7, 3, s{sT0}")
        kk = A.newlabel("kart"); kd_ = A.newlabel("kard")
        A("v_lshrrev_b32 v5, 1, v6")
        A(f"s_cmp_eq_u32 s{sCB}, 0")
        A(f"s_cbranch_scc1 {kk}")
        A(f"v_lshl_add_u32 v{vKVR}, v6, 5, s{sT0}")
        A("v_lshlrev_b32 v5, 8, v5")
        A(f"s_lshl_b32 s{sKO}, s{sTB}, 2")
        A(f"s_add_u32 s{sKO}, s{sKO}, s{sW}")
        A(f"s_lshl_b32 s{sKO}, s{sKO}, 9")
        A(f"s_add_u32 s{sKO}, s{sKO}, {hex(L_KV + 0x10000)}")
        A(f"s_branch {kd_}")
        A.label(kk)
        A(f"v_mov_b32 v{vKVR}, v{vSTW}")
        A("v_lshlrev_b32 v5, 9, v5")
        A(f"s_lshl_b32 s{sKO}, s{sTB}, 11")
        A(f"s_lshr_b32 s{sT0}, s{sW}, 1")
        A(f"s_lshl_b32 s{sT0}, s{sT0}, 10")
        A(f"s_add_u32 s{sKO}, s{sKO}, s{sT0}")
        A(f"s_and_b32 s{sT0}, s{sW}, 1")
        A(f"s_lshl_b32 s{sT0}, s{sT0}, 8")
        A(f"s_add_u32 s{sKO}, s{sKO}, s{sT0}")
        A(f"s_add_u32 s{sKO}, s{sKO}, {hex(L_KV)}")
        A.label(kd_)
        A(f"v_lshl_add_u32 v{vKVS}, v7, 4, v5")
        A("v_and_b32 v5, 31, v4")
        A(f"s_lshr_b32 s{sT0}, s{sW}, 1")
        A(f"s_lshl_b32 s{sT1}, s{sT0}, 8")
        A(f"s_add_u32 s{sT1}, s{sT1}, {LDS_ST}")
        A(f"v_lshl_add_u32 v{vSTR}, v5, 3, s{sT1}")
        A("v_lshrrev_b32 v7, 3, v5")
        A("v_lshlrev_b32 v7, 13, v7")
        A("v_and_b32 v5, 7, v4")
        A("v_lshl_add_u32 v7, v5, 4, v7")
        A("v_lshrrev_b32 v5, 5, v4")
        A(f"v_lshl_add_u32 v{vQST}, v5, 9, v7")
        A(f"s_lshl_b32 s{sQO}, s{sTB}, 16")
        A(f"s_lshl_b32 s{sT0}, s{sT0}, 15")
        A(f"s_add_u32 s{sQO}, s{sQO}, s{sT0}")
        A(f"s_lshl_b32 s{sT0}, s{sCB}, 10")
        A(f"s_add_u32 s{sQO}, s{sQO}, s{sT0}")
        A(f"s_and_b32 s{sT0}, s{sW}, 1")
        A(f"s_lshl_b32 s{sT0}, s{sT0}, 8")
        A(f"s_add_u32 s{sQO}, s{sQO}, s{sT0}")
    def tr_reads(c):
        L = []
        for s in range(8 * c, 8 * c + 8):
            L.append(lambda s=s: A.ds(f"ds_read_b64_tr_b16 {ar(aWQ+4*s, 2)}, v{vTQ} offset:{s*2048}", f"w{s}"))
            L.append(lambda s=s: A.ds(f"ds_read_b64_tr_b16 {ar(aWQ+4*s+2, 2)}, v{vTQ} offset:{s*2048+512}", f"w{s}"))
        for j in range(4 * c, 4 * c + 4):
            L.append(lambda j=j: A.ds(f"ds_read_b64_tr_b16 {ar(aWKV+4*j, 2)}, v{vTKV} offset:{j*1024}", f"u{j}"))
            L.append(lambda j=j: A.ds(f"ds_read_b64_tr_b16 {ar(aWKV+4*j+2, 2)}, v{vTKV} offset:{j*1024+128}", f"u{j}"))
        return L
    def x_reads(c):
        b = c % 2; L = []
        for s in range(8):
            L.append(lambda s=s: A.ds(f"ds_read_b128 {vr(vXF[b]+4*s)}, v{vXE if s % 2 == 0 else vXO} offset:{(4*c + s//2)*4096}", f"xf{c}_{s}"))
        for j in range(4):
            L.append(lambda j=j: A.ds(f"ds_read_b128 {vr(vX16F[b]+4*j)}, v{vX16} offset:{(4*c+j)*4096}", f"xg{c}_{j}"))
        return L
    def lds_guard():
        if len(A.lg) >= 14: A.wait_lg(A.lg[len(A.lg) - 13])
    def guarded(L): return [(lambda th=th: (lds_guard(), th())) for th in L]
    def mfmas(c, layer0):
        b = c % 2; L = []
        for s in range(8):
            k = 8 * c + s
            def q(s=s, k=k):
                A.wait_lg([f"xf{c}_{s}", f"w{k}"])
                A(f"v_mfma_f32_32x32x16_bf16 {vr(vAQ,16)}, {ar(aWQ+4*k)}, {vr(vXF[b]+4*s)}, {vr(vAQ,16) if k else 0}")
            L.append(q)
            if layer0:
                L.append(lambda k=k: A(f"v_mfma_f32_32x32x16_bf16 {vr(vCS,16)}, {ar(aWQ+4*k)}, {vr(vONE)}, {vr(vCS,16) if k else 0}"))
        for j in range(4):
            k = 4 * c + j
            def g(j=j, k=k):
                A.wait_lg([f"xg{c}_{j}", f"u{k}"])
                A(f"v_mfma_f32_16x16x32_bf16 {vr(vG)}, {vr(vX16F[b]+4*j)}, {vr(vX16F[b]+4*j)}, {vr(vG) if k else 0}")
            L.append(g)
            L.append(lambda j=j, k=k: A(f"v_mfma_f32_16x16x32_bf16 {vr(vU)}, {vr(vONE)}, {vr(vX16F[b]+4*j)}, {vr(vU) if k else 0}"))
        return L
    def kv_mfmas(c, layer0):
        b = c % 2
        sk = A.newlabel("nokv"); vt = A.newlabel("kvV")
        A(f"s_cmp_ge_u32 s{sCB}, 2")
        A(f"s_cbranch_scc1 {sk}")
        A(f"s_cmp_eq_u32 s{sCB}, 0")
        A(f"s_cbranch_scc0 {vt}")
        for j in range(4):
            k = 4 * c + j
            A(f"v_mfma_f32_16x16x32_bf16 {vr(vAKV)}, {ar(aWKV+4*k)}, {vr(vX16F[b]+4*j)}, {vr(vAKV) if k else 0}")
            if layer0: A(f"v_mfma_f32_16x16x32_bf16 {vr(vCKV)}, {ar(aWKV+4*k)}, {vr(vONE)}, {vr(vCKV) if k else 0}")
        A(f"s_branch {sk}")
        A.label(vt)
        for j in range(4):
            k = 4 * c + j
            A(f"v_mfma_f32_16x16x32_bf16 {vr(vAKV)}, {vr(vX16F[b]+4*j)}, {ar(aWKV+4*k)}, {vr(vAKV) if k else 0}")
            if layer0: A(f"v_mfma_f32_16x16x32_bf16 {vr(vCKV)}, {vr(vONE)}, {ar(aWKV+4*k)}, {vr(vCKV) if k else 0}")
        A.label(sk)
    def qkv_main(layer0, vq):
        def arrive(c):
            A.wait_vm([f"x{c}", f"wq{c}"]); A("s_barrier")
        def reads(c):
            if not layer0: return guarded(x_reads(c))
            t, x = tr_reads(c), x_reads(c)
            out = []
            for s in range(8): out += [t[2 * s], t[2 * s + 1], x[s]]
            for j in range(4): out += [t[16 + 2 * j], t[17 + 2 * j], x[8 + j]]
            return guarded(out)
        arrive(0)
        if layer0: A("s_waitcnt lgkmcnt(0)")
        for th in reads(0): th()
        for c in range(4):
            M = mfmas(c, layer0)
            V = list(vq[c])
            R = []
            half = (len(M) * 3) // 8
            for i_, th in enumerate(M):
                if i_ == half and c < 3:
                    while V: V.pop(0)()
                    arrive(c + 1); R = reads(c + 1)
                th()
                if V and i_ % 1 == 0: V.pop(0)()
                left = len(M) - i_
                for _ in range(-(-len(R) // left) if R else 0):
                    if R: R.pop(0)()
            while V: V.pop(0)()
            kv_mfmas(c, layer0)

    if cfg.raw == "early":
        for n in range(6): raw_load(n)
    if cfg.flag_touch:
        A("v_and_b32 v4, 7, v0")
        A("v_min_u32 v4, 4, v4")
        A("v_bfe_u32 v5, v0, 3, 1")
        A("v_and_b32 v6, 1, v4")
        A("v_cmp_eq_u32 vcc, 0, v4")
        A(f"v_mov_b32 v7, s{sG}")
        A(f"v_mov_b32 v8, s{sID1}")
        A("v_cndmask_b32 v6, v6, 1, vcc")
        A("v_cmp_eq_u32 vcc, 1, v6")
        A("v_lshlrev_b32 v4, 15, v4")
        A("v_lshl_add_u32 v4, v5, 24, v4")
        A("v_cndmask_b32 v7, v8, v7, vcc")
        A("v_lshl_add_u32 v4, v7, 7, v4")
        A(f"s_mov_b32 s{sT0}, {hex(WS_L0 + L_FLAG)}")
        A(f"s_mov_b32 s{rWS+2}, {hex(WS_L0 + 2 * LSTRIDE)}")
        A.vmem(f"buffer_load_dword v249, v4, {srd(rWS)}, s{sT0} offen", "ft")
        A(f"s_lshl_b32 s{sT0}, s{sWG}, 4")
        A(f"s_add_u32 s{sT0}, s{sT0}, {WS_WFLAG}")
        A("v_mov_b32 v4, 0")
        A.vmem(f"buffer_load_dword v249, v4, {srd(rWS)}, s{sT0} offen", "ft")
    qkv_addrs(True)
    stamp("start")
    vq = [[(lambda n=n: w_dma(2, n)) for n in range(5)] + [(lambda j=j: x_dma(j, False)) for j in range(8, 12)],
          [(lambda n=n: w_dma(3, n)) for n in range(5)] + [(lambda j=j: x_dma(j, False)) for j in range(12, 16)],
          [], []]
    rawl = [(lambda n=n: raw_load(n)) for n in range(6)]
    if cfg.raw == "c1": vq[1] += rawl
    if cfg.raw == "c2": vq[2] += rawl
    if cfg.raw == "c23": vq[2] += rawl[:3]; vq[3] += rawl[3:]
    qkv_main(True, vq)
    A(f"s_mul_i32 s{sTAG}, s{sTAG}, 1664525")
    A(f"s_add_u32 s{sTAG}, s{sTAG}, 1013904223")
    A(f"v_mov_b32 v{vTAG}, s{sTAG}")
    A("s_branch L_QKV_EPI")

    A.label("L_LAYER1")
    A.lg = []; A.vm = []
    stamp("qkv_w")
    x_dma_setup()
    sk = A.newlabel("s4")
    A(f"s_cmp_lg_u32 s{sW}, 0")
    A(f"s_cbranch_scc1 {sk}")
    if cfg.s4 == "smem": s_spin(rWS, sHO, 8, "s4")
    else:
        A("v_and_b32 v5, 7, v0")
        A("v_lshlrev_b32 v5, 7, v5")
        A(f"v_add_u32 v5, s{sHO}, v5")
        spin(5, rWS, "s4")
    A.label(sk)
    A("s_barrier")
    stamp("s4")
    for j in range(8): x_dma(j, True)
    qkv_main(False, [[(lambda j=j: x_dma(j, True)) for j in range(8, 12)], [(lambda j=j: x_dma(j, True)) for j in range(12, 16)], [], []])

    A.label("L_QKV_EPI")
    A.lg = []; A.vm = []
    stamp("qkv_mm")
    A("v_and_b32 v5, 3, v0")
    A("v_cmp_eq_u32 vcc, 1, v5")
    A(f"s_mov_b32 s{sT1}, {hex(f32(1.0/512))}")
    A("s_nop 4")
    A(f"v_cndmask_b32 v5, v{vG}, v{vG+1}, vcc")
    A(f"v_cndmask_b32 v5, v5, v{vG+2}, s[{sM0}:{sM0+1}]")
    A(f"v_cndmask_b32 v5, v5, v{vG+3}, s[{sM1}:{sM1+1}]")
    A(f"v_mul_f32 v10, s{sT1}, v{vU}")
    A(f"v_mul_f32 v5, s{sT1}, v5")
    A("v_fma_f32 v5, -v10, v10, v5")
    A("v_max_f32 v5, 0, v5")
    A(f"v_add_f32 v5, {hex(f32(1e-5))}, v5")
    A("v_rsq_f32 v11, v5")
    A(f"s_mov_b64 exec, s[{sM2}:{sM2+1}]")
    A.ds(f"ds_write_b64 v{vSTW}, v[10:11]")
    A("s_mov_b64 exec, -1")
    A.wait_lg()
    A("s_barrier")
    A.ds(f"ds_read_b64 v[10:11], v{vSTR}")
    sk = A.newlabel("nokvep"); vt = A.newlabel("kvepV"); st = A.newlabel("kvst")
    A(f"s_cmp_ge_u32 s{sCB}, 2")
    A(f"s_cbranch_scc1 {sk}")
    A(f"s_cmp_eq_u32 s{sCB}, 0")
    A(f"s_cbranch_scc0 {vt}")
    A(f"ds_read_b64 v[72:73], v{vKVR}")
    A("s_waitcnt lgkmcnt(0)")
    for r in range(4): A(f"v_fma_f32 v{vAKV+r}, -v72, v{vCKV+r}, v{vAKV+r}")
    for r in range(4): A(f"v_mul_f32 v{vAKV+r}, v73, v{vAKV+r}")
    A(f"s_branch {st}")
    A.label(vt)
    A(f"ds_read_b128 v[72:75], v{vKVR}")
    A(f"ds_read_b128 v[76:79], v{vKVR} offset:16")
    A("s_waitcnt lgkmcnt(0)")
    for r in range(4): A(f"v_fma_f32 v{vAKV+r}, -v{72+2*r}, v{vCKV+r}, v{vAKV+r}")
    for r in range(4): A(f"v_mul_f32 v{vAKV+r}, v{73+2*r}, v{vAKV+r}")
    A.label(st)
    A(f"v_cvt_pk_bf16_f32 v72, v{vAKV}, v{vAKV+1}")
    A(f"v_cvt_pk_bf16_f32 v73, v{vAKV+2}, v{vAKV+3}")
    A("v_mov_b32 v74, v72")
    A("v_mov_b32 v75, v73")
    A(f"s_mov_b32 s{sM0}, 0x0000ffff")
    A(f"s_mov_b32 s{sM0+1}, 0x0000ffff")
    A("v_permlane16_swap_b32 v72, v74")
    A("v_permlane16_swap_b32 v73, v75")
    A(f"s_mov_b64 exec, s[{sM0}:{sM0+1}]")
    A(f"buffer_store_dwordx4 v[72:75], v{vKVS}, {srd(rL)}, s{sKO} offen sc1")
    A("s_mov_b64 exec, -1")
    A.label(sk)
    A.wait_lg()
    QS = 0.25 * math.log2(math.e)
    A(f"v_mul_f32 v11, {hex(f32(QS))}, v11")
    for h in range(2):
        for r in range(8 * h, 8 * h + 8):
            A(f"v_fma_f32 v{vAQ+r}, -v10, v{vCS+r}, v{vAQ+r}")
        for r in range(8 * h, 8 * h + 8):
            A(f"v_mul_f32 v{vAQ+r}, v11, v{vAQ+r}")
            if r % 2 == 1: A(f"v_cvt_pk_bf16_f32 v{80+r//2}, v{vAQ+r-1}, v{vAQ+r}")
        A.vmem(f"buffer_store_dwordx4 {vr(80+4*h)}, v{vQST}, {srd(rL)}, s{sQO} offen offset:{128*h} sc1", "st")
    if cfg.raw == "post":
        sk = A.newlabel("norw")
        A(f"s_cmp_eq_u32 s{sLAYER}, 0")
        A(f"s_cbranch_scc0 {sk}")
        sv = list(A.vm)
        for n in range(6): raw_load(n)
        A.vm = sv
        A.label(sk)
    A("v_and_b32 v5, 11, v0")
    A("v_cmp_eq_u32 vcc, 0, v5")
    A("v_lshlrev_b32 v4, 4, v0")
    A(f"v_add_u32 v4, {LDS_ONES}, v4")
    for r in range(4): A(f"v_cndmask_b32 v{vONE+r}, 0, v{vONE+r}, vcc")
    A.ds(f"ds_write_b128 v4, {vr(vONE)}")
    A.ds(f"ds_write_b128 v4, {vr(vONE)} offset:4096")
    S = [16, 32]; O = [48, 160]; Q = [64, 68]; KB = [72, 76]; V0 = [80, 84]; V1 = [88, 92]
    vIDX = 96; vVA = 97; vVINC = 98; vOXR = 99
    vOXW = 120; vWFL = 121; vRES = 122; vTCH = 123; vJUNK = 124; vRROW = 125; vWFA = 126
    vOF = [128, 132]; vZ = 136; vZR = 152; vPA = 176
    A("v_and_b32 v4, 63, v0")
    A("v_and_b32 v5, 7, v4")
    A("v_bfe_u32 v6, v4, 3, 1")
    A("v_lshrrev_b32 v7, 4, v4")
    A("v_lshlrev_b32 v8, 12, v6")
    A("v_lshrrev_b32 v9, 1, v7")
    A("v_lshl_add_u32 v8, v9, 10, v8")
    A("v_and_b32 v9, 1, v7")
    A("v_lshl_add_u32 v8, v9, 9, v8")
    A("v_lshl_add_u32 v8, v5, 4, v8")
    A(f"s_lshr_b32 s{sT0}, s{sG}, 2")
    A(f"s_lshl_b32 s{sT0}, s{sT0}, 15")
    A(f"s_lshl_b32 s{sT1}, s{sW}, 13")
    A(f"s_add_u32 s{sT0}, s{sT0}, s{sT1}")
    A(f"s_and_b32 s{sT1}, s{sG}, 3")
    A(f"s_lshl_b32 s{sT1}, s{sT1}, 7")
    A(f"s_add_u32 s{sT0}, s{sT0}, s{sT1}")
    A(f"v_add_u32 v{vRES}, s{sT0}, v8")
    A("v_lshlrev_b32 v8, 10, v5")
    A("v_lshl_add_u32 v8, v6, 7, v8")
    A("v_lshl_add_u32 v8, v7, 4, v8")
    A(f"s_lshl_b32 s{sT0}, s{sG}, 13")
    A(f"s_lshl_b32 s{sT1}, s{sW}, 8")
    A(f"s_add_u32 s{sT0}, s{sT0}, s{sT1}")
    A(f"v_add_u32 v8, s{sT0}, v8")
    A(f"s_cmp_eq_u32 s{sLAYER}, 0")
    A("s_cselect_b64 vcc, -1, 0")
    A(f"s_cselect_b32 s{sXA}, 64, 2048")
    A(f"v_cndmask_b32 v{vRROW}, v{vRES}, v8, vcc")
    A("v_and_b32 v5, 15, v4")
    A("v_lshrrev_b32 v6, 5, v4")
    A("v_lshlrev_b32 v5, 4, v5")
    A("v_lshl_add_u32 v5, v6, 8, v5")
    A("v_bfe_u32 v6, v4, 4, 1")
    A("v_cmp_eq_u32 vcc, 0, v6")
    A(f"v_mov_b32 v7, {LDS_ONES}")
    A(f"v_mov_b32 v8, {LDS_V}")
    A("v_cndmask_b32 v7, v7, v8, vcc")
    A(f"v_add_u32 v{vVA}, v5, v7")
    A("v_mov_b32 v7, 0")
    A("v_mov_b32 v8, 0x2000")
    A(f"v_cndmask_b32 v{vVINC}, v7, v8, vcc")
    A(f"v_mov_b32 v{vIDX}, 0xdddd")
    A("v_bfe_u32 v5, v4, 4, 1")
    A("v_lshlrev_b32 v5, 9, v5")
    A("v_bfe_u32 v6, v4, 3, 1")
    A("v_lshl_add_u32 v5, v6, 8, v5")
    A("v_lshrrev_b32 v6, 5, v4")
    A("v_lshl_add_u32 v5, v6, 7, v5")
    A("v_and_b32 v6, 7, v4")
    A("v_lshl_add_u32 v5, v6, 4, v5")
    A(f"s_lshl_b32 s{sT0}, s{sW}, 10")
    A(f"s_add_u32 s{sT0}, s{sT0}, {LDS_OX}")
    A(f"v_add_u32 v{vOXW}, s{sT0}, v5")
    A("v_lshrrev_b32 v5, 4, v4")
    A("v_lshlrev_b32 v5, 7, v5")
    A("v_lshl_add_u32 v5, v6, 4, v5")
    A(f"v_add_u32 v{vOXR}, {LDS_OX}, v5")
    A("v_lshrrev_b32 v5, 2, v4")
    A("v_and_b32 v6, 3, v4")
    A("v_lshlrev_b32 v6, 2, v6")
    A(f"v_lshl_add_u32 v{vTCH}, v5, 7, v6")
    A(f"v_lshlrev_b32 v{vWFA}, 4, v0")
    A(f"v_add_u32 v{vWFA}, {WS_WFLAG}, v{vWFA}")
    if cfg.raw == "post":
        sk = A.newlabel("nodr")
        A("s_waitcnt vmcnt(6)")
        A(f"s_cmp_eq_u32 s{sLAYER}, 0")
        A(f"s_cbranch_scc1 {sk}")
        A("s_waitcnt vmcnt(0)")
        A.label(sk)
        A.vm = []
    else:
        A.wait_vm()
    publish(PH_QKV, sG, "st")
    stamp("qkv_pub")
    A(f"s_cmp_eq_u32 s{sLAYER}, 0")
    A("s_cbranch_scc0 L_NORELAY")
    A(f"s_lshl_b32 s{sT0}, s{sW}, 13")
    A(f"v_add_u32 v4, s{sT0}, v{vL16}")
    if cfg.raw == "post": A("s_waitcnt vmcnt(0)")
    for n in range(6):
        A(f"ds_write_b128 v4, {vr(vRAW+4*n)} offset:{n*1024}")
    A("v_and_b32 v5, 63, v0")
    A("v_bfe_u32 v6, v5, 2, 2")
    A("v_and_b32 v8, 1, v5")
    A("v_bfe_u32 v7, v5, 1, 1")
    A("v_lshl_add_u32 v8, v8, 1, v7")
    A(f"s_cmp_ge_u32 s{sWG}, 224")
    A("s_cbranch_scc1 L_RELAY_WO")
    A("v_lshrrev_b32 v7, 5, v5")
    A("v_lshl_add_u32 v6, v7, 3, v6")
    A("v_lshlrev_b32 v6, 7, v6")
    A("v_lshl_add_u32 v6, v8, 3, v6")
    A(f"v_add_u32 v6, s{sT0}, v6")
    A("v_bfe_u32 v7, v5, 4, 1")
    A("v_lshl_add_u32 v8, v7, 11, v6")
    A("v_lshl_add_u32 v9, v7, 5, v6")
    A("s_waitcnt lgkmcnt(0)")
    R0 = 192
    for q in range(4):
        A(f"ds_read_b64_tr_b16 {vr(R0+4*q,2)}, v8 offset:{q*32}")
        A(f"ds_read_b64_tr_b16 {vr(R0+2+4*q,2)}, v8 offset:{q*32+512}")
    for ct in range(2):
        A(f"ds_read_b64_tr_b16 {vr(R0+16+4*ct,2)}, v9 offset:{4096+ct*64}")
        A(f"ds_read_b64_tr_b16 {vr(R0+18+4*ct,2)}, v9 offset:{4096+ct*64+512}")
    A(f"s_lshr_b32 s{sT0}, s{sGW}, 5")
    A(f"s_lshl_b32 s{sT0}, s{sT0}, 17")
    A(f"s_and_b32 s{sT1}, s{sGW}, 31")
    A(f"s_lshl_b32 s{sT1}, s{sT1}, 10")
    A(f"s_add_u32 s{sT0}, s{sT0}, s{sT1}")
    A(f"s_add_u32 s{sT0}, s{sT0}, {hex(WS_WGUT)}")
    A(f"s_and_b32 s{sT1}, s{sGW}, 7")
    A(f"s_mul_i32 s{sT1}, s{sT1}, 112")
    A(f"s_lshr_b32 s{sT2}, s{sGW}, 3")
    A(f"s_add_u32 s{sT1}, s{sT1}, s{sT2}")
    A(f"s_lshl_b32 s{sT1}, s{sT1}, 11")
    A(f"s_add_u32 s{sT1}, s{sT1}, {hex(WS_WDT)}")
    A("s_waitcnt lgkmcnt(0)")
    for q in range(4):
        A(f"buffer_store_dwordx4 {vr(R0+4*q)}, v{vL16}, {srd(rWS)}, s{sT0} offen sc1")
        A(f"s_add_u32 s{sT0}, s{sT0}, 32768")
    for ct in range(2):
        A(f"buffer_store_dwordx4 {vr(R0+16+4*ct)}, v{vL16}, {srd(rWS)}, s{sT1} offen offset:{ct*1024} sc1")
    A("s_branch L_RELAY_PUB")
    A.label("L_RELAY_WO")
    A("v_lshrrev_b32 v7, 4, v5")
    A("v_lshl_add_u32 v6, v7, 3, v6")
    A("v_lshlrev_b32 v6, 7, v6")
    A("v_and_b32 v8, 3, v5")
    A("v_lshl_add_u32 v6, v8, 4, v6")
    A(f"v_add_u32 v6, s{sT0}, v6")
    A("s_waitcnt lgkmcnt(0)")
    for P in range(2):
        for b in range(2):
            q = 2 * P + b
            A(f"ds_read_b64_tr_b16 {vr(R0+4*q,2)}, v6 offset:{P*64+b*8}")
            A(f"ds_read_b64_tr_b16 {vr(R0+2+4*q,2)}, v6 offset:{P*64+b*8+512}")
    A(f"s_sub_u32 s{sT2}, s{sGW}, 896")
    A(f"s_lshr_b32 s{sT0}, s{sT2}, 3")
    A(f"s_lshl_b32 s{sT0}, s{sT0}, 13")
    A(f"s_bfe_u32 s{sT1}, s{sT2}, 0x20001")
    A(f"s_lshl_b32 s{sT1}, s{sT1}, 17")
    A(f"s_add_u32 s{sT0}, s{sT0}, s{sT1}")
    A(f"s_and_b32 s{sT1}, s{sT2}, 1")
    A(f"s_lshl_b32 s{sT1}, s{sT1}, 12")
    A(f"s_add_u32 s{sT0}, s{sT0}, s{sT1}")
    A(f"s_add_u32 s{sT0}, s{sT0}, {hex(WS_WOT)}")
    A("s_waitcnt lgkmcnt(0)")
    for q in range(4):
        A(f"buffer_store_dwordx4 {vr(R0+4*q)}, v{vL16}, {srd(rWS)}, s{sT0} offen offset:{q*1024} sc1")
    A.label("L_RELAY_PUB")
    shareGU = 4 if cfg.t512 else 2
    sTOUCH = 8
    for d, kind in ((8, "gu"), (9, "wd")):
        share = shareGU if kind == "gu" else 4
        A(f"s_lshr_b32 s{d}, s{sI}, {3 if share == 4 else 4}")
        A(f"s_lshl_b32 s{d}, s{d}, 2")
        A(f"s_add_u32 s{d}, s{d}, s{sW}")
        A(f"s_mul_i32 s{d}, s{d}, {7 * 32768 // (4 * share)}")
        A(f"s_mul_i32 s{sT1}, s{sSL if kind == 'gu' else sCB}, {7*32768}")
        A(f"s_add_u32 s{d}, s{d}, s{sT1}")
        A(f"s_add_u32 s{d}, s{d}, {hex(WS_WGUT if kind == 'gu' else WS_WDT)}")
    sGUB = 16; sWOB = 17; sWDB = 20
    A(f"s_mul_i32 s{sGUB}, s{sSL}, {7*32768}")
    A(f"s_lshl_b32 s{sT1}, s{sW}, 13")
    A(f"s_add_u32 s{sGUB}, s{sGUB}, s{sT1}")
    A(f"s_add_u32 s{sGUB}, s{sGUB}, {hex(WS_WGUT)}")
    A(f"s_lshl_b32 s{sWOB}, s{sW}, 17")
    A(f"s_add_u32 s{sWOB}, s{sWOB}, {hex(WS_WOT)}")
    A(f"s_lshl_b32 s{sWDB}, s{sCB}, 2")
    A(f"s_add_u32 s{sWDB}, s{sWDB}, s{sW}")
    A(f"s_mul_i32 s{sWDB}, s{sWDB}, {56*1024}")
    A(f"s_add_u32 s{sWDB}, s{sWDB}, {hex(WS_WDT)}")
    A.label("L_NORELAY")
    for r in range(16):
        A(f"v_mov_b32 v{O[0]+r}, 0")
        A(f"v_mov_b32 v{O[1]+r}, 0")
    stamp("relay")

    sk = A.newlabel("s1"); w1 = A.newlabel("s1q"); go = A.newlabel("s1go")
    A(f"s_lshl_b32 s{sT2}, s{sG}, 13")
    A(f"s_lshl_b32 s{sT1}, s{sW}, 10")
    A(f"s_add_u32 s{sT2}, s{sT2}, s{sT1}")
    A(f"s_cmp_ge_u32 s{sW}, 2")
    A(f"s_cbranch_scc1 {sk}")
    A("v_and_b32 v4, 63, v0")
    A(f"s_cmp_eq_u32 s{sW}, 1")
    A(f"s_cbranch_scc1 {w1}")
    A("v_lshrrev_b32 v5, 1, v4")
    A("v_lshlrev_b32 v5, 3, v5")
    A("v_and_b32 v4, 1, v4")
    A("v_add_u32 v5, v5, v4")
    A(f"s_branch {go}")
    A.label(w1)
    A("v_and_b32 v5, 7, v4")
    A(f"s_lshl_b32 s{sT0}, s{sTB}, 3")
    A(f"v_add_u32 v5, s{sT0}, v5")
    A.label(go)
    A("v_lshlrev_b32 v5, 7, v5")
    A(f"v_add_u32 v5, {hex(flagbase(PH_QKV))}, v5")
    poll(5, "s1")
    A.label(sk)
    A("s_waitcnt lgkmcnt(0)"); A.lg = []
    A("s_barrier")
    stamp("s1")
    A.vm = []
    chunks = [(0, 4), (4, 16), (16, 32), (32, 64)]
    def kv_dma_list(ci):
        t0, t1 = chunks[ci]
        n = (t1 - t0) // 4
        return [(ci, base + t0 * 1024, n, u) for base in (0, 0x10000) for u in range(n)]
    sKV = sT4
    def kv_pre(ent):
        ci, base, n, u = ent
        if u % 4 == 0:
            if ci < 2: A(f"s_mul_i32 s{sT5}, s{sW}, {n*1024}")
            src = sT5 if ci < 2 else (sT0 if ci == 2 else sT1)
            A(f"s_add_u32 m0, s{src}, {base + u*1024}")
            A(f"s_add_u32 s{sKV}, s{src}, {hex(L_KV + base + u*1024)}")
    def kv_dma(ent, pre=True):
        ci, base, n, u = ent
        if pre: kv_pre(ent)
        A.vmem(f"buffer_load_dwordx4 v{vL16}, {srd(rL)}, s{sKV} offen offset:{(u%4)*1024} sc1 lds", f"kv{ci}")
    A.vmem(f"buffer_load_dwordx4 {vr(Q[0])}, v{vL16}, {srd(rL)}, s{sT2} offen sc1", "q0")
    for e in kv_dma_list(0): kv_dma(e)
    for e in kv_dma_list(1): kv_dma(e)
    sWO = sT3
    def wo_base(part):
        A(f"s_add_u32 s{sWO}, s{sWOB}, {hex(part * 0x10000)}")
    def wo_load(f, part):
        A.vmem(f"buffer_load_dwordx4 {ar(4*f)}, v{vL16}, {srd(rWS)}, s{sWO} offen offset:{(f%4)*1024} sc1", f"wo{part}")
    A(f"s_lshl_b32 s{sT0}, s{sW}, 12")
    A(f"s_lshl_b32 s{sT1}, s{sW}, 13")
    kv_pre(kv_dma_list(2)[0])
    A(f"s_add_u32 s{sT2}, s{sT2}, 4096")
    A.wait_vm("kv0")
    A("s_barrier")
    sk = A.newlabel("wpub")
    A(f"s_cmp_lg_u32 s{sW}, 3")
    A(f"s_cbranch_scc1 {sk}")
    A(f"s_lshl_b32 s{sCNT}, s{sWG}, 4")
    A(f"s_add_u32 s{sCNT}, s{sCNT}, {WS_WFLAG}")
    A("v_mov_b32 v4, 0")
    A("s_mov_b64 exec, 1")
    A(f"buffer_store_dword v{vTAG}, v4, {srd(rWS)}, s{sCNT} offen sc1")
    A("s_mov_b64 exec, -1")
    A.label(sk)
    stamp("att_kv0")
    def rdK(n): A.ds(f"ds_read_b128 {vr(KB[n%2])}, v{vL16} offset:{(n%64)*1024}", f"K{n}")
    def rdV(n):
        A.ds(f"ds_read_b128 {vr(V0[n%2])}, v{vVA} offset:{(n%8)*1024}", f"V{n}")
        A.ds(f"ds_read_b128 {vr(V1[n%2])}, v{vVA} offset:{(n%8)*1024+512}", f"V{n}")
    def qk(n): A(f"v_mfma_f32_32x32x16_bf16 {vr(S[n%2],16)}, {vr(KB[n%2])}, {vr(Q[n//64])}, 0")
    rdK(0); rdK(1); rdV(0)
    A.wait_lg("K0")
    qk(0)
    def finalize_O(p):
        o = O[p]
        fb = f"L_FB{p}"; bk = f"L_FBR{p}"
        L = []
        L.append(lambda: A(f"v_add_u32 v4, {hex((0x100000000 - 0x21800000) & 0xffffffff)}, v{o+8}"))
        L.append(lambda: A(f"v_cmp_lt_u32 vcc, 0x3c000000, v4"))
        L.append(lambda: (A(f"s_cbranch_vccnz {fb}"), A.label(bk), A(f"v_rcp_f32 v4, v{o+8}")))
        for r in range(8):
            L.append(lambda r=r: A(f"v_mul_f32 v{o+r}, v4, v{o+r}"))
        for r in range(4):
            L.append(lambda r=r: A(f"v_cvt_pk_bf16_f32 v{8+r}, v{o+2*r}, v{o+2*r+1}"))
        L.append(lambda: A.ds(f"ds_write_b128 v{vOXW}, v[8:11] offset:{p*4096}", "oxw"))
        return L
    def oproj_mfma(f, part):
        jl, ctl = f // 8, f % 8
        Pp, b = ctl // 2, ctl % 2
        c = vr(vPA + 4 * ctl)
        if part == 0 and jl == 0: c = vr(vZ + 8 * (Pp % 2) + 4 * b)
        A.wait_lg(f"of{part}_{jl}")
        A(f"v_mfma_f32_16x16x32_bf16 {vr(vPA+4*ctl)}, {ar(4*f)}, {vr(vOF[jl%2])}, {c}")
    def of_read(part, jl): A.ds(f"ds_read_b128 {vr(vOF[jl%2])}, v{vOXR} offset:{part*4096 + jl*512}", f"of{part}_{jl}")
    sGU = sT4
    def gu_pre(tile, u):
        if u % 4: return
        if tile == 4:
            A(f"s_lshl_b32 m0, s{sW}, 13"); A(f"s_add_u32 m0, m0, {0x20000 + u * 1024}")
        else: A(f"s_add_u32 m0, s{sGUL}, {(tile % 5) * 16384 + u * 1024}")
        A(f"s_add_u32 s{sGU}, s{sGUB}, {tile * 32768 + u * 1024}")
    def gu_dma(tile, u, pre=True):
        if pre: gu_pre(tile, u)
        A.vmem(f"buffer_load_dwordx4 v{vL16}, {srd(rWS)}, s{sGU} offen offset:{(u%4)*1024} sc1 lds", f"gu{tile}")
    def gu_addr(j, s):
        if j == 4: return 0x20000 + s * 1024
        return (j % 5) * 16384 + (s // 16) * 0x10000 + (s % 16) * 1024

    postqk = {n: [] for n in range(128)}
    valu = {n: [] for n in range(128)}
    m16 = {n: [] for n in range(128)}
    pre_reads = {n: [] for n in range(128)}
    postsm1 = {n: [] for n in range(128)}
    first = [lambda: A.vmem(f"buffer_load_dword v{vWFL}, v{vWFA}, {srd(rWS)}, 0 offen sc1", "wfl"),
             lambda: A.vmem(f"buffer_load_dwordx4 {vr(Q[1])}, v{vL16}, {srd(rL)}, s{sT2} offen sc1", "q1")]
    dle = kv_dma_list(2) + kv_dma_list(3)
    dl = [(lambda e=e: kv_dma(e, False)) for e in dle]
    last = [lambda: A.vmem(f"buffer_load_dwordx4 {vr(vZR)}, v{vRROW}, {srd(rXIN)}, 0 offen sc1", "res"),
            lambda: A.vmem(f"buffer_load_dwordx4 {vr(vZR+4)}, v{vRROW}, {srd(rXIN)}, s{sXA} offen sc1", "res")]
    for k, th in enumerate(dl + last + first[::-1]): postqk[k // 2].append(th)
    for k, e in enumerate(dle):
        n_ = k // 2
        if e[3] % 4 == 0 and n_ > 0: postsm1[n_ - 1].append(lambda e=e: kv_pre(e))
    def bar(tags):
        def f():
            A.wait_vm(tags); A("s_barrier")
        return f
    for ci in (1, 2, 3):
        pre_reads[chunks[ci][0] - 2].append(bar(f"kv{ci}"))
    W0 = cfg.wo0
    pre_reads[W0].insert(0, lambda: (check_or_spin(vWFL, vWFA, rWS, "wfl", "wfl"), A("s_barrier")))
    postsm1[W0 - 1].append(lambda: wo_base(0))
    for f in range(64):
        postqk[W0 + f // 2].append(lambda f=f: wo_load(f, 0))
        if f % 4 == 3 and f < 63: postsm1[W0 + f // 2].append(lambda: A(f"s_add_u32 s{sWO}, s{sWO}, 4096"))
    def touch(m):
        A.vmem(f"buffer_load_dword v{vJUNK}, v{vTCH}, {srd(rWS)}, s{sT0} offen offset:{(m % 2) * 2048} sc1", "touch")
    tl = ([(8, m) for m in range(28 // shareGU)] if cfg.warm_gu else []) + ([(9, m) for m in range(7)] if cfg.warm_wd else [])
    for k_, (d, m) in enumerate(tl):
        n_ = cfg.warm0 + (k_ * cfg.warm_span) // len(tl)
        if m % 2 == 0: postsm1[n_ - 1].append(lambda d=d, m=m: A(f"s_add_u32 s{sT0}, s{d}, {m * 2048}"))
        postqk[n_].append(lambda m=m: touch(m))
    valu[55].append(lambda: A.wait_vm("res"))
    for k in range(16):
        valu[56 + k // 4].append(lambda k=k: unpack(vZ, vZR, k))
    fin0 = finalize_O(0)
    for k, th in enumerate(fin0[:-1]):
        valu[65 if k < 9 else 66].append(th)
    postqk[67].append(fin0[-1])
    def ox_bar():
        A.wait_lg("oxw"); A.wait_vm("wo0"); A("s_barrier")
    pre_reads[68].append(ox_bar)
    postqk[68].append(lambda: of_read(0, 0))
    postsm1[69].append(lambda: wo_base(1))
    for f in range(64):
        n = 69 + f // 2
        m16[n].append(lambda f=f: oproj_mfma(f, 0))
        postqk[n + 1].append(lambda f=f: wo_load(f, 1))
        if f % 4 == 3 and f < 63: postsm1[n + 1].append(lambda: A(f"s_add_u32 s{sWO}, s{sWO}, 4096"))
        if f % 8 == 0 and f // 8 + 1 < 8:
            postqk[n + 1].append(lambda f=f: of_read(0, f // 8 + 1))
    for j, (nb, n0) in enumerate(cfg.gu_att):
        assert nb >= 64 + 16 * (j + 1) and n0 >= nb
        if j == 0 or cfg.gu_att[j - 1][0] != nb: pre_reads[nb].append(lambda: A("s_barrier"))
        for u in range(8):
            postqk[n0 + u // 2].append(lambda j=j, u=u: gu_dma(j, u, False))
            if u % 4 == 0: postsm1[n0 + u // 2 - 1].append(lambda j=j, u=u: gu_pre(j, u))
    for n in range(128):
        cur, nxt = S[n % 2], S[(n + 1) % 2]
        e = lambda i: A(f"v_exp_f32 v{cur+i}, v{cur+i}")
        e(0); e(1); e(2)
        if n > 0:
            A(f"v_smfmac_f32_32x32x32_bf16 {vr(O[(n-1)//64],16)}, {vr(V1[(n-1)%2])}, {vr(nxt+8,8)}, v{vIDX}")
        A.wait_lg([f"K{n+1}", f"V{n}"])
        e(3); e(4); e(5)
        if n < 127:
            if n + 1 == 64: A.wait_vm("q1")
            qk(n + 1)
        for th in pre_reads[n]: th()
        if n + 2 < 128: rdK(n + 2)
        if n + 1 < 128: rdV(n + 1)
        for th in postqk[n]: th()
        e(6); e(7); e(8)
        if len(m16[n]) > 0: m16[n][0]()
        e(9); e(10)
        A(f"v_smfmac_f32_32x32x32_bf16 {vr(O[n//64],16)}, {vr(V0[n%2])}, {vr(cur,8)}, v{vIDX}")
        for th in postsm1[n]: th()
        e(11); e(12)
        for th in valu[n]: th()
        if n % 8 == 6 and n < 126:
            if n == 62:
                A(f"v_mul_u32_u24 v5, 7, v{vVINC}"); A(f"v_sub_u32 v{vVA}, v{vVA}, v5")
            else: A(f"v_add_u32 v{vVA}, v{vVA}, v{vVINC}")
        e(13)
        if len(m16[n]) > 1: m16[n][1]()
        e(14); e(15)
    A("s_nop 1")
    A(f"v_smfmac_f32_32x32x32_bf16 {vr(O[1],16)}, {vr(V1[1])}, {vr(S[1]+8,8)}, v{vIDX}")
    vY = 16
    A("v_and_b32 v12, 63, v0")
    A("v_bfe_u32 v5, v12, 3, 1")
    A(f"v_cmp_eq_u32 s[{sM0}:{sM0+1}], 0, v5")
    A("v_and_b32 v6, 7, v12")
    A(f"s_lshl_b32 s{sT0}, s{sW}, 3")
    A(f"s_add_u32 s{sT0}, s{sT0}, {LDS_LNX}")
    A(f"v_lshl_add_u32 v13, v6, 5, s{sT0}")
    A(f"v_lshlrev_b32 v6, 5, v6")
    A(f"v_add_u32 v14, {LDS_LNX}, v6")
    stamp("att_main")
    for th in finalize_O(1): th()
    A.wait_lg()
    A.wait_vm(["wo1"] + [f"gu{t}" for t in range(len(cfg.gu_att))])
    A("s_barrier")
    ngu_att = len(cfg.gu_att)
    gul = [(t, u) for t in range(ngu_att, 4) for u in range(8)]
    wdl = list(range(56))
    def wd_load():
        f = wdl.pop(0)
        if f == 0: A(f"s_mov_b32 s{sWDO}, s{sWDB}")
        elif f % 4 == 0: A(f"s_add_u32 s{sWDO}, s{sWDO}, 4096")
        A.vmem(f"buffer_load_dwordx4 {ar(4*f)}, v{vL16}, {srd(rWS)}, s{sWDO} offen offset:{(f%4)*1024} sc1", "wd")
    vOF8 = 208
    for jl in range(8): A.ds(f"ds_read_b128 {vr(vOF8+4*jl)}, v{vOXR} offset:{4096 + jl*512}", f"og{jl}")
    def stat_ops(t):
        L = []
        for k in range(4 * t, 4 * t + 4):
            L.append(lambda k=k: A(f"v_cndmask_b32 v{vY+k}, v{vPA+16+k}, v{vPA+k}, s[{sM0}:{sM0+1}]"))
        for k in range(4 * t, 4 * t + 4):
            if k == 0:
                L.append(lambda: A(f"v_mov_b32 v8, v{vY}")); L.append(lambda: A(f"v_mul_f32 v9, v{vY}, v{vY}"))
            else:
                L.append(lambda k=k: A(f"v_add_f32 v8, v8, v{vY+k}")); L.append(lambda k=k: A(f"v_fmac_f32 v9, v{vY+k}, v{vY+k}"))
        return L
    def pack_ops(t):
        return [(lambda k=k: A(f"v_cvt_pk_bf16_f32 v{vY+16+k}, v{vY+2*k}, v{vY+2*k+1}")) for k in (2 * t, 2 * t + 1)]
    pend = []; nm = 0; done_f = set()
    groups = [(0, 4, 1, 5), (2, 6), (3, 7)]
    for gi, grp in enumerate(groups):
        for jl in range(8):
            for ci, ctl in enumerate(grp):
                f = jl * 8 + ctl
                A.wait_lg(f"og{jl}")
                A(f"v_mfma_f32_16x16x32_bf16 {vr(vPA+4*ctl)}, {ar(4*f)}, {vr(vOF8+4*jl)}, {vr(vPA+4*ctl)}")
                done_f.add(f); nm += 1
                if nm % 5 == 2 and nm < cfg.op_vm * 5:
                    if gul: gu_dma(*gul.pop(0))
                    elif wdl[0] in done_f and wdl[0] != f: wd_load()
                elif pend and (jl > 1):
                    pend.pop(0)()
                    if pend: pend.pop(0)()
        for t in grp:
            if t < 4: pend += stat_ops(t) + (pack_ops(t) if gi < 2 else [])
    stamp("att_oproj")
    while pend: pend.pop(0)()
    A("s_nop 0")
    A(f"v_add_f32_dpp v8, v8, v8 row_ror:8 row_mask:0xf bank_mask:0xf")
    A(f"v_add_f32_dpp v9, v9, v9 row_ror:8 row_mask:0xf bank_mask:0xf")
    for sw in ("v_permlane16_swap_b32", "v_permlane32_swap_b32"):
        A("v_mov_b32 v10, v8")
        A("v_mov_b32 v11, v9")
        A("s_nop 0")
        A(f"{sw} v8, v10")
        A(f"{sw} v9, v11")
        A("v_add_f32 v8, v8, v10")
        A("v_add_f32 v9, v9, v11")
    A("s_mov_b64 exec, 0xff")
    A.ds("ds_write_b64 v13, v[8:9]")
    A("s_mov_b64 exec, -1")
    for th in pack_ops(3): th()
    A.wait_lg()
    A("s_barrier")
    A.ds("ds_read_b128 v[40:43], v14")
    A.ds("ds_read_b128 v[44:47], v14 offset:16")
    A(f"s_mov_b32 s{sT1}, {hex(f32(1.0/512))}")
    A.wait_lg()
    A("v_add_f32 v8, v40, v42")
    A("v_add_f32 v9, v41, v43")
    A("v_add_f32 v10, v44, v46")
    A("v_add_f32 v11, v45, v47")
    A("v_add_f32 v8, v8, v10")
    A("v_add_f32 v9, v9, v11")
    A(f"v_mul_f32 v8, s{sT1}, v8")
    A(f"v_mul_f32 v9, s{sT1}, v9")
    A("v_fma_f32 v9, -v8, v8, v9")
    A("v_max_f32 v9, 0, v9")
    A(f"v_add_f32 v9, {hex(f32(1e-5))}, v9")
    A("v_rsq_f32 v9, v9")
    A(f"s_mov_b32 s{sT1}, {hex(L_XN1)}")
    A("v_mul_f32 v8, v8, v9")
    for k in range(16):
        A(f"v_fma_f32 v{vY+k}, v{vY+k}, v9, -v8")
        if k % 2 == 1: A(f"v_cvt_pk_bf16_f32 v{40+k//2}, v{vY+k-1}, v{vY+k}")
        if k == 7: A.vmem(f"buffer_store_dwordx4 v[40:43], v{vRES}, {srd(rL)}, s{sT1} offen sc1", "st")
    A.vmem(f"buffer_store_dwordx4 v[44:47], v{vRES}, {srd(rL)}, s{sT1} offen offset:2048 sc1", "st")
    A(f"s_mov_b32 s{sT1}, {hex(L_X1)}")
    A.vmem(f"buffer_store_dwordx4 {vr(vY+16)}, v{vRES}, {srd(rL)}, s{sT1} offen sc1", "st")
    A.vmem(f"buffer_store_dwordx4 {vr(vY+20)}, v{vRES}, {srd(rL)}, s{sT1} offen offset:2048 sc1", "st")
    gul += [(4, u) for u in range(7)]
    for _ in range(cfg.ack_vm):
        if gul: gu_dma(*gul.pop(0))
        else: wd_load()
    vTKV_, aTK = 160, 224; ACC = [16, 32, 48, 64]; vWB = 80; NWB = 5; vHP = 120; vX1R = 128; vHA = 8
    vSB = [vL16, 9, 10]; vFE = 12; vFF = 13; vFR = 14
    def tk(s): return vr(vTKV_ + 4 * s) if s < 24 else ar(aTK + 4 * (s - 24))
    A("v_and_b32 v7, 3, v0")
    A(f"s_lshl_b32 s{sT0}, s{sBLK}, 2")
    A(f"s_add_u32 s{sT0}, s{sT0}, s{sW}")
    A(f"s_lshl_b32 s{sT1}, s{sT0}, 2")
    A(f"s_lshl_b32 s{sHO}, s{sT1}, 7")
    A(f"s_add_u32 s{sHO}, s{sHO}, {hex(flagbase(PH_ATT))}")
    A(f"v_add_u32 v{vSB[1]}, 0x10000, v{vL16}")
    A(f"v_add_u32 v{vSB[2]}, 0x20000, v{vL16}")
    A(f"s_mul_i32 s{sT2}, s{sT0}, 112")
    A(f"s_mul_i32 s{sT1}, s{sSL}, 7")
    A(f"s_add_u32 s{sT2}, s{sT2}, s{sT1}")
    A(f"s_lshl_b32 s{sT2}, s{sT2}, 10")
    A(f"s_add_u32 s{sT2}, s{sT2}, {hex(L_H)}")
    A(f"v_add_u32 v{vHA}, s{sT2}, v{vL16}")
    A(f"s_lshl_b32 s{sT0}, s{sT0}, 15")
    A(f"s_add_u32 s{sT0}, s{sT0}, {hex(L_XN1)}")
    A(f"s_lshr_b32 s{sT1}, s{sTB}, 1")
    A(f"s_lshl_b32 s{sT1}, s{sT1}, 2")
    A(f"s_add_u32 s{sT1}, s{sT1}, s{sW}")
    A(f"s_lshl_b32 s{sT1}, s{sT1}, 2")
    A(f"v_add_u32 v7, s{sT1}, v7")
    A("v_lshlrev_b32 v7, 7, v7")
    A(f"v_add_u32 v{vFE}, {hex(flagbase(PH_FF1E))}, v7")
    A(f"s_lshl_b32 s{sXB}, s{sT1}, 7")
    A(f"s_add_u32 s{sXB}, s{sXB}, {hex(flagbase(PH_FF1))}")
    publish(PH_ATT, sG, "st")
    stamp("att_pub")
    while gul: gu_dma(*gul.pop(0))
    gu_dma(4, 7)
    for _ in range(cfg.wd_s2): wd_load()
    assert ngu_att == 3

    s_spin(rL, sHO, 4, "s2")
    stamp("s2")
    def tk_load(s):
        if s % 4 == 0 and s: A(f"s_add_u32 s{sT0}, s{sT0}, 4096")
        A.vmem(f"buffer_load_dwordx4 {tk(s)}, v{vL16}, {srd(rL)}, s{sT0} offen offset:{(s%4)*1024} sc1", f"tk{s}")
    seq = [(j, s) for s in range(32) for j in range(3)] + [(j, s) for j in range(3, 7) for s in range(32)]
    acc_of = {0: 0, 1: 1, 2: 2, 3: 3, 4: 0, 5: 1, 6: 2}
    def w_read(k):
        off = gu_addr(*seq[k])
        A.ds(f"ds_read_b128 {vr(vWB+4*(k%NWB))}, v{vSB[off>>16]} offset:{off & 0xffff}", f"wb{k}")
    def h_epi(j):
        a = ACC[acc_of[j]]
        L = []
        for r in range(8):
            L.append(lambda r=r: A(f"v_max_f32 v{a+r}, 0, v{a+r}"))
            L.append(lambda r=r: A(f"v_mul_f32 v{a+r}, v{a+r}, v{a+8+r}"))
            if r % 2 == 1: L.append(lambda r=r: A(f"v_cvt_pk_bf16_f32 v{vHP+4*(j%2)+r//2}, v{a+r-1}, v{a+r}"))
        L.append(lambda: A.vmem(f"buffer_store_dwordx4 {vr(vHP+4*(j%2))}, v{vHA}, {srd(rL)}, s{sT1} offen offset:{(j%4)*1024} sc1", f"hst{j}"))
        return L
    extras = {k: [] for k in range(len(seq))}
    LOOK = NWB - 1
    k3 = 96
    NTK0 = cfg.tk0
    for s in range(NTK0): tk_load(s)
    for s in range(NTK0, 32): extras[(s - NTK0) * 2].append(lambda s=s: tk_load(s))
    ep = h_epi(0) + h_epi(1) + h_epi(2) + h_epi(3)
    for n, th in enumerate(ep): extras[k3 + 3 + (2 * n) // 3].append(th)
    for j in (4, 5):
        for n, th in enumerate(h_epi(j)): extras[k3 + 32 * (j - 2) + 3 + n // 2].append(th)
    g56 = [(5, u) for u in range(8)] + [(6, u) for u in range(8)]
    for n, e in enumerate(g56):
        extras[k3 + cfg.g56 * n].append(lambda e=e: gu_pre(*e))
        extras[k3 + 1 + cfg.g56 * n].insert(0, lambda e=e: gu_dma(*e, False))
    def x1_load():
        A(f"s_lshl_b32 s{sT0}, s{sTB}, 6")
        A(f"s_lshl_b32 s{sT2}, s{sCB}, 2")
        A(f"s_add_u32 s{sT0}, s{sT0}, s{sT2}")
        A(f"s_and_b32 s{sT2}, s{sW}, 1")
        A(f"s_lshl_b32 s{sT2}, s{sT2}, 1")
        A(f"s_add_u32 s{sT0}, s{sT0}, s{sT2}")
        A(f"s_lshr_b32 s{sT2}, s{sW}, 1")
        A(f"s_add_u32 s{sT0}, s{sT0}, s{sT2}")
        A(f"s_lshl_b32 s{sT0}, s{sT0}, 10")
        A(f"s_add_u32 s{sT0}, s{sT0}, {hex(L_X1)}")
        A(f"s_add_u32 s{sT2}, s{sT0}, 32768")
    split_later = [(x1_load, 82, 2)]
    extras[k3 + 50].append(lambda: A.vmem(f"buffer_load_dwordx4 {vr(vX1R)}, v{vL16}, {srd(rL)}, s{sT0} offen sc1", "x1"))
    extras[k3 + 53].append(lambda: A.vmem(f"buffer_load_dwordx4 {vr(vX1R+4)}, v{vL16}, {srd(rL)}, s{sT2} offen sc1", "x1"))
    slots = list(range((32 - NTK0) * 2 + 1, k3 - 2, 3))
    ntail = len(wdl) - len(slots)
    slots += [k3 + 58 + (n * (122 - 58)) // max(ntail, 1) for n in range(ntail)]
    nrem = len(wdl)
    assert len(slots) >= nrem, (len(slots), nrem)
    for n in range(nrem): extras[slots[n]].append(wd_load)
    def early_pub():
        A.wait_vm("hst4"); A("s_barrier"); flag_store(PH_FF1E, sID1)
    extras[k3 + cfg.epub].append(early_pub)
    extras[k3 + cfg.epoll].append(lambda: A.vmem(f"buffer_load_dword v{vFR}, v{vFE}, {srd(rL)}, 0 offen sc1", "fe"))
    def h_base():
        A(f"s_mul_i32 s{sHO}, s{sTB}, 224")
        A(f"s_mul_i32 s{sHS}, s{sW}, 28")
        A(f"s_add_u32 s{sHO}, s{sHO}, s{sHS}")
        A(f"s_lshl_b32 s{sHO}, s{sHO}, 10")
        A(f"s_add_u32 s{sHO}, s{sHO}, {hex(L_H)}")
    extras[k3 + 116].append(h_base)
    AC = [[16, 32], [48, 64]]; vHR = 156; NHR = 19; vRT = 232; vOA = 152; vRW = 153; vRR = 154; vRS = 136
    def ffn2_addrs():
        A(f"s_lshl_b32 s{sT0}, s{sW}, 11")
        A(f"v_add_u32 v{vRW}, s{sT0}, v{vL16}")
        A(f"s_lshl_b32 s{sT0}, s{sW}, 13")
        A(f"v_add_u32 v{vRR}, s{sT0}, v{vL16}")
        A(f"s_and_b32 s{sT3}, s{sW}, 1")
        A(f"s_lshl_b32 s{sT3}, s{sT3}, 1")
        A(f"s_lshr_b32 s{sT2}, s{sW}, 1")
        A(f"s_add_u32 s{sT3}, s{sT3}, s{sT2}")
        A(f"s_lshl_b32 s{sT2}, s{sCB}, 2")
        A(f"s_add_u32 s{sT3}, s{sT3}, s{sT2}")
        A(f"s_lshl_b32 s{sT0}, s{sTB}, 16")
        A(f"s_cmp_eq_u32 s{sLAYER}, 0")
        A("s_cselect_b64 vcc, -1, 0")
        A(f"s_cselect_b32 s{sT2}, 10, 5")
        A(f"s_lshl_b32 s{sT3}, s{sT3}, s{sT2}")
        A(f"s_add_u32 s{sT0}, s{sT0}, s{sT3}")
        A("v_and_b32 v6, 31, v0")
        A("v_bfe_u32 v7, v0, 5, 1")
        A("v_lshlrev_b32 v6, 10, v6")
        A("v_lshl_add_u32 v6, v7, 4, v6")
        A(f"v_cndmask_b32 v6, v6, v{vL16}, vcc")
        A(f"v_add_u32 v{vOA}, s{sT0}, v6")
    def split(fn, k0, per):
        B = A.L; A.L = []; fn(); ins = A.L; A.L = B
        units = []
        for ln in ins:
            if ln.startswith("s_cselect"): units[-1].append(ln)
            else: units.append([ln])
        for n in range(0, len(units), per):
            extras[k0 + n // per].append(lambda part=sum(units[n:n + per], []): A.L.extend(part))
    for e in split_later: split(*e)
    split(ffn2_addrs, 60, 2)
    split(w_dma_setup, 74, 2)
    for k_ in range(16): extras[k3 + cfg.epub + 1 + k_ // 2].append(lambda k_=k_: unpack(vRS + 8 * (k_ // 8), vX1R + 4 * (k_ // 8), k_ % 8))

    A(f"s_mov_b32 s{sT1}, 0")
    for k in range(LOOK): w_read(k)
    for k, (j, s) in enumerate(seq):
        if k == 0: A.wait_vm("tk0"); A.wait_lg("wb0")
        a = ACC[acc_of[j]]
        A(f"v_mfma_f32_32x32x16_bf16 {vr(a,16)}, {vr(vWB+4*(k%NWB))}, {tk(s)}, {vr(a,16) if s else 0}")
        if k + 1 < len(seq):
            A.wait_lg(f"wb{k+1}")
            if k + 1 < k3 and seq[k + 1][0] == 0: A.wait_vm(f"tk{seq[k+1][1]}")
        if k == k3: A("s_barrier")
        kn = k + LOOK
        if kn < len(seq):
            if kn == k3:
                A.wait_vm(["gu3", "gu4"]); A("s_barrier")
            if kn == k3 + 64:
                A.wait_vm(["gu5", "gu6"]); A("s_barrier")
            w_read(kn)
        if k in (2, k3 - 1, k3 + 63): fstamp(f"f1_k{k}")
        if k == k3 + 64: A(f"s_mov_b32 s{sT1}, 4096")
        for th in extras[k]: th()
    assert not wdl
    for th in h_epi(6): th()
    stamp("ffn1_mm")

    early = [7 * sl + j for sl in range(4) for j in range(5)]; late = [7 * sl + j for sl in range(4) for j in (5, 6)]
    ne = cfg.e1
    order = [(0, k) for k in early] + [(1, k) for k in early[:ne]] + [(0, k) for k in late] + [(1, k) for k in early[ne:]] + [(1, k) for k in late]
    nlate = 20 + ne; nA = 28 + ne
    def h_load(n):
        tt, k = order[n]
        A(f"s_add_u32 s{sHS}, s{sHO}, {tt*112*1024 + (k // 4) * 4096}")
        A.vmem(f"buffer_load_dwordx4 {vr(vHR+4*(n%NHR))}, v{vL16}, {srd(rL)}, s{sHS} offen offset:{(k%4)*1024} sc1", f"h{n}")
    NH0 = cfg.h0
    slow = A.newlabel("eslow"); join = A.newlabel("ejoin")
    A.wait_vm("fe")
    A(f"v_cmp_ne_u32 vcc, v{vFR}, v{vTAG}")
    A(f"s_cbranch_vccnz {slow}")
    sv = list(A.vm)
    for n in range(NH0): h_load(n)
    publish(PH_FF1, sID1, "hst6")
    A(f"s_branch {join}")
    A.label(slow)
    after = list(A.vm); A.vm = sv
    publish(PH_FF1, sID1, "hst6")
    spin(vFE, rL, "s3e", vFR); A.vm = []
    for n in range(NH0): h_load(n)
    assert A.vm == after
    A.label(join)
    stamp("ffn1_pub")
    def red_write(tt):
        L = []
        for own in range(4):
            a = AC[tt][own % 2] + 8 * (own // 2)
            for h in range(2):
                L.append(lambda a=a, own=own, h=h: A.ds(f"ds_write_b128 v{vRW}, {vr(a+4*h)} offset:{tt*32768 + own*8192 + h*1024}", f"rw{tt}"))
        return L
    def out_store(tt):
        A(f"s_mov_b32 s{sT2}, {tt*32768}")
        if cfg.out_plain:
            pl = A.newlabel("opl"); dn = A.newlabel("odn")
            A(f"s_cmp_eq_u32 s{sLAYER}, 0")
            A(f"s_cbranch_scc0 {pl}")
            A.vmem(f"buffer_store_dwordx4 {vr(92+4*tt)}, v{vOA}, {srd(rOUT)}, s{sT2} offen sc1", "ost")
            A(f"s_branch {dn}")
            A.label(pl)
            A(f"buffer_store_dwordx4 {vr(92+4*tt)}, v{vOA}, {srd(rOUT)}, s{sT2} offen")
            A.label(dn)
        else:
            A.vmem(f"buffer_store_dwordx4 {vr(92+4*tt)}, v{vOA}, {srd(rOUT)}, s{sT2} offen sc1", "ost")
    def red_final(tt):
        L = []
        for src in range(4):
            for h in range(2):
                d = (vRT + 8 * src + 4 * h) if src < 3 else (84 + 4 * h)
                L.append(lambda src=src, h=h, d=d: A.ds(f"ds_read_b128 {vr(d)}, v{vRR} offset:{tt*32768 + src*2048 + h*1024}", f"rr{tt}"))
        L.append(lambda: A.wait_lg(f"rr{tt}"))
        for r in range(8):
            L.append(lambda r=r: A(f"v_add_f32 v{vRT+r}, v{vRT+r}, v{vRT+8+r}"))
            L.append(lambda r=r: A(f"v_add_f32 v{84+r}, v{84+r}, v{vRT+16+r}"))
            L.append(lambda r=r: A(f"v_add_f32 v{vRT+r}, v{vRT+r}, v{vRS+8*tt+r}"))
        for r in range(8):
            L.append(lambda r=r: A(f"v_add_f32 v{vRT+r}, v{vRT+r}, v{84+r}"))
            if r % 2 == 1: L.append(lambda r=r: A(f"v_cvt_pk_bf16_f32 v{92+4*tt+r//2}, v{vRT+r-1}, v{vRT+r}"))
        L.append(lambda: out_store(tt))
        return L
    def red_last():
        dn = A.newlabel("rl")
        labs = [A.newlabel("rlw") for _ in range(4)]
        A("s_nop 9")
        A(f"s_cmp_eq_u32 s{sW}, 1"); A(f"s_cbranch_scc1 {labs[1]}")
        A(f"s_cmp_eq_u32 s{sW}, 2"); A(f"s_cbranch_scc1 {labs[2]}")
        A(f"s_cmp_eq_u32 s{sW}, 3"); A(f"s_cbranch_scc1 {labs[3]}")
        for wv in range(4):
            A.label(labs[wv])
            for own in [(wv + d) % 4 for d in (2, 1, 3)]:
                a = AC[1][own % 2] + 8 * (own // 2)
                for h in range(2):
                    A(f"ds_write_b128 v{vL16}, {vr(a+4*h)} offset:{32768 + own*8192 + ((wv - own) % 4)*2048 + h*1024}")
            a = AC[1][wv % 2] + 8 * (wv // 2)
            for r in range(8): A(f"v_add_f32 v{84+r}, v{a+r}, v{vRS+8+r}")
            if wv < 3: A(f"s_branch {dn}")
        A.label(dn)
        A.wait_lg(); A.wait_vm("wq0")
        A("s_barrier")
        for src in range(3):
            for h in range(2):
                A.ds(f"ds_read_b128 {vr(vRT + 8*src + 4*h)}, v{vRR} offset:{32768 + (src+1)*2048 + h*1024}", f"r{src}")
        for src in range(3):
            A.wait_lg(f"r{src}")
            for r in range(8):
                A(f"v_add_f32 v{84+r}, v{84+r}, v{vRT+8*src+r}")
                if src == 2 and r % 2 == 1: A(f"v_cvt_pk_bf16_f32 v{96+r//2}, v{84+r-1}, v{84+r}")
        out_store(1)
    ex2 = {n: [] for n in range(56)}
    for i_, th in enumerate(red_write(0)): ex2[nA + 1 + i_ // 3].append(th)
    def rbar():
        A.wait_lg("rw0"); A("s_barrier")
    ex2[nA + 5].append(rbar)
    rf = red_final(0)
    for i_, th in enumerate(rf): ex2[min(nA + 5 + i_ // 8, 55)].append(th)
    wl = [(c, n) for c in range(4) for n in range(5)]
    nxt_load = NH0
    ahead = cfg.h_ahead
    for n in range(56):
        tt, k = order[n]
        if n == 0: A.wait_vm("h0")
        for ct in range(2):
            A(f"v_mfma_f32_32x32x16_bf16 {vr(AC[tt][ct],16)}, {ar(4*(2*k+ct))}, {vr(vHR+4*(n%NHR))}, {vr(AC[tt][ct],16) if n not in (0, 20) else 0}")
            if ct == 1 and n < 55: A.wait_vm(f"h{n+1}")
            if nxt_load < 56 and nxt_load <= n + min(ahead, NHR - 1):
                if nxt_load == nlate:
                    if n < cfg.fchk: continue
                    s_spin(rL, sXB, 4, "s3f", issued=True)
                h_load(nxt_load); nxt_load += 1
            elif nxt_load == 56 and ct == 0 and len(wl) > cfg.w_tail:
                w_dma(*wl.pop(0))
        if n == cfg.fpos: s_issue(rL, sXB, 4)
        if n in (0, 19, nA - 1): fstamp(f"f2_n{n}")
        for th in ex2[n]: th()
    assert nxt_load == 56
    stamp("ffn2_mm")
    red_last()
    A(f"s_cmp_eq_u32 s{sLAYER}, 0")
    A("s_cbranch_scc0 L_FINISH")
    while wl: w_dma(*wl.pop(0))
    A(f"s_mov_b32 s{rXIN}, s{rOUT}")
    A(f"s_mov_b32 s{rXIN+1}, s{rOUT+1}")
    A(f"s_mov_b32 s{sXST}, 2048")
    A(f"s_lshl_b32 s{sT0}, s{sTB}, 16")
    A(f"s_lshr_b32 s{sT1}, s{sW}, 1")
    A(f"s_lshl_b32 s{sT1}, s{sT1}, 15")
    A(f"s_add_u32 s{sT0}, s{sT0}, s{sT1}")
    A(f"s_and_b32 s{sT1}, s{sW}, 1")
    A(f"s_lshl_b32 s{sT1}, s{sT1}, 10")
    A(f"s_add_u32 s{sT0}, s{sT0}, s{sT1}")
    A(f"v_add_u32 v{vXS}, s{sT0}, v{vL16}")
    qkv_addrs(False)
    def tr_block(c):
        t = tr_reads(c)
        for th in guarded(t[:16]): th()
        sk = A.newlabel("trkv")
        A(f"s_cmp_ge_u32 s{sCB}, 2")
        A(f"s_cbranch_scc1 {sk}")
        A.wait_lg()
        for th in t[16:]: th()
        A.label(sk)
        A.wait_lg()
    tr_block(0)
    assert A.vm_n("wq1") > A.vm_n("ost")
    publish(PH_FF2, sG, "ost")
    stamp("ffn2_pub")
    tr_block(1)
    A.wait_vm()
    A("s_barrier")
    tr_block(2)
    A(f"s_lshl_b32 s{sHO}, s{sTB}, 10")
    A(f"s_add_u32 s{sHO}, s{sHO}, {hex(WS_L0 + flagbase(PH_FF2))}")
    A(f"s_mov_b32 s{rWS+2}, {hex(WS_L0 + 2 * LSTRIDE)}")
    tr_block(3)
    A(f"s_mov_b32 s{sLAYER}, 1")
    A(f"s_add_u32 s{rL}, s{rL}, {hex(LSTRIDE)}")
    A(f"s_addc_u32 s{rL+1}, s{rL+1}, 0")
    A(f"s_mov_b32 s{rOUT}, s{P_OUT}")
    A(f"s_mov_b32 s{rOUT+1}, s{P_OUT+1}")
    A("s_branch L_LAYER1")

    A.label("L_FINISH")
    stamp("finish")
    if cfg.prof:
        A(f"s_lshl_b32 s{sT0}, s{sGW}, 8")
        A(f"s_add_u32 s{sT0}, s{sT0}, {hex(WS_PROF)}")
        A(f"v_lshrrev_b32 v4, 2, v{vL16}")
        A(f"buffer_store_dword v{vPROF}, v4, {srd(rWS)}, s{sT0} offen")
    A(f"s_cmp_lg_u32 s{sGW}, 0")
    A("s_cbranch_scc1 L_END")
    if cfg.dbg:
        A(f"v_readlane_b32 s{sT1}, v{vPROF}, 0")
        A("v_mov_b32 v5, 0")
        for n, j in enumerate(cfg.dbg):
            A(f"v_readlane_b32 s{sT0}, v{vPROF}, {j}")
            A("s_nop 3")
            A(f"s_sub_u32 s{sT0}, s{sT0}, s{sT1}")
            A(f"v_writelane_b32 v5, s{sT0}, {n}")
        mk_srd(rR0, P_DBG, 256)
        A(f"v_lshrrev_b32 v4, 2, v{vL16}")
        A(f"buffer_store_dword v5, v4, {srd(rR0)}, 0 offen")
    A("v_mov_b32 v4, 0")
    A("s_mov_b64 exec, 1")
    A(f"buffer_store_dword v{vTAG}, v4, {srd(rWS)}, 0 offen")
    A.label("L_END")
    A("s_endpgm")
    A.label("L_TIMEOUT")
    A("s_endpgm")

    for p in range(2):
        o = O[p]; q = Q[p]
        fS, fN, fK, fV0, fV1, fM, fA = 208, 224, 240, 244, 248, 252, 253
        A.label(f"L_FB{p}")
        A(f"v_mov_b32 v{fM}, 0xff800000")
        A(f"s_mov_b32 s{sT0}, {hex(L_KV)}")
        A.label(f"L_FB{p}_a")
        A(f"buffer_load_dwordx4 {vr(fK)}, v{vL16}, {srd(rL)}, s{sT0} offen sc1")
        A(f"s_add_u32 s{sT0}, s{sT0}, 1024")
        A("s_waitcnt vmcnt(0)")
        A(f"v_mfma_f32_32x32x16_bf16 {vr(fS,16)}, {vr(fK)}, {vr(q)}, 0")
        A("s_nop 7"); A("s_nop 7")
        for r in range(8): A(f"v_max3_f32 v{fM}, v{fS+2*r}, v{fS+2*r+1}, v{fM}")
        A(f"s_cmp_lg_u32 s{sT0}, {hex(L_KV + 0x10000)}")
        A(f"s_cbranch_scc1 L_FB{p}_a")
        A(f"v_mov_b32 v{fA}, v{fM}")
        A("s_nop 1")
        A(f"v_permlane32_swap_b32 v{fM}, v{fA}")
        A(f"v_max_f32 v{fM}, v{fM}, v{fA}")
        for r in range(16):
            A(f"v_sub_f32 v{fN+r}, 0, v{fM}")
            A(f"v_mov_b32 v{o+r}, 0")
        A("v_and_b32 v4, 63, v0")
        A("v_and_b32 v5, 27, v4")
        A("v_cmp_eq_u32 vcc, 16, v5")
        A("v_mov_b32 v6, 0x3f803f80")
        for r in range(8): A(f"v_cndmask_b32 v{fV0+r}, 0, v6, vcc")
        A("v_and_b32 v5, 15, v4")
        A("v_lshrrev_b32 v6, 5, v4")
        A("v_lshlrev_b32 v5, 4, v5")
        A("v_lshl_add_u32 v5, v6, 8, v5")
        A(f"v_add_u32 v5, 0x10000, v5")
        A(f"s_mov_b32 s{sT0}, {hex(L_KV)}")
        A(f"s_mov_b32 s{sM1}, 0x0000ffff")
        A(f"s_mov_b32 s{sM1+1}, 0x0000ffff")
        A.label(f"L_FB{p}_b")
        A(f"buffer_load_dwordx4 {vr(fK)}, v{vL16}, {srd(rL)}, s{sT0} offen sc1")
        A(f"s_mov_b64 exec, s[{sM1}:{sM1+1}]")
        A(f"buffer_load_dwordx4 {vr(fV0)}, v5, {srd(rL)}, s{sT0} offen sc1")
        A(f"buffer_load_dwordx4 {vr(fV1)}, v5, {srd(rL)}, s{sT0} offen offset:512 sc1")
        A("s_mov_b64 exec, -1")
        A(f"s_add_u32 s{sT0}, s{sT0}, 1024")
        A("s_waitcnt vmcnt(0)")
        A(f"v_mfma_f32_32x32x16_bf16 {vr(fS,16)}, {vr(fK)}, {vr(q)}, {vr(fN,16)}")
        A("s_nop 7"); A("s_nop 7")
        for r in range(16): A(f"v_exp_f32 v{fS+r}, v{fS+r}")
        A("s_nop 1")
        A(f"v_smfmac_f32_32x32x32_bf16 {vr(o,16)}, {vr(fV0)}, {vr(fS,8)}, v{vIDX}")
        A(f"v_smfmac_f32_32x32x32_bf16 {vr(o,16)}, {vr(fV1)}, {vr(fS+8,8)}, v{vIDX}")
        A(f"s_cmp_lg_u32 s{sT0}, {hex(L_KV + 0x10000)}")
        A(f"s_cbranch_scc1 L_FB{p}_b")
        A("s_nop 7"); A("s_nop 7")
        A(f"s_branch L_FBR{p}")
    A.label("L_CODE_END")
    lines, nfix, probs = check_hazards(A.L)
    for p_ in probs: print("HAZARD:", p_, file=sys.stderr)
    print(f"auto nops: {nfix}", file=sys.stderr)
    body = "\n".join(l if l.endswith(":") else "    " + l for l in lines)
    hdr = open("cdna_kernels/" + NAME + ".s.ref").read().split("; Override launch")[0]
    out = hdr + f"""; Persistent kernel: 256 workgroups (one per CU), flag-based hand-offs through d_ws. Generated by gen2.py.
; @launch grid=(256,1,1) block=(256,1,1) lds={LDS_TOTAL}
.amdgcn_target "amdgcn-amd-amdhsa--gfx950"
.text
.globl {NAME}_kernel
.p2align 8
.type {NAME}_kernel,@function
{NAME}_kernel:
L_CODE_START:
{body}
.section .rodata,"a"
.p2align 6
.amdhsa_kernel {NAME}_kernel
  .amdhsa_next_free_vgpr 512
  .amdhsa_next_free_sgpr 102
  .amdhsa_accum_offset 256
  .amdhsa_group_segment_fixed_size 0
  .amdhsa_kernarg_size 96
  .amdhsa_user_sgpr_count 2
  .amdhsa_user_sgpr_kernarg_segment_ptr 1
  .amdhsa_system_sgpr_workgroup_id_x 1
.end_amdhsa_kernel
"""
    return out

DEFAULTS = dict(prof=None, fine=False, dbg=None, t512=True, spin_limit=200000,
                warm_gu=True, warm_wd=True, warm0=22, warm_span=76, gu_att=[(96, 103), (96, 107), (112, 113)],
                op_vm=12, ack_vm=12, wd_s2=14, s4='vec', raw='c23', flag_touch=True, out_plain=True, g56=2, wo0=18, tk0=10, epub=102, epoll=124, e1=16, h0=12, h_ahead=14, fpos=14, fchk=22, w_tail=8)
if __name__ == "__main__":
    import argparse, json, ast
    ap = argparse.ArgumentParser()
    ap.add_argument("-o", default="cdna_kernels/" + NAME + ".s")
    ap.add_argument("opts", nargs="*")
    a = ap.parse_args()
    cfg = Cfg()
    for k, v in DEFAULTS.items(): setattr(cfg, k, v)
    for o in a.opts:
        k, v = o.split("=", 1)
        assert k in DEFAULTS, k
        try: v = ast.literal_eval(v)
        except Exception: pass
        setattr(cfg, k, v)
    s = gen(cfg)
    open(a.o, "w").write(s)
    json.dump(cfg.stamps, open(a.o + ".stamps.json", "w"))
```

```python
import sys, math, struct
sys.path.insert(0, "gen")
from asmlib import Asm, check_hazards

NAME = "interleave_layers__grouped_kv_mqa__glu_gated_reglu__prompt"

WS_EPOCH = 0
WS_WFLAG = 0x1000
WS_PROF = 0x10000
WS_WOT = 0x100000
WS_WDT = 0x200000
WS_WGUT = 0x400000
WS_X2 = 0x800000
WS_L0 = 0x1000000
LSTRIDE = 0x1000000
L_Q = 0
L_KV = 0x200000
L_FLAG = 0x280000
L_X1 = 0x300000
L_XN1 = 0x500000
L_H = 0x700000
PH_QKV, PH_ATT, PH_FF1, PH_FF2, PH_FF1E = 0, 1, 2, 3, 4
def flagbase(ph): return L_FLAG + ph * 256 * 128

LDS_WQ = 0x10000
LDS_WKV = 0x20000
LDS_ST = 0x24400
LDS_V = 0x10000
LDS_ONES = 0x20000
LDS_OX = 0x22000
LDS_LNX = 0x27f00
LDS_TOTAL = 160 * 1024

sWG = 2; sW = 3; sX = 4; sI = 5; sLAYER = 6; sTAG = 7
P_X, P_WQ, P_WK, P_WV, P_WO, P_BX, P_WG, P_WU, P_WD, P_OUT, P_DBG, P_WS = [8 + 2 * i for i in range(12)]
rXIN = 32; rWQ = 36; rWKV = 40; rL = 44; rWS = 48; rOUT = 52; rR0 = 56; rR1 = 60; rR2 = 64
sTB = 68; sCB = 69; sG = 70; sBLK = 71; sSL = 72; sID1 = 73; sXST = 74; sGW = 75
sT0 = 76; sT1 = 77; sT2 = 78; sT3 = 79; sT4 = 80; sT5 = 81
sCNT = 82; sGUL = 83
sM0 = 84; sM1 = 86; sM2 = 88
sWA = 90; sWB = 91
sTS = 92
sWDO = 94; sXA = 95; sXB = 99; sQO = 100; sKO = 101
sHO = 18; sHS = 19

def srd(n): return f"s[{n}:{n+3}]"
def vr(a, n=4): return f"v[{a}:{a+n-1}]"
def ar(a, n=4): return f"a[{a}:{a+n-1}]"
def f32(x): return struct.unpack("<I", struct.pack("<f", x))[0]

vL16 = 1; vTAG = 2; vPROF = 3; vCS = 100; vCKV = 116

class Cfg: pass

def gen(cfg):
    A = Asm()
    stamp_idx = [0]
    cfg.stamps = []
    clk = "s_memtime" if cfg.prof == "clk" else "s_memrealtime"
    def stamp(name):
        if not cfg.prof: return
        A(f"{clk} s[{sTS}:{sTS+1}]")
        A("s_waitcnt lgkmcnt(0)"); A.lg = []
        k = stamp_idx[0]; stamp_idx[0] += 1
        assert k < 32
        A(f"s_lshl_b32 s{sTS+1}, s{sLAYER}, 5")
        A(f"s_add_u32 s{sTS+1}, s{sTS+1}, {k}")
        A("s_mov_b32 s98, m0")
        A(f"s_mov_b32 m0, s{sTS+1}")
        A("s_nop 1")
        A(f"v_writelane_b32 v{vPROF}, s{sTS}, m0")
        A("s_mov_b32 m0, s98")
        cfg.stamps.append(name)
    def fstamp(name):
        if cfg.fine: stamp(name)

    def spin(vaddr, r, name, tmp=4):
        lp = A.newlabel("poll_" + name); dn = A.newlabel("polld_" + name)
        A(f"s_mov_b32 s{sCNT}, {cfg.spin_limit}")
        A.label(lp)
        A(f"buffer_load_dword v{tmp}, v{vaddr}, {srd(r)}, 0 offen sc1")
        A("s_waitcnt vmcnt(0)")
        A(f"v_cmp_ne_u32 vcc, v{tmp}, v{vTAG}")
        A(f"s_cbranch_vccz {dn}")
        A(f"s_sub_u32 s{sCNT}, s{sCNT}, 1")
        A(f"s_cmp_lg_u32 s{sCNT}, 0")
        A(f"s_cbranch_scc1 {lp}")
        A("s_branch L_TIMEOUT")
        A.label(dn)
    def poll(vaddr, name, tmp=4):
        spin(vaddr, rL, name, tmp); A.vm = []
    sPF = 56
    def s_issue(r, sbase, n):
        for q in range(n): A(f"s_buffer_load_dword s{sPF+q}, {srd(r)}, s{sbase} offset:{q*128} glc")
    def s_test(n):
        A("s_waitcnt lgkmcnt(0)"); A.lg = []
        for q in range(n): A(f"s_xor_b32 s{sPF+q}, s{sPF+q}, s{sTAG}")
        m = n
        while m > 1:
            for q in range(m // 2): A(f"s_or_b32 s{sPF+q}, s{sPF+q}, s{sPF+q+m//2}")
            m //= 2
    def s_spin(r, sbase, n, name, issued=False):
        lp = A.newlabel("sp_" + name); dn = A.newlabel("spd_" + name); ck = A.newlabel("spc_" + name)
        A(f"s_mov_b32 s{sCNT}, {cfg.spin_limit}")
        if issued: A(f"s_branch {ck}")
        A.label(lp)
        s_issue(r, sbase, n)
        A(f"s_sub_u32 s{sCNT}, s{sCNT}, 1")
        A("s_cbranch_scc1 L_TIMEOUT")
        A.label(ck)
        s_test(n)
        A(f"s_cbranch_scc1 {lp}")
    def check_or_spin(vres, vaddr, r, tag, name):
        ok = A.newlabel("ok_" + name)
        A.wait_vm(tag)
        A(f"v_cmp_ne_u32 vcc, v{vres}, v{vTAG}")
        A(f"s_cbranch_vccz {ok}")
        spin(vaddr, r, name, vres)
        A.label(ok)
    def flag_store(phase, sid, tmp=4):
        sk = A.newlabel("pub")
        A(f"s_cmp_lg_u32 s{sW}, 0")
        A(f"s_cbranch_scc1 {sk}")
        A(f"s_lshl_b32 s{sCNT}, s{sid}, 7")
        A(f"s_add_u32 s{sCNT}, s{sCNT}, {hex(flagbase(phase))}")
        A(f"v_mov_b32 v{tmp}, 0")
        A("s_mov_b64 exec, 1")
        A(f"buffer_store_dword v{vTAG}, v{tmp}, {srd(rL)}, s{sCNT} offen sc1")
        A("s_mov_b64 exec, -1")
        A.label(sk)
    def publish(phase, sid, tags, tmp=4):
        A.wait_vm(tags)
        A("s_barrier")
        flag_store(phase, sid, tmp)
    def unpack(dst, src, k):
        if k % 2 == 0: A(f"v_lshlrev_b32 v{dst+k}, 16, v{src+k//2}")
        else: A(f"v_and_b32 v{dst+k}, 0xffff0000, v{src+k//2}")
    def mk_srd(r, p, size, add=0):
        if add:
            A(f"s_add_u32 s{r}, s{p}, {hex(add)}")
            A(f"s_addc_u32 s{r+1}, s{p+1}, 0")
        else:
            A(f"s_mov_b32 s{r}, s{p}")
            A(f"s_mov_b32 s{r+1}, s{p+1}")
        A(f"s_mov_b32 s{r+2}, {hex(size)}")
        A(f"s_mov_b32 s{r+3}, 0x20000")

    vWS_ = 11
    def w_dma_setup():
        A("v_and_b32 v4, 63, v0")
        A("v_lshrrev_b32 v5, 3, v4")
        A("v_bfe_u32 v6, v4, 4, 1")
        A("v_lshlrev_b32 v6, 2, v6")
        A("v_and_b32 v4, 7, v4")
        A("v_xor_b32 v4, v4, v6")
        A("v_lshlrev_b32 v4, 4, v4")
        A(f"v_lshl_add_u32 v{vWS_}, v5, 10, v4")
        A(f"s_lshl_b32 s{sWA}, s{sW}, 15")
        A(f"s_lshl_b32 s{sWB}, s{sCB}, 7")
        A(f"s_add_u32 s{sWA}, s{sWA}, s{sWB}")
        A(f"s_lshl_b32 s{sWB}, s{sW}, 12")
        A(f"s_add_u32 s{sWB}, s{sWB}, {LDS_WQ}")
    def w_dma(c, n):
        if n < 4:
            A(f"s_mov_b32 m0, s{sWB}")
            A(f"s_add_u32 s{sWB}, s{sWB}, {1024 if n < 3 else 16384 - 3072}")
            A.vmem(f"buffer_load_dwordx4 v{vWS_}, {srd(rWQ)}, s{sWA} offen lds", f"wq{c}")
            A(f"s_add_u32 s{sWA}, s{sWA}, {8192 if n < 3 else 131072 - 3 * 8192}")
        else:
            A(f"s_lshl_b32 s{sCNT}, s{sW}, 10")
            A(f"s_add_u32 m0, s{sCNT}, {LDS_WKV + c*4096}")
            A(f"s_add_u32 s{sCNT}, s{sCNT}, {c*4096}")
            A.vmem(f"buffer_load_dwordx4 v{vL16}, {srd(rWKV)}, s{sCNT} offen lds", f"wq{c}")
    vXS, vXE, vXO, vX16 = 12, 13, 14, 15
    def x_dma_setup():
        A(f"s_lshl_b32 s{sXB}, s{sW}, 10")
        A(f"s_mov_b32 s{sXA}, 0")
    def x_dma(j, sc1):
        A(f"s_mov_b32 m0, s{sXB}")
        A(f"s_add_u32 s{sXB}, s{sXB}, 4096")
        A.vmem(f"buffer_load_dwordx4 v{vXS}, {srd(rXIN)}, s{sXA} offen{' sc1' if sc1 else ''} lds", f"x{j//4}")
        A(f"s_add_u32 s{sXA}, s{sXA}, s{sXST}")

    A(f"s_cmp_ge_u32 s{sWG}, 256")
    A("s_cbranch_scc1 L_END")
    if cfg.prof: A(f"{clk} s[96:97]")
    A("s_load_dwordx16 s[8:23], s[0:1], 0")
    A("s_load_dwordx8 s[24:31], s[0:1], 64")
    A(f"s_getpc_b64 s[{sM0}:{sM0+1}]")
    A(f"s_and_b32 s{sM0}, s{sM0}, 0xffffffc0")
    A(f"v_and_b32 v4, 63, v0")
    A(f"v_lshlrev_b32 v{vL16}, 4, v4")
    A(f"v_lshrrev_b32 v5, 6, v0")
    A(f"s_and_b32 s{sX}, s{sWG}, 7")
    A(f"s_lshr_b32 s{sI}, s{sWG}, 3")
    A(f"v_readfirstlane_b32 s{sW}, v5")
    A(f"s_and_b32 s{sT0}, s{sI}, 1")
    A(f"s_lshl_b32 s{sT0}, s{sT0}, 15")
    A(f"v_lshlrev_b32 v6, 7, v0")
    A(f"v_add_u32 v6, s{sT0}, v6")
    A(f"v_min_u32 v6, L_CODE_END-L_CODE_START-64, v6")
    A(f"global_load_dword v248, v6, s[{sM0}:{sM0+1}]")
    A.vm.append("code")
    A(f"s_lshr_b32 s{sT0}, s{sI}, 3")
    A(f"s_lshl_b32 s{sTB}, s{sX}, 2")
    A(f"s_add_u32 s{sTB}, s{sTB}, s{sT0}")
    A(f"s_and_b32 s{sCB}, s{sI}, 7")
    w_dma_setup()
    A("v_and_b32 v4, 63, v0")
    A("v_lshrrev_b32 v5, 2, v4")
    A("v_lshrrev_b32 v6, 4, v4")
    A("v_and_b32 v4, 3, v4")
    A("v_xor_b32 v4, v4, v6")
    A("v_lshlrev_b32 v4, 4, v4")
    A(f"v_lshl_add_u32 v{vXS}, v5, 10, v4")
    A(f"s_lshl_b32 s{sT0}, s{sTB}, 16")
    A(f"s_lshl_b32 s{sT1}, s{sW}, 14")
    A(f"s_add_u32 s{sT0}, s{sT0}, s{sT1}")
    A(f"v_add_u32 v{vXS}, s{sT0}, v{vXS}")
    A(f"s_mov_b32 s{sXST}, 64")
    x_dma_setup()
    A(f"s_mov_b32 s{sLAYER}, 0")
    if cfg.prof: A(f"v_mov_b32 v{vPROF}, 0")
    A("s_waitcnt lgkmcnt(0)")
    if cfg.prof:
        A(f"v_writelane_b32 v{vPROF}, s96, 0")
        stamp_idx[0] = 1; cfg.stamps.append("entry")
    mk_srd(rWQ, P_WQ, 512 * 512 * 2)
    mk_srd(rXIN, P_X, 2048 * 512 * 2)
    A(f"s_cmp_eq_u32 s{sCB}, 0")
    A(f"s_cselect_b32 s{rWKV}, s{P_WK}, s{P_WV}")
    A(f"s_cselect_b32 s{rWKV+1}, s{P_WK+1}, s{P_WV+1}")
    A(f"s_mov_b32 s{rWKV+2}, {512*16*2}")
    A(f"s_mov_b32 s{rWKV+3}, 0x20000")
    for n in range(5): w_dma(0, n)
    for j in range(4): x_dma(j, False)
    A(f"s_load_dword s{sTAG}, s[{P_WS}:{P_WS+1}], {WS_EPOCH}")
    for n in range(5): w_dma(1, n)
    for j in range(4, 8): x_dma(j, False)
    A(f"s_lshl_b32 s{sG}, s{sX}, 5")
    A(f"s_add_u32 s{sG}, s{sG}, s{sI}")
    if cfg.t512:
        A(f"s_lshr_b32 s{sT0}, s{sI}, 3")
        A(f"s_lshr_b32 s{sBLK}, s{sX}, 1")
        A(f"s_lshl_b32 s{sBLK}, s{sBLK}, 2")
        A(f"s_add_u32 s{sBLK}, s{sBLK}, s{sT0}")
        A(f"s_and_b32 s{sSL}, s{sX}, 1")
        A(f"s_lshl_b32 s{sSL}, s{sSL}, 3")
        A(f"s_add_u32 s{sSL}, s{sSL}, s{sCB}")
    else:
        A(f"s_lshr_b32 s{sBLK}, s{sG}, 4")
        A(f"s_and_b32 s{sSL}, s{sG}, 15")
    A(f"s_lshl_b32 s{sID1}, s{sBLK}, 4")
    A(f"s_add_u32 s{sID1}, s{sID1}, s{sSL}")
    A(f"s_lshl_b32 s{sGW}, s{sWG}, 2")
    A(f"s_add_u32 s{sGW}, s{sGW}, s{sW}")
    A(f"s_and_b32 s{sGUL}, s{sW}, 1")
    A(f"s_lshl_b32 s{sGUL}, s{sGUL}, 13")
    A(f"s_lshr_b32 s{sT0}, s{sW}, 1")
    A(f"s_lshl_b32 s{sT0}, s{sT0}, 16")
    A(f"s_add_u32 s{sGUL}, s{sGUL}, s{sT0}")
    mk_srd(rL, P_WS, LSTRIDE, WS_L0)
    mk_srd(rWS, P_WS, WS_L0)
    mk_srd(rOUT, P_WS, 2048 * 512 * 2, WS_X2)
    vRAW = 224; vRA = 250; vRB = 251
    A("v_and_b32 v4, 63, v0")
    A("v_lshrrev_b32 v5, 3, v4")
    A("v_and_b32 v4, 7, v4")
    A("v_lshlrev_b32 v4, 4, v4")
    A(f"v_lshl_add_u32 v{vRB}, v5, 10, v4")
    A("v_mul_u32_u24 v5, 3584, v5")
    A(f"v_add_u32 v{vRA}, v5, v4")
    A(f"s_cmp_ge_u32 s{sWG}, 224")
    A("s_cbranch_scc1 L_RAW_WO")
    mk_srd(rR0, P_WG, 512 * 1792 * 2)
    mk_srd(rR1, P_WU, 512 * 1792 * 2)
    mk_srd(rR2, P_WD, 512 * 1792 * 2)
    A(f"s_and_b32 s{sT2}, s{sGW}, 31")
    A(f"s_mul_i32 s{sT2}, s{sT2}, {16*3584}")
    A(f"s_lshr_b32 s{sT1}, s{sGW}, 5")
    A(f"s_lshl_b32 s{sT1}, s{sT1}, 7")
    A(f"s_add_u32 s{sT2}, s{sT2}, s{sT1}")
    A(f"s_add_u32 s{sT3}, s{sT2}, {8*3584}")
    A(f"s_mov_b32 s{sHO}, s{sT2}")
    A(f"s_mov_b32 s{sHS}, s{sT3}")
    A(f"s_lshr_b32 s{sT4}, s{sGW}, 3")
    A(f"s_lshl_b32 s{sT4}, s{sT4}, 14")
    A(f"s_and_b32 s{sT1}, s{sGW}, 7")
    A(f"s_lshl_b32 s{sT1}, s{sT1}, 7")
    A(f"s_add_u32 s{sT4}, s{sT4}, s{sT1}")
    A(f"s_add_u32 s{sT5}, s{sT4}, 8192")
    A("s_branch L_RAW_DONE")
    A.label("L_RAW_WO")
    mk_srd(rR0, P_WO, 512 * 512 * 2)
    mk_srd(rR1, P_WO, 512 * 512 * 2)
    mk_srd(rR2, P_WO, 512 * 512 * 2)
    A(f"v_mov_b32 v{vRA}, v{vRB}")
    A(f"s_sub_u32 s{sT0}, s{sGW}, 896")
    A(f"s_lshr_b32 s{sT2}, s{sT0}, 3")
    A(f"s_lshl_b32 s{sT2}, s{sT2}, 15")
    A(f"s_and_b32 s{sT1}, s{sT0}, 7")
    A(f"s_lshl_b32 s{sT1}, s{sT1}, 7")
    A(f"s_add_u32 s{sT2}, s{sT2}, s{sT1}")
    A(f"s_add_u32 s{sT3}, s{sT2}, 8192")
    A(f"s_add_u32 s{sHO}, s{sT2}, 16384")
    A(f"s_add_u32 s{sHS}, s{sT2}, 24576")
    A(f"s_mov_b32 s{sT4}, s{sT2}")
    A(f"s_mov_b32 s{sT5}, s{sT2}")
    A.label("L_RAW_DONE")
    def raw_load(n):
        r, so, va = [(rR0, sT2, vRA), (rR0, sT3, vRA), (rR1, sHO, vRA), (rR1, sHS, vRA), (rR2, sT4, vRB), (rR2, sT5, vRB)][n]
        A.vmem(f"buffer_load_dwordx4 {vr(vRAW+4*n)}, v{va}, {srd(r)}, s{so} offen", "raw")

    aWQ, aWKV = 0, 128
    vAQ, vAKV, vG, vU, vONE = 16, 48, 56, 60, 64
    vXF = [128, 160]; vX16F = [192, 208]
    vTQ, vTKV = 8, 9
    vSTW, vSTR, vQST, vKVR, vKVS = 68, 69, 70, 71, 88
    def qkv_addrs(layer0):
        for r in range(4): A(f"v_mov_b32 v{vONE+r}, 0x3f803f80")
        A("v_and_b32 v4, 63, v0")
        A(f"s_lshr_b32 s{sT0}, s{sW}, 1")
        if layer0:
            A("v_and_b32 v5, 15, v4")
            A("v_lshrrev_b32 v6, 2, v5")
            A("v_lshrrev_b32 v7, 5, v4")
            A("v_xor_b32 v7, v7, v6")
            A("v_lshlrev_b32 v7, 4, v7")
            A("v_lshl_add_u32 v7, v5, 6, v7")
            A("v_bfe_u32 v8, v4, 4, 1")
            A("v_lshl_add_u32 v7, v8, 10, v7")
            A(f"s_lshl_b32 s{sT0}, s{sT0}, 11")
            A(f"v_add_u32 v{vXE}, s{sT0}, v7")
            A(f"v_xor_b32 v{vXO}, 32, v{vXE}")
            A("v_lshrrev_b32 v7, 4, v4")
            A("v_xor_b32 v7, v7, v6")
            A("v_lshlrev_b32 v7, 4, v7")
            A("v_lshl_add_u32 v7, v5, 6, v7")
            A(f"s_lshl_b32 s{sT0}, s{sW}, 10")
            A(f"v_add_u32 v{vX16}, s{sT0}, v7")
        else:
            A(f"s_lshl_b32 s{sT0}, s{sT0}, 11")
            A(f"v_add_u32 v{vXE}, s{sT0}, v{vL16}")
            A(f"v_add_u32 v{vXO}, 1024, v{vXE}")
            A("v_and_b32 v5, 15, v4")
            A("v_lshrrev_b32 v6, 5, v4")
            A("v_bfe_u32 v7, v4, 4, 1")
            A("v_lshlrev_b32 v5, 4, v5")
            A("v_lshl_add_u32 v5, v7, 9, v5")
            A("v_lshl_add_u32 v5, v6, 10, v5")
            A(f"s_and_b32 s{sT1}, s{sW}, 1")
            A(f"s_lshl_b32 s{sT1}, s{sT1}, 8")
            A(f"s_add_u32 s{sT0}, s{sT0}, s{sT1}")
            A(f"v_add_u32 v{vX16}, s{sT0}, v5")
        A("v_bfe_u32 v5, v4, 2, 2")
        A("v_lshrrev_b32 v6, 5, v4")
        A("v_lshl_add_u32 v6, v6, 3, v5")
        A("v_lshrrev_b32 v5, 1, v5")
        A(f"s_and_b32 s{sT0}, s{sW}, 1")
        A(f"v_xor_b32 v5, s{sT0}, v5")
        A("v_lshlrev_b32 v5, 6, v5")
        A("v_lshl_add_u32 v5, v6, 7, v5")
        A("v_bfe_u32 v6, v4, 4, 1")
        A("v_lshl_add_u32 v5, v6, 5, v5")
        A("v_and_b32 v6, 1, v4")
        A("v_bfe_u32 v7, v4, 1, 1")
        A("v_lshl_add_u32 v6, v6, 1, v7")
        A(f"v_lshl_add_u32 v{vTQ}, v6, 3, v5")
        A(f"v_add_u32 v{vTQ}, {LDS_WQ}, v{vTQ}")
        A("v_and_b32 v7, 3, v4")
        A(f"s_cmp_eq_u32 s{sCB}, 0")
        A(f"s_cselect_b64 vcc, -1, 0")
        A("v_cndmask_b32 v6, v6, v7, vcc")
        A("v_bfe_u32 v5, v4, 2, 2")
        A("v_lshrrev_b32 v7, 4, v4")
        A("v_lshl_add_u32 v5, v7, 3, v5")
        A("v_lshlrev_b32 v5, 5, v5")
        A(f"v_lshl_add_u32 v{vTKV}, v6, 3, v5")
        A(f"v_add_u32 v{vTKV}, {LDS_WKV}, v{vTKV}")
        A("v_and_b32 v5, 3, v4")
        A(f"v_cmp_eq_u32 s[{sM0}:{sM0+1}], 2, v5")
        A(f"v_cmp_eq_u32 s[{sM1}:{sM1+1}], 3, v5")
        A("v_lshrrev_b32 v6, 4, v4")
        A("v_bfe_u32 v7, v4, 2, 2")
        A(f"v_cmp_eq_u32 s[{sM2}:{sM2+1}], v6, v7")
        A("v_and_b32 v7, 15, v4")
        A(f"s_lshl_b32 s{sT0}, s{sW}, 7")
        A(f"s_add_u32 s{sT0}, s{sT0}, {LDS_ST}")
        A(f"v_lshl_add_u32 v{vSTW}, v7, 3, s{sT0}")
        kk = A.newlabel("kart"); kd_ = A.newlabel("kard")
        A("v_lshrrev_b32 v5, 1, v6")
        A(f"s_cmp_eq_u32 s{sCB}, 0")
        A(f"s_cbranch_scc1 {kk}")
        A(f"v_lshl_add_u32 v{vKVR}, v6, 5, s{sT0}")
        A("v_lshlrev_b32 v5, 8, v5")
        A(f"s_lshl_b32 s{sKO}, s{sTB}, 2")
        A(f"s_add_u32 s{sKO}, s{sKO}, s{sW}")
        A(f"s_lshl_b32 s{sKO}, s{sKO}, 9")
        A(f"s_add_u32 s{sKO}, s{sKO}, {hex(L_KV + 0x10000)}")
        A(f"s_branch {kd_}")
        A.label(kk)
        A(f"v_mov_b32 v{vKVR}, v{vSTW}")
        A("v_lshlrev_b32 v5, 9, v5")
        A(f"s_lshl_b32 s{sKO}, s{sTB}, 11")
        A(f"s_lshr_b32 s{sT0}, s{sW}, 1")
        A(f"s_lshl_b32 s{sT0}, s{sT0}, 10")
        A(f"s_add_u32 s{sKO}, s{sKO}, s{sT0}")
        A(f"s_and_b32 s{sT0}, s{sW}, 1")
        A(f"s_lshl_b32 s{sT0}, s{sT0}, 8")
        A(f"s_add_u32 s{sKO}, s{sKO}, s{sT0}")
        A(f"s_add_u32 s{sKO}, s{sKO}, {hex(L_KV)}")
        A.label(kd_)
        A(f"v_lshl_add_u32 v{vKVS}, v7, 4, v5")
        A("v_and_b32 v5, 31, v4")
        A(f"s_lshr_b32 s{sT0}, s{sW}, 1")
        A(f"s_lshl_b32 s{sT1}, s{sT0}, 8")
        A(f"s_add_u32 s{sT1}, s{sT1}, {LDS_ST}")
        A(f"v_lshl_add_u32 v{vSTR}, v5, 3, s{sT1}")
        A("v_lshrrev_b32 v7, 3, v5")
        A("v_lshlrev_b32 v7, 13, v7")
        A("v_and_b32 v5, 7, v4")
        A("v_lshl_add_u32 v7, v5, 4, v7")
        A("v_lshrrev_b32 v5, 5, v4")
        A(f"v_lshl_add_u32 v{vQST}, v5, 9, v7")
        A(f"s_lshl_b32 s{sQO}, s{sTB}, 16")
        A(f"s_lshl_b32 s{sT0}, s{sT0}, 15")
        A(f"s_add_u32 s{sQO}, s{sQO}, s{sT0}")
        A(f"s_lshl_b32 s{sT0}, s{sCB}, 10")
        A(f"s_add_u32 s{sQO}, s{sQO}, s{sT0}")
        A(f"s_and_b32 s{sT0}, s{sW}, 1")
        A(f"s_lshl_b32 s{sT0}, s{sT0}, 8")
        A(f"s_add_u32 s{sQO}, s{sQO}, s{sT0}")
    def tr_reads(c):
        L = []
        for s in range(8 * c, 8 * c + 8):
            L.append(lambda s=s: A.ds(f"ds_read_b64_tr_b16 {ar(aWQ+4*s, 2)}, v{vTQ} offset:{s*2048}", f"w{s}"))
            L.append(lambda s=s: A.ds(f"ds_read_b64_tr_b16 {ar(aWQ+4*s+2, 2)}, v{vTQ} offset:{s*2048+512}", f"w{s}"))
        for j in range(4 * c, 4 * c + 4):
            L.append(lambda j=j: A.ds(f"ds_read_b64_tr_b16 {ar(aWKV+4*j, 2)}, v{vTKV} offset:{j*1024}", f"u{j}"))
            L.append(lambda j=j: A.ds(f"ds_read_b64_tr_b16 {ar(aWKV+4*j+2, 2)}, v{vTKV} offset:{j*1024+128}", f"u{j}"))
        return L
    def x_reads(c):
        b = c % 2; L = []
        for s in range(8):
            L.append(lambda s=s: A.ds(f"ds_read_b128 {vr(vXF[b]+4*s)}, v{vXE if s % 2 == 0 else vXO} offset:{(4*c + s//2)*4096}", f"xf{c}_{s}"))
        for j in range(4):
            L.append(lambda j=j: A.ds(f"ds_read_b128 {vr(vX16F[b]+4*j)}, v{vX16} offset:{(4*c+j)*4096}", f"xg{c}_{j}"))
        return L
    def lds_guard():
        if len(A.lg) >= 14: A.wait_lg(A.lg[len(A.lg) - 13])
    def guarded(L): return [(lambda th=th: (lds_guard(), th())) for th in L]
    def mfmas(c, layer0):
        b = c % 2; L = []
        for s in range(8):
            k = 8 * c + s
            def q(s=s, k=k):
                A.wait_lg([f"xf{c}_{s}", f"w{k}"])
                A(f"v_mfma_f32_32x32x16_bf16 {vr(vAQ,16)}, {ar(aWQ+4*k)}, {vr(vXF[b]+4*s)}, {vr(vAQ,16) if k else 0}")
            L.append(q)
            if layer0:
                L.append(lambda k=k: A(f"v_mfma_f32_32x32x16_bf16 {vr(vCS,16)}, {ar(aWQ+4*k)}, {vr(vONE)}, {vr(vCS,16) if k else 0}"))
        for j in range(4):
            k = 4 * c + j
            def g(j=j, k=k):
                A.wait_lg([f"xg{c}_{j}", f"u{k}"])
                A(f"v_mfma_f32_16x16x32_bf16 {vr(vG)}, {vr(vX16F[b]+4*j)}, {vr(vX16F[b]+4*j)}, {vr(vG) if k else 0}")
            L.append(g)
            L.append(lambda j=j, k=k: A(f"v_mfma_f32_16x16x32_bf16 {vr(vU)}, {vr(vONE)}, {vr(vX16F[b]+4*j)}, {vr(vU) if k else 0}"))
        return L
    def kv_mfmas(c, layer0):
        b = c % 2
        sk = A.newlabel("nokv"); vt = A.newlabel("kvV")
        A(f"s_cmp_ge_u32 s{sCB}, 2")
        A(f"s_cbranch_scc1 {sk}")
        A(f"s_cmp_eq_u32 s{sCB}, 0")
        A(f"s_cbranch_scc0 {vt}")
        for j in range(4):
            k = 4 * c + j
            A(f"v_mfma_f32_16x16x32_bf16 {vr(vAKV)}, {ar(aWKV+4*k)}, {vr(vX16F[b]+4*j)}, {vr(vAKV) if k else 0}")
            if layer0: A(f"v_mfma_f32_16x16x32_bf16 {vr(vCKV)}, {ar(aWKV+4*k)}, {vr(vONE)}, {vr(vCKV) if k else 0}")
        A(f"s_branch {sk}")
        A.label(vt)
        for j in range(4):
            k = 4 * c + j
            A(f"v_mfma_f32_16x16x32_bf16 {vr(vAKV)}, {vr(vX16F[b]+4*j)}, {ar(aWKV+4*k)}, {vr(vAKV) if k else 0}")
            if layer0: A(f"v_mfma_f32_16x16x32_bf16 {vr(vCKV)}, {vr(vONE)}, {ar(aWKV+4*k)}, {vr(vCKV) if k else 0}")
        A.label(sk)
    def qkv_main(layer0, vq):
        def arrive(c):
            A.wait_vm([f"x{c}", f"wq{c}"]); A("s_barrier")
        def reads(c):
            if not layer0: return guarded(x_reads(c))
            t, x = tr_reads(c), x_reads(c)
            out = []
            for s in range(8): out += [t[2 * s], t[2 * s + 1], x[s]]
            for j in range(4): out += [t[16 + 2 * j], t[17 + 2 * j], x[8 + j]]
            return guarded(out)
        arrive(0)
        if layer0: A("s_waitcnt lgkmcnt(0)")
        for th in reads(0): th()
        for c in range(4):
            M = mfmas(c, layer0)
            V = list(vq[c])
            R = []
            half = (len(M) * 3) // 8
            for i_, th in enumerate(M):
                if i_ == half and c < 3:
                    while V: V.pop(0)()
                    arrive(c + 1); R = reads(c + 1)
                th()
                if V and i_ % 1 == 0: V.pop(0)()
                left = len(M) - i_
                for _ in range(-(-len(R) // left) if R else 0):
                    if R: R.pop(0)()
            while V: V.pop(0)()
            kv_mfmas(c, layer0)

    if cfg.raw == "early":
        for n in range(6): raw_load(n)
    if cfg.flag_touch:
        A("v_and_b32 v4, 7, v0")
        A("v_min_u32 v4, 4, v4")
        A("v_bfe_u32 v5, v0, 3, 1")
        A("v_and_b32 v6, 1, v4")
        A("v_cmp_eq_u32 vcc, 0, v4")
        A(f"v_mov_b32 v7, s{sG}")
        A(f"v_mov_b32 v8, s{sID1}")
        A("v_cndmask_b32 v6, v6, 1, vcc")
        A("v_cmp_eq_u32 vcc, 1, v6")
        A("v_lshlrev_b32 v4, 15, v4")
        A("v_lshl_add_u32 v4, v5, 24, v4")
        A("v_cndmask_b32 v7, v8, v7, vcc")
        A("v_lshl_add_u32 v4, v7, 7, v4")
        A(f"s_mov_b32 s{sT0}, {hex(WS_L0 + L_FLAG)}")
        A(f"s_mov_b32 s{rWS+2}, {hex(WS_L0 + 2 * LSTRIDE)}")
        A.vmem(f"buffer_load_dword v249, v4, {srd(rWS)}, s{sT0} offen", "ft")
        A(f"s_lshl_b32 s{sT0}, s{sWG}, 4")
        A(f"s_add_u32 s{sT0}, s{sT0}, {WS_WFLAG}")
        A("v_mov_b32 v4, 0")
        A.vmem(f"buffer_load_dword v249, v4, {srd(rWS)}, s{sT0} offen", "ft")
    qkv_addrs(True)
    stamp("start")
    vq = [[(lambda n=n: w_dma(2, n)) for n in range(5)] + [(lambda j=j: x_dma(j, False)) for j in range(8, 12)],
          [(lambda n=n: w_dma(3, n)) for n in range(5)] + [(lambda j=j: x_dma(j, False)) for j in range(12, 16)],
          [], []]
    rawl = [(lambda n=n: raw_load(n)) for n in range(6)]
    if cfg.raw == "c1": vq[1] += rawl
    if cfg.raw == "c2": vq[2] += rawl
    if cfg.raw == "c23": vq[2] += rawl[:3]; vq[3] += rawl[3:]
    qkv_main(True, vq)
    A(f"s_mul_i32 s{sTAG}, s{sTAG}, 1664525")
    A(f"s_add_u32 s{sTAG}, s{sTAG}, 1013904223")
    A(f"v_mov_b32 v{vTAG}, s{sTAG}")
    A("s_branch L_QKV_EPI")

    A.label("L_LAYER1")
    A.lg = []; A.vm = []
    stamp("qkv_w")
    x_dma_setup()
    sk = A.newlabel("s4")
    A(f"s_cmp_lg_u32 s{sW}, 0")
    A(f"s_cbranch_scc1 {sk}")
    if cfg.s4 == "smem": s_spin(rWS, sHO, 8, "s4")
    else:
        A("v_and_b32 v5, 7, v0")
        A("v_lshlrev_b32 v5, 7, v5")
        A(f"v_add_u32 v5, s{sHO}, v5")
        spin(5, rWS, "s4")
    A.label(sk)
    A("s_barrier")
    stamp("s4")
    for j in range(8): x_dma(j, True)
    qkv_main(False, [[(lambda j=j: x_dma(j, True)) for j in range(8, 12)], [(lambda j=j: x_dma(j, True)) for j in range(12, 16)], [], []])

    A.label("L_QKV_EPI")
    A.lg = []; A.vm = []
    stamp("qkv_mm")
    A("v_and_b32 v5, 3, v0")
    A("v_cmp_eq_u32 vcc, 1, v5")
    A(f"s_mov_b32 s{sT1}, {hex(f32(1.0/512))}")
    A("s_nop 4")
    A(f"v_cndmask_b32 v5, v{vG}, v{vG+1}, vcc")
    A(f"v_cndmask_b32 v5, v5, v{vG+2}, s[{sM0}:{sM0+1}]")
    A(f"v_cndmask_b32 v5, v5, v{vG+3}, s[{sM1}:{sM1+1}]")
    A(f"v_mul_f32 v10, s{sT1}, v{vU}")
    A(f"v_mul_f32 v5, s{sT1}, v5")
    A("v_fma_f32 v5, -v10, v10, v5")
    A("v_max_f32 v5, 0, v5")
    A(f"v_add_f32 v5, {hex(f32(1e-5))}, v5")
    A("v_rsq_f32 v11, v5")
    A(f"s_mov_b64 exec, s[{sM2}:{sM2+1}]")
    A.ds(f"ds_write_b64 v{vSTW}, v[10:11]")
    A("s_mov_b64 exec, -1")
    A.wait_lg()
    A("s_barrier")
    A.ds(f"ds_read_b64 v[10:11], v{vSTR}")
    sk = A.newlabel("nokvep"); vt = A.newlabel("kvepV"); st = A.newlabel("kvst")
    A(f"s_cmp_ge_u32 s{sCB}, 2")
    A(f"s_cbranch_scc1 {sk}")
    A(f"s_cmp_eq_u32 s{sCB}, 0")
    A(f"s_cbranch_scc0 {vt}")
    A(f"ds_read_b64 v[72:73], v{vKVR}")
    A("s_waitcnt lgkmcnt(0)")
    for r in range(4): A(f"v_fma_f32 v{vAKV+r}, -v72, v{vCKV+r}, v{vAKV+r}")
    for r in range(4): A(f"v_mul_f32 v{vAKV+r}, v73, v{vAKV+r}")
    A(f"s_branch {st}")
    A.label(vt)
    A(f"ds_read_b128 v[72:75], v{vKVR}")
    A(f"ds_read_b128 v[76:79], v{vKVR} offset:16")
    A("s_waitcnt lgkmcnt(0)")
    for r in range(4): A(f"v_fma_f32 v{vAKV+r}, -v{72+2*r}, v{vCKV+r}, v{vAKV+r}")
    for r in range(4): A(f"v_mul_f32 v{vAKV+r}, v{73+2*r}, v{vAKV+r}")
    A.label(st)
    A(f"v_cvt_pk_bf16_f32 v72, v{vAKV}, v{vAKV+1}")
    A(f"v_cvt_pk_bf16_f32 v73, v{vAKV+2}, v{vAKV+3}")
    A("v_mov_b32 v74, v72")
    A("v_mov_b32 v75, v73")
    A(f"s_mov_b32 s{sM0}, 0x0000ffff")
    A(f"s_mov_b32 s{sM0+1}, 0x0000ffff")
    A("v_permlane16_swap_b32 v72, v74")
    A("v_permlane16_swap_b32 v73, v75")
    A(f"s_mov_b64 exec, s[{sM0}:{sM0+1}]")
    A(f"buffer_store_dwordx4 v[72:75], v{vKVS}, {srd(rL)}, s{sKO} offen sc1")
    A("s_mov_b64 exec, -1")
    A.label(sk)
    A.wait_lg()
    QS = 0.25 * math.log2(math.e)
    A(f"v_mul_f32 v11, {hex(f32(QS))}, v11")
    for h in range(2):
        for r in range(8 * h, 8 * h + 8):
            A(f"v_fma_f32 v{vAQ+r}, -v10, v{vCS+r}, v{vAQ+r}")
        for r in range(8 * h, 8 * h + 8):
            A(f"v_mul_f32 v{vAQ+r}, v11, v{vAQ+r}")
            if r % 2 == 1: A(f"v_cvt_pk_bf16_f32 v{80+r//2}, v{vAQ+r-1}, v{vAQ+r}")
        A.vmem(f"buffer_store_dwordx4 {vr(80+4*h)}, v{vQST}, {srd(rL)}, s{sQO} offen offset:{128*h} sc1", "st")
    if cfg.raw == "post":
        sk = A.newlabel("norw")
        A(f"s_cmp_eq_u32 s{sLAYER}, 0")
        A(f"s_cbranch_scc0 {sk}")
        sv = list(A.vm)
        for n in range(6): raw_load(n)
        A.vm = sv
        A.label(sk)
    A("v_and_b32 v5, 11, v0")
    A("v_cmp_eq_u32 vcc, 0, v5")
    A("v_lshlrev_b32 v4, 4, v0")
    A(f"v_add_u32 v4, {LDS_ONES}, v4")
    for r in range(4): A(f"v_cndmask_b32 v{vONE+r}, 0, v{vONE+r}, vcc")
    A.ds(f"ds_write_b128 v4, {vr(vONE)}")
    A.ds(f"ds_write_b128 v4, {vr(vONE)} offset:4096")
    S = [16, 32]; O = [48, 160]; Q = [64, 68]; KB = [72, 76]; V0 = [80, 84]; V1 = [88, 92]
    vIDX = 96; vVA = 97; vVINC = 98; vOXR = 99
    vOXW = 120; vWFL = 121; vRES = 122; vTCH = 123; vJUNK = 124; vRROW = 125; vWFA = 126
    vOF = [128, 132]; vZ = 136; vZR = 152; vPA = 176
    A("v_and_b32 v4, 63, v0")
    A("v_and_b32 v5, 7, v4")
    A("v_bfe_u32 v6, v4, 3, 1")
    A("v_lshrrev_b32 v7, 4, v4")
    A("v_lshlrev_b32 v8, 12, v6")
    A("v_lshrrev_b32 v9, 1, v7")
    A("v_lshl_add_u32 v8, v9, 10, v8")
    A("v_and_b32 v9, 1, v7")
    A("v_lshl_add_u32 v8, v9, 9, v8")
    A("v_lshl_add_u32 v8, v5, 4, v8")
    A(f"s_lshr_b32 s{sT0}, s{sG}, 2")
    A(f"s_lshl_b32 s{sT0}, s{sT0}, 15")
    A(f"s_lshl_b32 s{sT1}, s{sW}, 13")
    A(f"s_add_u32 s{sT0}, s{sT0}, s{sT1}")
    A(f"s_and_b32 s{sT1}, s{sG}, 3")
    A(f"s_lshl_b32 s{sT1}, s{sT1}, 7")
    A(f"s_add_u32 s{sT0}, s{sT0}, s{sT1}")
    A(f"v_add_u32 v{vRES}, s{sT0}, v8")
    A("v_lshlrev_b32 v8, 10, v5")
    A("v_lshl_add_u32 v8, v6, 7, v8")
    A("v_lshl_add_u32 v8, v7, 4, v8")
    A(f"s_lshl_b32 s{sT0}, s{sG}, 13")
    A(f"s_lshl_b32 s{sT1}, s{sW}, 8")
    A(f"s_add_u32 s{sT0}, s{sT0}, s{sT1}")
    A(f"v_add_u32 v8, s{sT0}, v8")
    A(f"s_cmp_eq_u32 s{sLAYER}, 0")
    A("s_cselect_b64 vcc, -1, 0")
    A(f"s_cselect_b32 s{sXA}, 64, 2048")
    A(f"v_cndmask_b32 v{vRROW}, v{vRES}, v8, vcc")
    A("v_and_b32 v5, 15, v4")
    A("v_lshrrev_b32 v6, 5, v4")
    A("v_lshlrev_b32 v5, 4, v5")
    A("v_lshl_add_u32 v5, v6, 8, v5")
    A("v_bfe_u32 v6, v4, 4, 1")
    A("v_cmp_eq_u32 vcc, 0, v6")
    A(f"v_mov_b32 v7, {LDS_ONES}")
    A(f"v_mov_b32 v8, {LDS_V}")
    A("v_cndmask_b32 v7, v7, v8, vcc")
    A(f"v_add_u32 v{vVA}, v5, v7")
    A("v_mov_b32 v7, 0")
    A("v_mov_b32 v8, 0x2000")
    A(f"v_cndmask_b32 v{vVINC}, v7, v8, vcc")
    A(f"v_mov_b32 v{vIDX}, 0xdddd")
    A("v_bfe_u32 v5, v4, 4, 1")
    A("v_lshlrev_b32 v5, 9, v5")
    A("v_bfe_u32 v6, v4, 3, 1")
    A("v_lshl_add_u32 v5, v6, 8, v5")
    A("v_lshrrev_b32 v6, 5, v4")
    A("v_lshl_add_u32 v5, v6, 7, v5")
    A("v_and_b32 v6, 7, v4")
    A("v_lshl_add_u32 v5, v6, 4, v5")
    A(f"s_lshl_b32 s{sT0}, s{sW}, 10")
    A(f"s_add_u32 s{sT0}, s{sT0}, {LDS_OX}")
    A(f"v_add_u32 v{vOXW}, s{sT0}, v5")
    A("v_lshrrev_b32 v5, 4, v4")
    A("v_lshlrev_b32 v5, 7, v5")
    A("v_lshl_add_u32 v5, v6, 4, v5")
    A(f"v_add_u32 v{vOXR}, {LDS_OX}, v5")
    A("v_lshrrev_b32 v5, 2, v4")
    A("v_and_b32 v6, 3, v4")
    A("v_lshlrev_b32 v6, 2, v6")
    A(f"v_lshl_add_u32 v{vTCH}, v5, 7, v6")
    A(f"v_lshlrev_b32 v{vWFA}, 4, v0")
    A(f"v_add_u32 v{vWFA}, {WS_WFLAG}, v{vWFA}")
    if cfg.raw == "post":
        sk = A.newlabel("nodr")
        A("s_waitcnt vmcnt(6)")
        A(f"s_cmp_eq_u32 s{sLAYER}, 0")
        A(f"s_cbranch_scc1 {sk}")
        A("s_waitcnt vmcnt(0)")
        A.label(sk)
        A.vm = []
    else:
        A.wait_vm()
    publish(PH_QKV, sG, "st")
    stamp("qkv_pub")
    A(f"s_cmp_eq_u32 s{sLAYER}, 0")
    A("s_cbranch_scc0 L_NORELAY")
    A(f"s_lshl_b32 s{sT0}, s{sW}, 13")
    A(f"v_add_u32 v4, s{sT0}, v{vL16}")
    if cfg.raw == "post": A("s_waitcnt vmcnt(0)")
    for n in range(6):
        A(f"ds_write_b128 v4, {vr(vRAW+4*n)} offset:{n*1024}")
    A("v_and_b32 v5, 63, v0")
    A("v_bfe_u32 v6, v5, 2, 2")
    A("v_and_b32 v8, 1, v5")
    A("v_bfe_u32 v7, v5, 1, 1")
    A("v_lshl_add_u32 v8, v8, 1, v7")
    A(f"s_cmp_ge_u32 s{sWG}, 224")
    A("s_cbranch_scc1 L_RELAY_WO")
    A("v_lshrrev_b32 v7, 5, v5")
    A("v_lshl_add_u32 v6, v7, 3, v6")
    A("v_lshlrev_b32 v6, 7, v6")
    A("v_lshl_add_u32 v6, v8, 3, v6")
    A(f"v_add_u32 v6, s{sT0}, v6")
    A("v_bfe_u32 v7, v5, 4, 1")
    A("v_lshl_add_u32 v8, v7, 11, v6")
    A("v_lshl_add_u32 v9, v7, 5, v6")
    A("s_waitcnt lgkmcnt(0)")
    R0 = 192
    for q in range(4):
        A(f"ds_read_b64_tr_b16 {vr(R0+4*q,2)}, v8 offset:{q*32}")
        A(f"ds_read_b64_tr_b16 {vr(R0+2+4*q,2)}, v8 offset:{q*32+512}")
    for ct in range(2):
        A(f"ds_read_b64_tr_b16 {vr(R0+16+4*ct,2)}, v9 offset:{4096+ct*64}")
        A(f"ds_read_b64_tr_b16 {vr(R0+18+4*ct,2)}, v9 offset:{4096+ct*64+512}")
    A(f"s_lshr_b32 s{sT0}, s{sGW}, 5")
    A(f"s_lshl_b32 s{sT0}, s{sT0}, 17")
    A(f"s_and_b32 s{sT1}, s{sGW}, 31")
    A(f"s_lshl_b32 s{sT1}, s{sT1}, 10")
    A(f"s_add_u32 s{sT0}, s{sT0}, s{sT1}")
    A(f"s_add_u32 s{sT0}, s{sT0}, {hex(WS_WGUT)}")
    A(f"s_and_b32 s{sT1}, s{sGW}, 7")
    A(f"s_mul_i32 s{sT1}, s{sT1}, 112")
    A(f"s_lshr_b32 s{sT2}, s{sGW}, 3")
    A(f"s_add_u32 s{sT1}, s{sT1}, s{sT2}")
    A(f"s_lshl_b32 s{sT1}, s{sT1}, 11")
    A(f"s_add_u32 s{sT1}, s{sT1}, {hex(WS_WDT)}")
    A("s_waitcnt lgkmcnt(0)")
    for q in range(4):
        A(f"buffer_store_dwordx4 {vr(R0+4*q)}, v{vL16}, {srd(rWS)}, s{sT0} offen sc1")
        A(f"s_add_u32 s{sT0}, s{sT0}, 32768")
    for ct in range(2):
        A(f"buffer_store_dwordx4 {vr(R0+16+4*ct)}, v{vL16}, {srd(rWS)}, s{sT1} offen offset:{ct*1024} sc1")
    A("s_branch L_RELAY_PUB")
    A.label("L_RELAY_WO")
    A("v_lshrrev_b32 v7, 4, v5")
    A("v_lshl_add_u32 v6, v7, 3, v6")
    A("v_lshlrev_b32 v6, 7, v6")
    A("v_and_b32 v8, 3, v5")
    A("v_lshl_add_u32 v6, v8, 4, v6")
    A(f"v_add_u32 v6, s{sT0}, v6")
    A("s_waitcnt lgkmcnt(0)")
    for P in range(2):
        for b in range(2):
            q = 2 * P + b
            A(f"ds_read_b64_tr_b16 {vr(R0+4*q,2)}, v6 offset:{P*64+b*8}")
            A(f"ds_read_b64_tr_b16 {vr(R0+2+4*q,2)}, v6 offset:{P*64+b*8+512}")
    A(f"s_sub_u32 s{sT2}, s{sGW}, 896")
    A(f"s_lshr_b32 s{sT0}, s{sT2}, 3")
    A(f"s_lshl_b32 s{sT0}, s{sT0}, 13")
    A(f"s_bfe_u32 s{sT1}, s{sT2}, 0x20001")
    A(f"s_lshl_b32 s{sT1}, s{sT1}, 17")
    A(f"s_add_u32 s{sT0}, s{sT0}, s{sT1}")
    A(f"s_and_b32 s{sT1}, s{sT2}, 1")
    A(f"s_lshl_b32 s{sT1}, s{sT1}, 12")
    A(f"s_add_u32 s{sT0}, s{sT0}, s{sT1}")
    A(f"s_add_u32 s{sT0}, s{sT0}, {hex(WS_WOT)}")
    A("s_waitcnt lgkmcnt(0)")
    for q in range(4):
        A(f"buffer_store_dwordx4 {vr(R0+4*q)}, v{vL16}, {srd(rWS)}, s{sT0} offen offset:{q*1024} sc1")
    A.label("L_RELAY_PUB")
    shareGU = 4 if cfg.t512 else 2
    sTOUCH = 8
    for d, kind in ((8, "gu"), (9, "wd")):
        share = shareGU if kind == "gu" else 4
        A(f"s_lshr_b32 s{d}, s{sI}, {3 if share == 4 else 4}")
        A(f"s_lshl_b32 s{d}, s{d}, 2")
        A(f"s_add_u32 s{d}, s{d}, s{sW}")
        A(f"s_mul_i32 s{d}, s{d}, {7 * 32768 // (4 * share)}")
        A(f"s_mul_i32 s{sT1}, s{sSL if kind == 'gu' else sCB}, {7*32768}")
        A(f"s_add_u32 s{d}, s{d}, s{sT1}")
        A(f"s_add_u32 s{d}, s{d}, {hex(WS_WGUT if kind == 'gu' else WS_WDT)}")
    sGUB = 16; sWOB = 17; sWDB = 20
    A(f"s_mul_i32 s{sGUB}, s{sSL}, {7*32768}")
    A(f"s_lshl_b32 s{sT1}, s{sW}, 13")
    A(f"s_add_u32 s{sGUB}, s{sGUB}, s{sT1}")
    A(f"s_add_u32 s{sGUB}, s{sGUB}, {hex(WS_WGUT)}")
    A(f"s_lshl_b32 s{sWOB}, s{sW}, 17")
    A(f"s_add_u32 s{sWOB}, s{sWOB}, {hex(WS_WOT)}")
    A(f"s_lshl_b32 s{sWDB}, s{sCB}, 2")
    A(f"s_add_u32 s{sWDB}, s{sWDB}, s{sW}")
    A(f"s_mul_i32 s{sWDB}, s{sWDB}, {56*1024}")
    A(f"s_add_u32 s{sWDB}, s{sWDB}, {hex(WS_WDT)}")
    A.label("L_NORELAY")
    for r in range(16):
        A(f"v_mov_b32 v{O[0]+r}, 0")
        A(f"v_mov_b32 v{O[1]+r}, 0")
    stamp("relay")

    sk = A.newlabel("s1"); w1 = A.newlabel("s1q"); go = A.newlabel("s1go")
    A(f"s_lshl_b32 s{sT2}, s{sG}, 13")
    A(f"s_lshl_b32 s{sT1}, s{sW}, 10")
    A(f"s_add_u32 s{sT2}, s{sT2}, s{sT1}")
    A(f"s_cmp_ge_u32 s{sW}, 2")
    A(f"s_cbranch_scc1 {sk}")
    A("v_and_b32 v4, 63, v0")
    A(f"s_cmp_eq_u32 s{sW}, 1")
    A(f"s_cbranch_scc1 {w1}")
    A("v_lshrrev_b32 v5, 1, v4")
    A("v_lshlrev_b32 v5, 3, v5")
    A("v_and_b32 v4, 1, v4")
    A("v_add_u32 v5, v5, v4")
    A(f"s_branch {go}")
    A.label(w1)
    A("v_and_b32 v5, 7, v4")
    A(f"s_lshl_b32 s{sT0}, s{sTB}, 3")
    A(f"v_add_u32 v5, s{sT0}, v5")
    A.label(go)
    A("v_lshlrev_b32 v5, 7, v5")
    A(f"v_add_u32 v5, {hex(flagbase(PH_QKV))}, v5")
    poll(5, "s1")
    A.label(sk)
    A("s_waitcnt lgkmcnt(0)"); A.lg = []
    A("s_barrier")
    stamp("s1")
    A.vm = []
    chunks = [(0, 4), (4, 16), (16, 32), (32, 64)]
    def kv_dma_list(ci):
        t0, t1 = chunks[ci]
        n = (t1 - t0) // 4
        return [(ci, base + t0 * 1024, n, u) for base in (0, 0x10000) for u in range(n)]
    sKV = sT4
    def kv_pre(ent):
        ci, base, n, u = ent
        if u % 4 == 0:
            if ci < 2: A(f"s_mul_i32 s{sT5}, s{sW}, {n*1024}")
            src = sT5 if ci < 2 else (sT0 if ci == 2 else sT1)
            A(f"s_add_u32 m0, s{src}, {base + u*1024}")
            A(f"s_add_u32 s{sKV}, s{src}, {hex(L_KV + base + u*1024)}")
    def kv_dma(ent, pre=True):
        ci, base, n, u = ent
        if pre: kv_pre(ent)
        A.vmem(f"buffer_load_dwordx4 v{vL16}, {srd(rL)}, s{sKV} offen offset:{(u%4)*1024} sc1 lds", f"kv{ci}")
    A.vmem(f"buffer_load_dwordx4 {vr(Q[0])}, v{vL16}, {srd(rL)}, s{sT2} offen sc1", "q0")
    for e in kv_dma_list(0): kv_dma(e)
    for e in kv_dma_list(1): kv_dma(e)
    sWO = sT3
    def wo_base(part):
        A(f"s_add_u32 s{sWO}, s{sWOB}, {hex(part * 0x10000)}")
    def wo_load(f, part):
        A.vmem(f"buffer_load_dwordx4 {ar(4*f)}, v{vL16}, {srd(rWS)}, s{sWO} offen offset:{(f%4)*1024} sc1", f"wo{part}")
    A(f"s_lshl_b32 s{sT0}, s{sW}, 12")
    A(f"s_lshl_b32 s{sT1}, s{sW}, 13")
    kv_pre(kv_dma_list(2)[0])
    A(f"s_add_u32 s{sT2}, s{sT2}, 4096")
    A.wait_vm("kv0")
    A("s_barrier")
    sk = A.newlabel("wpub")
    A(f"s_cmp_lg_u32 s{sW}, 3")
    A(f"s_cbranch_scc1 {sk}")
    A(f"s_lshl_b32 s{sCNT}, s{sWG}, 4")
    A(f"s_add_u32 s{sCNT}, s{sCNT}, {WS_WFLAG}")
    A("v_mov_b32 v4, 0")
    A("s_mov_b64 exec, 1")
    A(f"buffer_store_dword v{vTAG}, v4, {srd(rWS)}, s{sCNT} offen sc1")
    A("s_mov_b64 exec, -1")
    A.label(sk)
    stamp("att_kv0")
    def rdK(n): A.ds(f"ds_read_b128 {vr(KB[n%2])}, v{vL16} offset:{(n%64)*1024}", f"K{n}")
    def rdV(n):
        A.ds(f"ds_read_b128 {vr(V0[n%2])}, v{vVA} offset:{(n%8)*1024}", f"V{n}")
        A.ds(f"ds_read_b128 {vr(V1[n%2])}, v{vVA} offset:{(n%8)*1024+512}", f"V{n}")
    def qk(n): A(f"v_mfma_f32_32x32x16_bf16 {vr(S[n%2],16)}, {vr(KB[n%2])}, {vr(Q[n//64])}, 0")
    rdK(0); rdK(1); rdV(0)
    A.wait_lg("K0")
    qk(0)
    def finalize_O(p):
        o = O[p]
        fb = f"L_FB{p}"; bk = f"L_FBR{p}"
        L = []
        L.append(lambda: A(f"v_add_u32 v4, {hex((0x100000000 - 0x21800000) & 0xffffffff)}, v{o+8}"))
        L.append(lambda: A(f"v_cmp_lt_u32 vcc, 0x3c000000, v4"))
        L.append(lambda: (A(f"s_cbranch_vccnz {fb}"), A.label(bk), A(f"v_rcp_f32 v4, v{o+8}")))
        for r in range(8):
            L.append(lambda r=r: A(f"v_mul_f32 v{o+r}, v4, v{o+r}"))
        for r in range(4):
            L.append(lambda r=r: A(f"v_cvt_pk_bf16_f32 v{8+r}, v{o+2*r}, v{o+2*r+1}"))
        L.append(lambda: A.ds(f"ds_write_b128 v{vOXW}, v[8:11] offset:{p*4096}", "oxw"))
        return L
    def oproj_mfma(f, part):
        jl, ctl = f // 8, f % 8
        Pp, b = ctl // 2, ctl % 2
        c = vr(vPA + 4 * ctl)
        if part == 0 and jl == 0: c = vr(vZ + 8 * (Pp % 2) + 4 * b)
        A.wait_lg(f"of{part}_{jl}")
        A(f"v_mfma_f32_16x16x32_bf16 {vr(vPA+4*ctl)}, {ar(4*f)}, {vr(vOF[jl%2])}, {c}")
    def of_read(part, jl): A.ds(f"ds_read_b128 {vr(vOF[jl%2])}, v{vOXR} offset:{part*4096 + jl*512}", f"of{part}_{jl}")
    sGU = sT4
    def gu_pre(tile, u):
        if u % 4: return
        if tile == 4:
            A(f"s_lshl_b32 m0, s{sW}, 13"); A(f"s_add_u32 m0, m0, {0x20000 + u * 1024}")
        else: A(f"s_add_u32 m0, s{sGUL}, {(tile % 5) * 16384 + u * 1024}")
        A(f"s_add_u32 s{sGU}, s{sGUB}, {tile * 32768 + u * 1024}")
    def gu_dma(tile, u, pre=True):
        if pre: gu_pre(tile, u)
        A.vmem(f"buffer_load_dwordx4 v{vL16}, {srd(rWS)}, s{sGU} offen offset:{(u%4)*1024} sc1 lds", f"gu{tile}")
    def gu_addr(j, s):
        if j == 4: return 0x20000 + s * 1024
        return (j % 5) * 16384 + (s // 16) * 0x10000 + (s % 16) * 1024

    postqk = {n: [] for n in range(128)}
    valu = {n: [] for n in range(128)}
    m16 = {n: [] for n in range(128)}
    pre_reads = {n: [] for n in range(128)}
    postsm1 = {n: [] for n in range(128)}
    first = [lambda: A.vmem(f"buffer_load_dword v{vWFL}, v{vWFA}, {srd(rWS)}, 0 offen sc1", "wfl"),
             lambda: A.vmem(f"buffer_load_dwordx4 {vr(Q[1])}, v{vL16}, {srd(rL)}, s{sT2} offen sc1", "q1")]
    dle = kv_dma_list(2) + kv_dma_list(3)
    dl = [(lambda e=e: kv_dma(e, False)) for e in dle]
    last = [lambda: A.vmem(f"buffer_load_dwordx4 {vr(vZR)}, v{vRROW}, {srd(rXIN)}, 0 offen sc1", "res"),
            lambda: A.vmem(f"buffer_load_dwordx4 {vr(vZR+4)}, v{vRROW}, {srd(rXIN)}, s{sXA} offen sc1", "res")]
    for k, th in enumerate(dl + last + first[::-1]): postqk[k // 2].append(th)
    for k, e in enumerate(dle):
        n_ = k // 2
        if e[3] % 4 == 0 and n_ > 0: postsm1[n_ - 1].append(lambda e=e: kv_pre(e))
    def bar(tags):
        def f():
            A.wait_vm(tags); A("s_barrier")
        return f
    for ci in (1, 2, 3):
        pre_reads[chunks[ci][0] - 2].append(bar(f"kv{ci}"))
    W0 = cfg.wo0
    pre_reads[W0].insert(0, lambda: (check_or_spin(vWFL, vWFA, rWS, "wfl", "wfl"), A("s_barrier")))
    postsm1[W0 - 1].append(lambda: wo_base(0))
    for f in range(64):
        postqk[W0 + f // 2].append(lambda f=f: wo_load(f, 0))
        if f % 4 == 3 and f < 63: postsm1[W0 + f // 2].append(lambda: A(f"s_add_u32 s{sWO}, s{sWO}, 4096"))
    def touch(m):
        A.vmem(f"buffer_load_dword v{vJUNK}, v{vTCH}, {srd(rWS)}, s{sT0} offen offset:{(m % 2) * 2048} sc1", "touch")
    tl = ([(8, m) for m in range(28 // shareGU)] if cfg.warm_gu else []) + ([(9, m) for m in range(7)] if cfg.warm_wd else [])
    for k_, (d, m) in enumerate(tl):
        n_ = cfg.warm0 + (k_ * cfg.warm_span) // len(tl)
        if m % 2 == 0: postsm1[n_ - 1].append(lambda d=d, m=m: A(f"s_add_u32 s{sT0}, s{d}, {m * 2048}"))
        postqk[n_].append(lambda m=m: touch(m))
    valu[55].append(lambda: A.wait_vm("res"))
    for k in range(16):
        valu[56 + k // 4].append(lambda k=k: unpack(vZ, vZR, k))
    fin0 = finalize_O(0)
    for k, th in enumerate(fin0[:-1]):
        valu[65 if k < 9 else 66].append(th)
    postqk[67].append(fin0[-1])
    def ox_bar():
        A.wait_lg("oxw"); A.wait_vm("wo0"); A("s_barrier")
    pre_reads[68].append(ox_bar)
    postqk[68].append(lambda: of_read(0, 0))
    postsm1[69].append(lambda: wo_base(1))
    for f in range(64):
        n = 69 + f // 2
        m16[n].append(lambda f=f: oproj_mfma(f, 0))
        postqk[n + 1].append(lambda f=f: wo_load(f, 1))
        if f % 4 == 3 and f < 63: postsm1[n + 1].append(lambda: A(f"s_add_u32 s{sWO}, s{sWO}, 4096"))
        if f % 8 == 0 and f // 8 + 1 < 8:
            postqk[n + 1].append(lambda f=f: of_read(0, f // 8 + 1))
    for j, (nb, n0) in enumerate(cfg.gu_att):
        assert nb >= 64 + 16 * (j + 1) and n0 >= nb
        if j == 0 or cfg.gu_att[j - 1][0] != nb: pre_reads[nb].append(lambda: A("s_barrier"))
        for u in range(8):
            postqk[n0 + u // 2].append(lambda j=j, u=u: gu_dma(j, u, False))
            if u % 4 == 0: postsm1[n0 + u // 2 - 1].append(lambda j=j, u=u: gu_pre(j, u))
    for n in range(128):
        cur, nxt = S[n % 2], S[(n + 1) % 2]
        e = lambda i: A(f"v_exp_f32 v{cur+i}, v{cur+i}")
        e(0); e(1); e(2)
        if n > 0:
            A(f"v_smfmac_f32_32x32x32_bf16 {vr(O[(n-1)//64],16)}, {vr(V1[(n-1)%2])}, {vr(nxt+8,8)}, v{vIDX}")
        A.wait_lg([f"K{n+1}", f"V{n}"])
        e(3); e(4); e(5)
        if n < 127:
            if n + 1 == 64: A.wait_vm("q1")
            qk(n + 1)
        for th in pre_reads[n]: th()
        if n + 2 < 128: rdK(n + 2)
        if n + 1 < 128: rdV(n + 1)
        for th in postqk[n]: th()
        e(6); e(7); e(8)
        if len(m16[n]) > 0: m16[n][0]()
        e(9); e(10)
        A(f"v_smfmac_f32_32x32x32_bf16 {vr(O[n//64],16)}, {vr(V0[n%2])}, {vr(cur,8)}, v{vIDX}")
        for th in postsm1[n]: th()
        e(11); e(12)
        for th in valu[n]: th()
        if n % 8 == 6 and n < 126:
            if n == 62:
                A(f"v_mul_u32_u24 v5, 7, v{vVINC}"); A(f"v_sub_u32 v{vVA}, v{vVA}, v5")
            else: A(f"v_add_u32 v{vVA}, v{vVA}, v{vVINC}")
        e(13)
        if len(m16[n]) > 1: m16[n][1]()
        e(14); e(15)
    A("s_nop 1")
    A(f"v_smfmac_f32_32x32x32_bf16 {vr(O[1],16)}, {vr(V1[1])}, {vr(S[1]+8,8)}, v{vIDX}")
    vY = 16
    A("v_and_b32 v12, 63, v0")
    A("v_bfe_u32 v5, v12, 3, 1")
    A(f"v_cmp_eq_u32 s[{sM0}:{sM0+1}], 0, v5")
    A("v_and_b32 v6, 7, v12")
    A(f"s_lshl_b32 s{sT0}, s{sW}, 3")
    A(f"s_add_u32 s{sT0}, s{sT0}, {LDS_LNX}")
    A(f"v_lshl_add_u32 v13, v6, 5, s{sT0}")
    A(f"v_lshlrev_b32 v6, 5, v6")
    A(f"v_add_u32 v14, {LDS_LNX}, v6")
    stamp("att_main")
    for th in finalize_O(1): th()
    A.wait_lg()
    A.wait_vm(["wo1"] + [f"gu{t}" for t in range(len(cfg.gu_att))])
    A("s_barrier")
    ngu_att = len(cfg.gu_att)
    gul = [(t, u) for t in range(ngu_att, 4) for u in range(8)]
    wdl = list(range(56))
    def wd_load():
        f = wdl.pop(0)
        if f == 0: A(f"s_mov_b32 s{sWDO}, s{sWDB}")
        elif f % 4 == 0: A(f"s_add_u32 s{sWDO}, s{sWDO}, 4096")
        A.vmem(f"buffer_load_dwordx4 {ar(4*f)}, v{vL16}, {srd(rWS)}, s{sWDO} offen offset:{(f%4)*1024} sc1", "wd")
    vOF8 = 208
    for jl in range(8): A.ds(f"ds_read_b128 {vr(vOF8+4*jl)}, v{vOXR} offset:{4096 + jl*512}", f"og{jl}")
    def stat_ops(t):
        L = []
        for k in range(4 * t, 4 * t + 4):
            L.append(lambda k=k: A(f"v_cndmask_b32 v{vY+k}, v{vPA+16+k}, v{vPA+k}, s[{sM0}:{sM0+1}]"))
        for k in range(4 * t, 4 * t + 4):
            if k == 0:
                L.append(lambda: A(f"v_mov_b32 v8, v{vY}")); L.append(lambda: A(f"v_mul_f32 v9, v{vY}, v{vY}"))
            else:
                L.append(lambda k=k: A(f"v_add_f32 v8, v8, v{vY+k}")); L.append(lambda k=k: A(f"v_fmac_f32 v9, v{vY+k}, v{vY+k}"))
        return L
    def pack_ops(t):
        return [(lambda k=k: A(f"v_cvt_pk_bf16_f32 v{vY+16+k}, v{vY+2*k}, v{vY+2*k+1}")) for k in (2 * t, 2 * t + 1)]
    pend = []; nm = 0; done_f = set()
    groups = [(0, 4, 1, 5), (2, 6), (3, 7)]
    for gi, grp in enumerate(groups):
        for jl in range(8):
            for ci, ctl in enumerate(grp):
                f = jl * 8 + ctl
                A.wait_lg(f"og{jl}")
                A(f"v_mfma_f32_16x16x32_bf16 {vr(vPA+4*ctl)}, {ar(4*f)}, {vr(vOF8+4*jl)}, {vr(vPA+4*ctl)}")
                done_f.add(f); nm += 1
                if nm % 5 == 2 and nm < cfg.op_vm * 5:
                    if gul: gu_dma(*gul.pop(0))
                    elif wdl[0] in done_f and wdl[0] != f: wd_load()
                elif pend and (jl > 1):
                    pend.pop(0)()
                    if pend: pend.pop(0)()
        for t in grp:
            if t < 4: pend += stat_ops(t) + (pack_ops(t) if gi < 2 else [])
    stamp("att_oproj")
    while pend: pend.pop(0)()
    A("s_nop 0")
    A(f"v_add_f32_dpp v8, v8, v8 row_ror:8 row_mask:0xf bank_mask:0xf")
    A(f"v_add_f32_dpp v9, v9, v9 row_ror:8 row_mask:0xf bank_mask:0xf")
    for sw in ("v_permlane16_swap_b32", "v_permlane32_swap_b32"):
        A("v_mov_b32 v10, v8")
        A("v_mov_b32 v11, v9")
        A("s_nop 0")
        A(f"{sw} v8, v10")
        A(f"{sw} v9, v11")
        A("v_add_f32 v8, v8, v10")
        A("v_add_f32 v9, v9, v11")
    A("s_mov_b64 exec, 0xff")
    A.ds("ds_write_b64 v13, v[8:9]")
    A("s_mov_b64 exec, -1")
    for th in pack_ops(3): th()
    A(f"s_mov_b32 s{sT1}, {hex(L_X1)}")
    A.vmem(f"buffer_store_dwordx4 {vr(vY+16)}, v{vRES}, {srd(rL)}, s{sT1} offen sc1", "st")
    A.vmem(f"buffer_store_dwordx4 {vr(vY+20)}, v{vRES}, {srd(rL)}, s{sT1} offen offset:2048 sc1", "st")
    A.wait_lg()
    A("s_barrier")
    A.ds("ds_read_b128 v[40:43], v14")
    A.ds("ds_read_b128 v[44:47], v14 offset:16")
    A(f"s_mov_b32 s{sT1}, {hex(f32(1.0/512))}")
    A.wait_lg()
    A("v_add_f32 v8, v40, v42")
    A("v_add_f32 v9, v41, v43")
    A("v_add_f32 v10, v44, v46")
    A("v_add_f32 v11, v45, v47")
    A("v_add_f32 v8, v8, v10")
    A("v_add_f32 v9, v9, v11")
    A(f"v_mul_f32 v8, s{sT1}, v8")
    A(f"v_mul_f32 v9, s{sT1}, v9")
    A("v_fma_f32 v9, -v8, v8, v9")
    A("v_max_f32 v9, 0, v9")
    A(f"v_add_f32 v9, {hex(f32(1e-5))}, v9")
    A("v_rsq_f32 v9, v9")
    A(f"s_mov_b32 s{sT1}, {hex(L_XN1)}")
    A("v_mul_f32 v8, v8, v9")
    for k in range(16):
        A(f"v_fma_f32 v{vY+k}, v{vY+k}, v9, -v8")
        if k % 2 == 1: A(f"v_cvt_pk_bf16_f32 v{40+k//2}, v{vY+k-1}, v{vY+k}")
        if k == 7: A.vmem(f"buffer_store_dwordx4 v[40:43], v{vRES}, {srd(rL)}, s{sT1} offen sc1", "st")
    A.vmem(f"buffer_store_dwordx4 v[44:47], v{vRES}, {srd(rL)}, s{sT1} offen offset:2048 sc1", "st")
    gul += [(4, u) for u in range(7)]
    for _ in range(cfg.ack_vm):
        if gul: gu_dma(*gul.pop(0))
        else: wd_load()
    vTKV_, aTK = 160, 224; ACC = [16, 32, 48, 64]; vWB = 80; NWB = 5; vHP = 120; vX1R = 128; vHA = 8
    vSB = [vL16, 9, 10]; vFE = 12; vFF = 13; vFR = 14
    def tk(s): return vr(vTKV_ + 4 * s) if s < 24 else ar(aTK + 4 * (s - 24))
    A("v_and_b32 v7, 3, v0")
    A(f"s_lshl_b32 s{sT0}, s{sBLK}, 2")
    A(f"s_add_u32 s{sT0}, s{sT0}, s{sW}")
    A(f"s_lshl_b32 s{sT1}, s{sT0}, 2")
    A(f"s_lshl_b32 s{sHO}, s{sT1}, 7")
    A(f"s_add_u32 s{sHO}, s{sHO}, {hex(flagbase(PH_ATT))}")
    A(f"v_add_u32 v{vSB[1]}, 0x10000, v{vL16}")
    A(f"v_add_u32 v{vSB[2]}, 0x20000, v{vL16}")
    A(f"s_mul_i32 s{sT2}, s{sT0}, 112")
    A(f"s_mul_i32 s{sT1}, s{sSL}, 7")
    A(f"s_add_u32 s{sT2}, s{sT2}, s{sT1}")
    A(f"s_lshl_b32 s{sT2}, s{sT2}, 10")
    A(f"s_add_u32 s{sT2}, s{sT2}, {hex(L_H)}")
    A(f"v_add_u32 v{vHA}, s{sT2}, v{vL16}")
    A(f"s_lshl_b32 s{sT0}, s{sT0}, 15")
    A(f"s_add_u32 s{sT0}, s{sT0}, {hex(L_XN1)}")
    A(f"s_lshr_b32 s{sT1}, s{sTB}, 1")
    A(f"s_lshl_b32 s{sT1}, s{sT1}, 2")
    A(f"s_add_u32 s{sT1}, s{sT1}, s{sW}")
    A(f"s_lshl_b32 s{sT1}, s{sT1}, 2")
    A(f"v_add_u32 v7, s{sT1}, v7")
    A("v_lshlrev_b32 v7, 7, v7")
    A(f"v_add_u32 v{vFE}, {hex(flagbase(PH_FF1E))}, v7")
    A(f"s_lshl_b32 s{sXB}, s{sT1}, 7")
    A(f"s_add_u32 s{sXB}, s{sXB}, {hex(flagbase(PH_FF1))}")
    publish(PH_ATT, sG, "st")
    stamp("att_pub")
    while gul: gu_dma(*gul.pop(0))
    gu_dma(4, 7)
    for _ in range(cfg.wd_s2): wd_load()
    assert ngu_att == 3

    s_spin(rL, sHO, 4, "s2")
    stamp("s2")
    def tk_load(s):
        if s % 4 == 0 and s: A(f"s_add_u32 s{sT0}, s{sT0}, 4096")
        A.vmem(f"buffer_load_dwordx4 {tk(s)}, v{vL16}, {srd(rL)}, s{sT0} offen offset:{(s%4)*1024} sc1", f"tk{s}")
    seq = [(j, s) for s in range(32) for j in range(3)] + [(j, s) for j in range(3, 7) for s in range(32)]
    acc_of = {0: 0, 1: 1, 2: 2, 3: 3, 4: 0, 5: 1, 6: 2}
    def w_read(k):
        off = gu_addr(*seq[k])
        A.ds(f"ds_read_b128 {vr(vWB+4*(k%NWB))}, v{vSB[off>>16]} offset:{off & 0xffff}", f"wb{k}")
    def h_epi(j):
        a = ACC[acc_of[j]]
        L = []
        for r in range(8):
            L.append(lambda r=r: A(f"v_max_f32 v{a+r}, 0, v{a+r}"))
            L.append(lambda r=r: A(f"v_mul_f32 v{a+r}, v{a+r}, v{a+8+r}"))
            if r % 2 == 1: L.append(lambda r=r: A(f"v_cvt_pk_bf16_f32 v{vHP+4*(j%2)+r//2}, v{a+r-1}, v{a+r}"))
        L.append(lambda: A.vmem(f"buffer_store_dwordx4 {vr(vHP+4*(j%2))}, v{vHA}, {srd(rL)}, s{sT1} offen offset:{(j%4)*1024} sc1", f"hst{j}"))
        return L
    extras = {k: [] for k in range(len(seq))}
    LOOK = NWB - 1
    k3 = 96
    NTK0 = cfg.tk0
    for s in range(NTK0): tk_load(s)
    for s in range(NTK0, 32): extras[(s - NTK0) * 2].append(lambda s=s: tk_load(s))
    ep = h_epi(0) + h_epi(1) + h_epi(2) + h_epi(3)
    for n, th in enumerate(ep): extras[k3 + 3 + (2 * n) // 3].append(th)
    for j in (4, 5):
        for n, th in enumerate(h_epi(j)): extras[k3 + 32 * (j - 2) + 3 + n // 2].append(th)
    g56 = [(5, u) for u in range(8)] + [(6, u) for u in range(8)]
    for n, e in enumerate(g56):
        extras[k3 + cfg.g56 * n].append(lambda e=e: gu_pre(*e))
        extras[k3 + 1 + cfg.g56 * n].insert(0, lambda e=e: gu_dma(*e, False))
    def x1_load():
        A(f"s_lshl_b32 s{sT0}, s{sTB}, 6")
        A(f"s_lshl_b32 s{sT2}, s{sCB}, 2")
        A(f"s_add_u32 s{sT0}, s{sT0}, s{sT2}")
        A(f"s_and_b32 s{sT2}, s{sW}, 1")
        A(f"s_lshl_b32 s{sT2}, s{sT2}, 1")
        A(f"s_add_u32 s{sT0}, s{sT0}, s{sT2}")
        A(f"s_lshr_b32 s{sT2}, s{sW}, 1")
        A(f"s_add_u32 s{sT0}, s{sT0}, s{sT2}")
        A(f"s_lshl_b32 s{sT0}, s{sT0}, 10")
        A(f"s_add_u32 s{sT0}, s{sT0}, {hex(L_X1)}")
        A(f"s_add_u32 s{sT2}, s{sT0}, 32768")
    split_later = [(x1_load, 82, 2)]
    extras[k3 + 50].append(lambda: A.vmem(f"buffer_load_dwordx4 {vr(vX1R)}, v{vL16}, {srd(rL)}, s{sT0} offen sc1", "x1"))
    extras[k3 + 53].append(lambda: A.vmem(f"buffer_load_dwordx4 {vr(vX1R+4)}, v{vL16}, {srd(rL)}, s{sT2} offen sc1", "x1"))
    slots = list(range((32 - NTK0) * 2 + 1, k3 - 2, 3))
    ntail = len(wdl) - len(slots)
    slots += [k3 + 58 + (n * (122 - 58)) // max(ntail, 1) for n in range(ntail)]
    nrem = len(wdl)
    assert len(slots) >= nrem, (len(slots), nrem)
    for n in range(nrem): extras[slots[n]].append(wd_load)
    def early_pub():
        A.wait_vm("hst4"); A("s_barrier"); flag_store(PH_FF1E, sID1)
    extras[k3 + cfg.epub].append(early_pub)
    extras[k3 + cfg.epoll].append(lambda: A.vmem(f"buffer_load_dword v{vFR}, v{vFE}, {srd(rL)}, 0 offen sc1", "fe"))
    def h_base():
        A(f"s_mul_i32 s{sHO}, s{sTB}, 224")
        A(f"s_mul_i32 s{sHS}, s{sW}, 28")
        A(f"s_add_u32 s{sHO}, s{sHO}, s{sHS}")
        A(f"s_lshl_b32 s{sHO}, s{sHO}, 10")
        A(f"s_add_u32 s{sHO}, s{sHO}, {hex(L_H)}")
    extras[k3 + 116].append(h_base)
    AC = [[16, 32], [48, 64]]; vHR = 156; NHR = 19; vRT = 232; vOA = 152; vRW = 153; vRR = 154; vRS = 136
    def ffn2_addrs():
        A(f"s_lshl_b32 s{sT0}, s{sW}, 11")
        A(f"v_add_u32 v{vRW}, s{sT0}, v{vL16}")
        A(f"s_lshl_b32 s{sT0}, s{sW}, 13")
        A(f"v_add_u32 v{vRR}, s{sT0}, v{vL16}")
        A(f"s_and_b32 s{sT3}, s{sW}, 1")
        A(f"s_lshl_b32 s{sT3}, s{sT3}, 1")
        A(f"s_lshr_b32 s{sT2}, s{sW}, 1")
        A(f"s_add_u32 s{sT3}, s{sT3}, s{sT2}")
        A(f"s_lshl_b32 s{sT2}, s{sCB}, 2")
        A(f"s_add_u32 s{sT3}, s{sT3}, s{sT2}")
        A(f"s_lshl_b32 s{sT0}, s{sTB}, 16")
        A(f"s_cmp_eq_u32 s{sLAYER}, 0")
        A("s_cselect_b64 vcc, -1, 0")
        A(f"s_cselect_b32 s{sT2}, 10, 5")
        A(f"s_lshl_b32 s{sT3}, s{sT3}, s{sT2}")
        A(f"s_add_u32 s{sT0}, s{sT0}, s{sT3}")
        A("v_and_b32 v6, 31, v0")
        A("v_bfe_u32 v7, v0, 5, 1")
        A("v_lshlrev_b32 v6, 10, v6")
        A("v_lshl_add_u32 v6, v7, 4, v6")
        A(f"v_cndmask_b32 v6, v6, v{vL16}, vcc")
        A(f"v_add_u32 v{vOA}, s{sT0}, v6")
    def split(fn, k0, per):
        B = A.L; A.L = []; fn(); ins = A.L; A.L = B
        units = []
        for ln in ins:
            if ln.startswith("s_cselect"): units[-1].append(ln)
            else: units.append([ln])
        for n in range(0, len(units), per):
            extras[k0 + n // per].append(lambda part=sum(units[n:n + per], []): A.L.extend(part))
    for e in split_later: split(*e)
    split(ffn2_addrs, 60, 2)
    split(w_dma_setup, 74, 2)
    for k_ in range(16): extras[k3 + cfg.epub + 1 + k_ // 2].append(lambda k_=k_: unpack(vRS + 8 * (k_ // 8), vX1R + 4 * (k_ // 8), k_ % 8))

    A(f"s_mov_b32 s{sT1}, 0")
    for k in range(LOOK): w_read(k)
    for k, (j, s) in enumerate(seq):
        if k == 0: A.wait_vm("tk0"); A.wait_lg("wb0")
        a = ACC[acc_of[j]]
        A(f"v_mfma_f32_32x32x16_bf16 {vr(a,16)}, {vr(vWB+4*(k%NWB))}, {tk(s)}, {vr(a,16) if s else 0}")
        if k + 1 < len(seq):
            A.wait_lg(f"wb{k+1}")
            if k + 1 < k3 and seq[k + 1][0] == 0: A.wait_vm(f"tk{seq[k+1][1]}")
        if k == k3: A("s_barrier")
        kn = k + LOOK
        if kn < len(seq):
            if kn == k3:
                A.wait_vm(["gu3", "gu4"]); A("s_barrier")
            if kn == k3 + 64:
                A.wait_vm(["gu5", "gu6"]); A("s_barrier")
            w_read(kn)
        if k in (2, k3 - 1, k3 + 63): fstamp(f"f1_k{k}")
        if k == k3 + 64: A(f"s_mov_b32 s{sT1}, 4096")
        for th in extras[k]: th()
    assert not wdl
    for th in h_epi(6): th()
    stamp("ffn1_mm")

    early = [7 * sl + j for sl in range(4) for j in range(5)]; late = [7 * sl + j for sl in range(4) for j in (5, 6)]
    ne = cfg.e1
    order = [(0, k) for k in early] + [(1, k) for k in early[:ne]] + [(0, k) for k in late] + [(1, k) for k in early[ne:]] + [(1, k) for k in late]
    nlate = 20 + ne; nA = 28 + ne
    def h_load(n):
        tt, k = order[n]
        A(f"s_add_u32 s{sHS}, s{sHO}, {tt*112*1024 + (k // 4) * 4096}")
        A.vmem(f"buffer_load_dwordx4 {vr(vHR+4*(n%NHR))}, v{vL16}, {srd(rL)}, s{sHS} offen offset:{(k%4)*1024} sc1", f"h{n}")
    NH0 = cfg.h0
    slow = A.newlabel("eslow"); join = A.newlabel("ejoin")
    A.wait_vm("fe")
    A(f"v_cmp_ne_u32 vcc, v{vFR}, v{vTAG}")
    A(f"s_cbranch_vccnz {slow}")
    sv = list(A.vm)
    for n in range(NH0): h_load(n)
    publish(PH_FF1, sID1, "hst6")
    A(f"s_branch {join}")
    A.label(slow)
    after = list(A.vm); A.vm = sv
    publish(PH_FF1, sID1, "hst6")
    spin(vFE, rL, "s3e", vFR); A.vm = []
    for n in range(NH0): h_load(n)
    assert A.vm == after
    A.label(join)
    stamp("ffn1_pub")
    def red_write(tt):
        L = []
        for own in range(4):
            a = AC[tt][own % 2] + 8 * (own // 2)
            for h in range(2):
                L.append(lambda a=a, own=own, h=h: A.ds(f"ds_write_b128 v{vRW}, {vr(a+4*h)} offset:{tt*32768 + own*8192 + h*1024}", f"rw{tt}"))
        return L
    def out_store(tt):
        A(f"s_mov_b32 s{sT2}, {tt*32768}")
        if cfg.out_plain:
            pl = A.newlabel("opl"); dn = A.newlabel("odn")
            A(f"s_cmp_eq_u32 s{sLAYER}, 0")
            A(f"s_cbranch_scc0 {pl}")
            A.vmem(f"buffer_store_dwordx4 {vr(92+4*tt)}, v{vOA}, {srd(rOUT)}, s{sT2} offen sc1", "ost")
            A(f"s_branch {dn}")
            A.label(pl)
            A(f"buffer_store_dwordx4 {vr(92+4*tt)}, v{vOA}, {srd(rOUT)}, s{sT2} offen")
            A.label(dn)
        else:
            A.vmem(f"buffer_store_dwordx4 {vr(92+4*tt)}, v{vOA}, {srd(rOUT)}, s{sT2} offen sc1", "ost")
    def red_final(tt):
        L = []
        for src in range(4):
            for h in range(2):
                d = (vRT + 8 * src + 4 * h) if src < 3 else (84 + 4 * h)
                L.append(lambda src=src, h=h, d=d: A.ds(f"ds_read_b128 {vr(d)}, v{vRR} offset:{tt*32768 + src*2048 + h*1024}", f"rr{tt}"))
        L.append(lambda: A.wait_lg(f"rr{tt}"))
        for r in range(8):
            L.append(lambda r=r: A(f"v_add_f32 v{vRT+r}, v{vRT+r}, v{vRT+8+r}"))
            L.append(lambda r=r: A(f"v_add_f32 v{84+r}, v{84+r}, v{vRT+16+r}"))
            L.append(lambda r=r: A(f"v_add_f32 v{vRT+r}, v{vRT+r}, v{vRS+8*tt+r}"))
        for r in range(8):
            L.append(lambda r=r: A(f"v_add_f32 v{vRT+r}, v{vRT+r}, v{84+r}"))
            if r % 2 == 1: L.append(lambda r=r: A(f"v_cvt_pk_bf16_f32 v{92+4*tt+r//2}, v{vRT+r-1}, v{vRT+r}"))
        L.append(lambda: out_store(tt))
        return L
    def red_last():
        dn = A.newlabel("rl")
        labs = [A.newlabel("rlw") for _ in range(4)]
        A("s_nop 9")
        A(f"s_cmp_eq_u32 s{sW}, 1"); A(f"s_cbranch_scc1 {labs[1]}")
        A(f"s_cmp_eq_u32 s{sW}, 2"); A(f"s_cbranch_scc1 {labs[2]}")
        A(f"s_cmp_eq_u32 s{sW}, 3"); A(f"s_cbranch_scc1 {labs[3]}")
        for wv in range(4):
            A.label(labs[wv])
            for own in [(wv + d) % 4 for d in (2, 1, 3)]:
                a = AC[1][own % 2] + 8 * (own // 2)
                for h in range(2):
                    A(f"ds_write_b128 v{vL16}, {vr(a+4*h)} offset:{32768 + own*8192 + ((wv - own) % 4)*2048 + h*1024}")
            a = AC[1][wv % 2] + 8 * (wv // 2)
            for r in range(8): A(f"v_add_f32 v{84+r}, v{a+r}, v{vRS+8+r}")
            if wv < 3: A(f"s_branch {dn}")
        A.label(dn)
        A.wait_lg(); A.wait_vm("wq0")
        A("s_barrier")
        for src in range(3):
            for h in range(2):
                A.ds(f"ds_read_b128 {vr(vRT + 8*src + 4*h)}, v{vRR} offset:{32768 + (src+1)*2048 + h*1024}", f"r{src}")
        for src in range(3):
            A.wait_lg(f"r{src}")
            for r in range(8):
                A(f"v_add_f32 v{84+r}, v{84+r}, v{vRT+8*src+r}")
                if src == 2 and r % 2 == 1: A(f"v_cvt_pk_bf16_f32 v{96+r//2}, v{84+r-1}, v{84+r}")
        out_store(1)
    ex2 = {n: [] for n in range(56)}
    for i_, th in enumerate(red_write(0)): ex2[nA + 1 + i_ // 3].append(th)
    def rbar():
        A.wait_lg("rw0"); A("s_barrier")
    ex2[nA + 5].append(rbar)
    rf = red_final(0)
    for i_, th in enumerate(rf): ex2[min(nA + 5 + i_ // 8, 55)].append(th)
    wl = [(c, n) for c in range(4) for n in range(5)]
    nxt_load = NH0
    ahead = cfg.h_ahead
    for n in range(56):
        tt, k = order[n]
        if n == 0: A.wait_vm("h0")
        for ct in range(2):
            A(f"v_mfma_f32_32x32x16_bf16 {vr(AC[tt][ct],16)}, {ar(4*(2*k+ct))}, {vr(vHR+4*(n%NHR))}, {vr(AC[tt][ct],16) if n not in (0, 20) else 0}")
            if ct == 1 and n < 55: A.wait_vm(f"h{n+1}")
            if nxt_load < 56 and nxt_load <= n + min(ahead, NHR - 1):
                if nxt_load == nlate:
                    if n < cfg.fchk: continue
                    s_spin(rL, sXB, 4, "s3f", issued=True)
                h_load(nxt_load); nxt_load += 1
            elif nxt_load == 56 and ct == 0 and len(wl) > cfg.w_tail:
                w_dma(*wl.pop(0))
        if n == cfg.fpos: s_issue(rL, sXB, 4)
        if n in (0, 19, nA - 1): fstamp(f"f2_n{n}")
        for th in ex2[n]: th()
    assert nxt_load == 56
    stamp("ffn2_mm")
    red_last()
    A(f"s_cmp_eq_u32 s{sLAYER}, 0")
    A("s_cbranch_scc0 L_FINISH")
    while wl: w_dma(*wl.pop(0))
    A(f"s_mov_b32 s{rXIN}, s{rOUT}")
    A(f"s_mov_b32 s{rXIN+1}, s{rOUT+1}")
    A(f"s_mov_b32 s{sXST}, 2048")
    A(f"s_lshl_b32 s{sT0}, s{sTB}, 16")
    A(f"s_lshr_b32 s{sT1}, s{sW}, 1")
    A(f"s_lshl_b32 s{sT1}, s{sT1}, 15")
    A(f"s_add_u32 s{sT0}, s{sT0}, s{sT1}")
    A(f"s_and_b32 s{sT1}, s{sW}, 1")
    A(f"s_lshl_b32 s{sT1}, s{sT1}, 10")
    A(f"s_add_u32 s{sT0}, s{sT0}, s{sT1}")
    A(f"v_add_u32 v{vXS}, s{sT0}, v{vL16}")
    qkv_addrs(False)
    def tr_block(c):
        t = tr_reads(c)
        for th in guarded(t[:16]): th()
        sk = A.newlabel("trkv")
        A(f"s_cmp_ge_u32 s{sCB}, 2")
        A(f"s_cbranch_scc1 {sk}")
        A.wait_lg()
        for th in t[16:]: th()
        A.label(sk)
        A.wait_lg()
    tr_block(0)
    assert A.vm_n("wq1") > A.vm_n("ost")
    publish(PH_FF2, sG, "ost")
    stamp("ffn2_pub")
    tr_block(1)
    A.wait_vm()
    A("s_barrier")
    tr_block(2)
    A(f"s_lshl_b32 s{sHO}, s{sTB}, 10")
    A(f"s_add_u32 s{sHO}, s{sHO}, {hex(WS_L0 + flagbase(PH_FF2))}")
    A(f"s_mov_b32 s{rWS+2}, {hex(WS_L0 + 2 * LSTRIDE)}")
    tr_block(3)
    A(f"s_mov_b32 s{sLAYER}, 1")
    A(f"s_add_u32 s{rL}, s{rL}, {hex(LSTRIDE)}")
    A(f"s_addc_u32 s{rL+1}, s{rL+1}, 0")
    A(f"s_mov_b32 s{rOUT}, s{P_OUT}")
    A(f"s_mov_b32 s{rOUT+1}, s{P_OUT+1}")
    A("s_branch L_LAYER1")

    A.label("L_FINISH")
    stamp("finish")
    if cfg.prof:
        A(f"s_lshl_b32 s{sT0}, s{sGW}, 8")
        A(f"s_add_u32 s{sT0}, s{sT0}, {hex(WS_PROF)}")
        A(f"v_lshrrev_b32 v4, 2, v{vL16}")
        A(f"buffer_store_dword v{vPROF}, v4, {srd(rWS)}, s{sT0} offen")
    A(f"s_cmp_lg_u32 s{sGW}, 0")
    A("s_cbranch_scc1 L_END")
    if cfg.dbg:
        A(f"v_readlane_b32 s{sT1}, v{vPROF}, 0")
        A("v_mov_b32 v5, 0")
        for n, j in enumerate(cfg.dbg):
            A(f"v_readlane_b32 s{sT0}, v{vPROF}, {j}")
            A("s_nop 3")
            A(f"s_sub_u32 s{sT0}, s{sT0}, s{sT1}")
            A(f"v_writelane_b32 v5, s{sT0}, {n}")
        mk_srd(rR0, P_DBG, 256)
        A(f"v_lshrrev_b32 v4, 2, v{vL16}")
        A(f"buffer_store_dword v5, v4, {srd(rR0)}, 0 offen")
    A("v_mov_b32 v4, 0")
    A("s_mov_b64 exec, 1")
    A(f"buffer_store_dword v{vTAG}, v4, {srd(rWS)}, 0 offen")
    A.label("L_END")
    A("s_endpgm")
    A.label("L_TIMEOUT")
    A("s_endpgm")

    for p in range(2):
        o = O[p]; q = Q[p]
        fS, fN, fK, fV0, fV1, fM, fA = 208, 224, 240, 244, 248, 252, 253
        A.label(f"L_FB{p}")
        A(f"v_mov_b32 v{fM}, 0xff800000")
        A(f"s_mov_b32 s{sT0}, {hex(L_KV)}")
        A.label(f"L_FB{p}_a")
        A(f"buffer_load_dwordx4 {vr(fK)}, v{vL16}, {srd(rL)}, s{sT0} offen sc1")
        A(f"s_add_u32 s{sT0}, s{sT0}, 1024")
        A("s_waitcnt vmcnt(0)")
        A(f"v_mfma_f32_32x32x16_bf16 {vr(fS,16)}, {vr(fK)}, {vr(q)}, 0")
        A("s_nop 7"); A("s_nop 7")
        for r in range(8): A(f"v_max3_f32 v{fM}, v{fS+2*r}, v{fS+2*r+1}, v{fM}")
        A(f"s_cmp_lg_u32 s{sT0}, {hex(L_KV + 0x10000)}")
        A(f"s_cbranch_scc1 L_FB{p}_a")
        A(f"v_mov_b32 v{fA}, v{fM}")
        A("s_nop 1")
        A(f"v_permlane32_swap_b32 v{fM}, v{fA}")
        A(f"v_max_f32 v{fM}, v{fM}, v{fA}")
        for r in range(16):
            A(f"v_sub_f32 v{fN+r}, 0, v{fM}")
            A(f"v_mov_b32 v{o+r}, 0")
        A("v_and_b32 v4, 63, v0")
        A("v_and_b32 v5, 27, v4")
        A("v_cmp_eq_u32 vcc, 16, v5")
        A("v_mov_b32 v6, 0x3f803f80")
        for r in range(8): A(f"v_cndmask_b32 v{fV0+r}, 0, v6, vcc")
        A("v_and_b32 v5, 15, v4")
        A("v_lshrrev_b32 v6, 5, v4")
        A("v_lshlrev_b32 v5, 4, v5")
        A("v_lshl_add_u32 v5, v6, 8, v5")
        A(f"v_add_u32 v5, 0x10000, v5")
        A(f"s_mov_b32 s{sT0}, {hex(L_KV)}")
        A(f"s_mov_b32 s{sM1}, 0x0000ffff")
        A(f"s_mov_b32 s{sM1+1}, 0x0000ffff")
        A.label(f"L_FB{p}_b")
        A(f"buffer_load_dwordx4 {vr(fK)}, v{vL16}, {srd(rL)}, s{sT0} offen sc1")
        A(f"s_mov_b64 exec, s[{sM1}:{sM1+1}]")
        A(f"buffer_load_dwordx4 {vr(fV0)}, v5, {srd(rL)}, s{sT0} offen sc1")
        A(f"buffer_load_dwordx4 {vr(fV1)}, v5, {srd(rL)}, s{sT0} offen offset:512 sc1")
        A("s_mov_b64 exec, -1")
        A(f"s_add_u32 s{sT0}, s{sT0}, 1024")
        A("s_waitcnt vmcnt(0)")
        A(f"v_mfma_f32_32x32x16_bf16 {vr(fS,16)}, {vr(fK)}, {vr(q)}, {vr(fN,16)}")
        A("s_nop 7"); A("s_nop 7")
        for r in range(16): A(f"v_exp_f32 v{fS+r}, v{fS+r}")
        A("s_nop 1")
        A(f"v_smfmac_f32_32x32x32_bf16 {vr(o,16)}, {vr(fV0)}, {vr(fS,8)}, v{vIDX}")
        A(f"v_smfmac_f32_32x32x32_bf16 {vr(o,16)}, {vr(fV1)}, {vr(fS+8,8)}, v{vIDX}")
        A(f"s_cmp_lg_u32 s{sT0}, {hex(L_KV + 0x10000)}")
        A(f"s_cbranch_scc1 L_FB{p}_b")
        A("s_nop 7"); A("s_nop 7")
        A(f"s_branch L_FBR{p}")
    A.label("L_CODE_END")
    lines, nfix, probs = check_hazards(A.L)
    for p_ in probs: print("HAZARD:", p_, file=sys.stderr)
    print(f"auto nops: {nfix}", file=sys.stderr)
    body = "\n".join(l if l.endswith(":") else "    " + l for l in lines)
    hdr = open("cdna_kernels/" + NAME + ".s.ref").read().split("; Override launch")[0]
    out = hdr + f"""; Persistent kernel: 256 workgroups (one per CU), flag-based hand-offs through d_ws. Generated by gen2.py.
; @launch grid=(256,1,1) block=(256,1,1) lds={LDS_TOTAL}
.amdgcn_target "amdgcn-amd-amdhsa--gfx950"
.text
.globl {NAME}_kernel
.p2align 8
.type {NAME}_kernel,@function
{NAME}_kernel:
L_CODE_START:
{body}
.section .rodata,"a"
.p2align 6
.amdhsa_kernel {NAME}_kernel
  .amdhsa_next_free_vgpr 512
  .amdhsa_next_free_sgpr 102
  .amdhsa_accum_offset 256
  .amdhsa_group_segment_fixed_size 0
  .amdhsa_kernarg_size 96
  .amdhsa_user_sgpr_count 2
  .amdhsa_user_sgpr_kernarg_segment_ptr 1
  .amdhsa_system_sgpr_workgroup_id_x 1
.end_amdhsa_kernel
"""
    return out

DEFAULTS = dict(prof=None, fine=False, dbg=None, t512=True, spin_limit=200000,
                warm_gu=True, warm_wd=True, warm0=22, warm_span=76, gu_att=[(96, 103), (96, 107), (112, 113)],
                op_vm=12, ack_vm=7, wd_s2=16, s4='vec', raw='c23', flag_touch=True, out_plain=True, g56=2, wo0=18, tk0=10, epub=102, epoll=124, e1=16, h0=12, h_ahead=14, fpos=14, fchk=22, w_tail=8)
if __name__ == "__main__":
    import argparse, json, ast
    ap = argparse.ArgumentParser()
    ap.add_argument("-o", default="cdna_kernels/" + NAME + ".s")
    ap.add_argument("opts", nargs="*")
    a = ap.parse_args()
    cfg = Cfg()
    for k, v in DEFAULTS.items(): setattr(cfg, k, v)
    for o in a.opts:
        k, v = o.split("=", 1)
        assert k in DEFAULTS, k
        try: v = ast.literal_eval(v)
        except Exception: pass
        setattr(cfg, k, v)
    s = gen(cfg)
    open(a.o, "w").write(s)
    json.dump(cfg.stamps, open(a.o + ".stamps.json", "w"))
```

```python
import sys, math, struct
sys.path.insert(0, "gen")
from asmlib import Asm, check_hazards

NAME = "interleave_layers__grouped_kv_mqa__glu_gated_reglu__prompt"

WS_EPOCH = 0
WS_WFLAG = 0x1000
WS_PROF = 0x10000
WS_WOT = 0x100000
WS_WDT = 0x200000
WS_WGUT = 0x400000
WS_X2 = 0x800000
WS_L0 = 0x1000000
LSTRIDE = 0x1000000
L_Q = 0
L_KV = 0x200000
L_FLAG = 0x280000
L_X1 = 0x300000
L_XN1 = 0x500000
L_H = 0x700000
PH_QKV, PH_ATT, PH_FF1, PH_FF2, PH_FF1E, PH_FF2E = 0, 1, 2, 3, 4, 5
def flagbase(ph): return L_FLAG + ph * 256 * 128

LDS_WQ = 0x10000
LDS_WKV = 0x20000
LDS_ST = 0x24000
LDS_KVX = 0x25000
LDS_VT = 0x26000
LDS_V = 0x10000
LDS_ONES = 0x20000
LDS_OX = 0x22000
LDS_LNX = 0x27f00
LDS_TOTAL = 160 * 1024

sWG = 2; sW = 3; sX = 4; sI = 5; sLAYER = 6; sTAG = 7
P_X, P_WQ, P_WK, P_WV, P_WO, P_BX, P_WG, P_WU, P_WD, P_OUT, P_DBG, P_WS = [8 + 2 * i for i in range(12)]
rXIN = 32; rWQ = 36; rWKV = 40; rL = 44; rWS = 48; rOUT = 52; rR0 = 56; rR1 = 60; rR2 = 64
sTB = 68; sCB = 69; sG = 70; sBLK = 71; sSL = 72; sID1 = 73; sXST = 74; sGW = 75
sT0 = 76; sT1 = 77; sT2 = 78; sT3 = 79; sT4 = 80; sT5 = 81
sCNT = 82; sGUL = 83
sM0 = 84; sM1 = 86; sM2 = 88
sWA = 90; sWB = 91
sTS = 92
sWDO = 94; sXA = 95; sXB = 99; sQO = 100; sKO = 101
sHO = 18; sHS = 19

def srd(n): return f"s[{n}:{n+3}]"
def vr(a, n=4): return f"v[{a}:{a+n-1}]"
def ar(a, n=4): return f"a[{a}:{a+n-1}]"
def f32(x): return struct.unpack("<I", struct.pack("<f", x))[0]

vL16 = 1; vTAG = 2; vPROF = 3; vCS = 100; vCKV = 104

class Cfg: pass

def gen(cfg):
    A = Asm()
    stamp_idx = [0]
    cfg.stamps = []
    clk = "s_memtime" if cfg.prof == "clk" else "s_memrealtime"
    def stamp(name):
        if not cfg.prof: return
        A(f"{clk} s[{sTS}:{sTS+1}]")
        A("s_waitcnt lgkmcnt(0)"); A.lg = []
        k = stamp_idx[0]; stamp_idx[0] += 1
        assert k < 32
        A(f"s_lshl_b32 s{sTS+1}, s{sLAYER}, 5")
        A(f"s_add_u32 s{sTS+1}, s{sTS+1}, {k}")
        A("s_mov_b32 s98, m0")
        A(f"s_mov_b32 m0, s{sTS+1}")
        A("s_nop 1")
        A(f"v_writelane_b32 v{vPROF}, s{sTS}, m0")
        A("s_mov_b32 m0, s98")
        cfg.stamps.append(name)
    def fstamp(name):
        if cfg.fine: stamp(name)

    def spin(vaddr, r, name, tmp=4):
        lp = A.newlabel("poll_" + name); dn = A.newlabel("polld_" + name)
        A(f"s_mov_b32 s{sCNT}, {cfg.spin_limit}")
        A.label(lp)
        A(f"buffer_load_dword v{tmp}, v{vaddr}, {srd(r)}, 0 offen sc1")
        A("s_waitcnt vmcnt(0)")
        A(f"v_cmp_ne_u32 vcc, v{tmp}, v{vTAG}")
        A(f"s_cbranch_vccz {dn}")
        A(f"s_sub_u32 s{sCNT}, s{sCNT}, 1")
        A(f"s_cmp_lg_u32 s{sCNT}, 0")
        A(f"s_cbranch_scc1 {lp}")
        A("s_branch L_TIMEOUT")
        A.label(dn)
    def poll(vaddr, name, tmp=4):
        spin(vaddr, rL, name, tmp); A.vm = []
    sPF = 56
    def s_issue(r, sbase, n):
        for q in range(n): A(f"s_buffer_load_dword s{sPF+q}, {srd(r)}, s{sbase} offset:{q*128} glc")
    def s_test(n):
        A("s_waitcnt lgkmcnt(0)"); A.lg = []
        for q in range(n): A(f"s_xor_b32 s{sPF+q}, s{sPF+q}, s{sTAG}")
        m = n
        while m > 1:
            for q in range(m // 2): A(f"s_or_b32 s{sPF+q}, s{sPF+q}, s{sPF+q+m//2}")
            m //= 2
    def s_spin(r, sbase, n, name, issued=False):
        lp = A.newlabel("sp_" + name); dn = A.newlabel("spd_" + name); ck = A.newlabel("spc_" + name)
        A(f"s_mov_b32 s{sCNT}, {cfg.spin_limit}")
        if issued: A(f"s_branch {ck}")
        A.label(lp)
        s_issue(r, sbase, n)
        A(f"s_sub_u32 s{sCNT}, s{sCNT}, 1")
        A("s_cbranch_scc1 L_TIMEOUT")
        A.label(ck)
        s_test(n)
        A(f"s_cbranch_scc1 {lp}")
    def check_or_spin(vres, vaddr, r, tag, name):
        ok = A.newlabel("ok_" + name)
        A.wait_vm(tag)
        A(f"v_cmp_ne_u32 vcc, v{vres}, v{vTAG}")
        A(f"s_cbranch_vccz {ok}")
        spin(vaddr, r, name, vres)
        A.label(ok)
    def flag_store(phase, sid, tmp=4):
        sk = A.newlabel("pub")
        A(f"s_cmp_lg_u32 s{sW}, 0")
        A(f"s_cbranch_scc1 {sk}")
        A(f"s_lshl_b32 s{sCNT}, s{sid}, 7")
        A(f"s_add_u32 s{sCNT}, s{sCNT}, {hex(flagbase(phase))}")
        A(f"v_mov_b32 v{tmp}, 0")
        A("s_mov_b64 exec, 1")
        A(f"buffer_store_dword v{vTAG}, v{tmp}, {srd(rL)}, s{sCNT} offen sc1")
        A("s_mov_b64 exec, -1")
        A.label(sk)
    def publish(phase, sid, tags, tmp=4):
        A.wait_vm(tags)
        A("s_barrier")
        flag_store(phase, sid, tmp)
    def unpack(dst, src, k):
        if k % 2 == 0: A(f"v_lshlrev_b32 v{dst+k}, 16, v{src+k//2}")
        else: A(f"v_and_b32 v{dst+k}, 0xffff0000, v{src+k//2}")
    def mk_srd(r, p, size, add=0):
        if add:
            A(f"s_add_u32 s{r}, s{p}, {hex(add)}")
            A(f"s_addc_u32 s{r+1}, s{p+1}, 0")
        else:
            A(f"s_mov_b32 s{r}, s{p}")
            A(f"s_mov_b32 s{r+1}, s{p+1}")
        A(f"s_mov_b32 s{r+2}, {hex(size)}")
        A(f"s_mov_b32 s{r+3}, 0x20000")

    vWSe, vWSo = 11, 155
    def w_dma_setup():
        A("v_and_b32 v4, 63, v0")
        A("v_lshrrev_b32 v5, 3, v4")
        A("v_bfe_u32 v6, v4, 4, 1")
        A("v_lshlrev_b32 v6, 1, v6")
        A("v_and_b32 v4, 7, v4")
        A("v_xor_b32 v4, v4, v6")
        A("v_lshlrev_b32 v4, 4, v4")
        A(f"v_lshl_add_u32 v{vWSe}, v5, 10, v4")
        A(f"v_xor_b32 v{vWSo}, 64, v{vWSe}")
        A(f"s_lshl_b32 s{sWA}, s{sW}, 15")
        A(f"s_lshl_b32 s{sWB}, s{sCB}, 7")
        A(f"s_add_u32 s{sWA}, s{sWA}, s{sWB}")
        A(f"s_lshl_b32 s{sWB}, s{sW}, 12")
        A(f"s_add_u32 s{sWB}, s{sWB}, {LDS_WQ}")
    def w_dma(c, n):
        if n < 4:
            A(f"s_mov_b32 m0, s{sWB}")
            A(f"s_add_u32 s{sWB}, s{sWB}, {1024 if n < 3 else 16384 - 3072}")
            A.vmem(f"buffer_load_dwordx4 v{vWSe if n % 2 == 0 else vWSo}, {srd(rWQ)}, s{sWA} offen lds", f"wq{c}")
            A(f"s_add_u32 s{sWA}, s{sWA}, {8192 if n < 3 else 131072 - 3 * 8192}")
        else:
            A(f"s_lshl_b32 s{sCNT}, s{sW}, 10")
            A(f"s_add_u32 m0, s{sCNT}, {LDS_WKV + c*4096}")
            A(f"s_add_u32 s{sCNT}, s{sCNT}, {c*4096}")
            A.vmem(f"buffer_load_dwordx4 v{vL16}, {srd(rWKV)}, s{sCNT} offen lds", f"wq{c}")
    vXS = 12
    def x_dma_setup():
        A(f"s_and_b32 s{sXB}, s{sW}, 1")
        A(f"s_lshl_b32 s{sXB}, s{sXB}, 14")
        A(f"s_lshr_b32 s{sXA}, s{sW}, 1")
        A(f"s_lshl_b32 s{sXA}, s{sXA}, 12")
        A(f"s_add_u32 s{sXB}, s{sXB}, s{sXA}")
    def x_dma(ch, u, layer0):
        st, c = ch // 2, ch % 2
        A(f"s_add_u32 m0, s{sXB}, {st*32768 + (8*c + u)*1024}")
        A(f"s_mov_b32 s{sXA}, {st*32768 + (8*c + u)*(64 if layer0 else 2048)}")
        A.vmem(f"buffer_load_dwordx4 v{vXS}, {srd(rXIN)}, s{sXA} offen{'' if layer0 else ' sc1'} lds", f"x{ch}")

    A(f"s_cmp_ge_u32 s{sWG}, 256")
    A("s_cbranch_scc1 L_END")
    if cfg.prof: A(f"{clk} s[96:97]")
    A("s_load_dwordx16 s[8:23], s[0:1], 0")
    A("s_load_dwordx8 s[24:31], s[0:1], 64")
    A(f"s_getpc_b64 s[{sM0}:{sM0+1}]")
    A(f"s_and_b32 s{sM0}, s{sM0}, 0xffffffc0")
    A(f"v_and_b32 v4, 63, v0")
    A(f"v_lshlrev_b32 v{vL16}, 4, v4")
    A(f"v_lshrrev_b32 v5, 6, v0")
    A(f"s_and_b32 s{sX}, s{sWG}, 7")
    A(f"s_lshr_b32 s{sI}, s{sWG}, 3")
    A(f"v_readfirstlane_b32 s{sW}, v5")
    A(f"s_and_b32 s{sT0}, s{sI}, 1")
    A(f"s_lshl_b32 s{sT0}, s{sT0}, 15")
    A(f"v_lshlrev_b32 v6, 7, v0")
    A(f"v_add_u32 v6, s{sT0}, v6")
    A(f"v_min_u32 v6, L_CODE_END-L_CODE_START-64, v6")
    A(f"global_load_dword v248, v6, s[{sM0}:{sM0+1}]")
    A.vm.append("code")
    A(f"s_lshr_b32 s{sT0}, s{sI}, 3")
    A(f"s_lshl_b32 s{sTB}, s{sX}, 2")
    A(f"s_add_u32 s{sTB}, s{sTB}, s{sT0}")
    A(f"s_and_b32 s{sCB}, s{sI}, 7")
    w_dma_setup()
    A(f"s_mov_b32 s{sLAYER}, 0")
    if cfg.prof: A(f"v_mov_b32 v{vPROF}, 0")
    A("s_waitcnt lgkmcnt(0)")
    if cfg.prof:
        A(f"v_writelane_b32 v{vPROF}, s96, 0")
        stamp_idx[0] = 1; cfg.stamps.append("entry")
    mk_srd(rWQ, P_WQ, 512 * 512 * 2)
    mk_srd(rXIN, P_X, 2048 * 512 * 2)
    A(f"s_cmp_eq_u32 s{sCB}, 0")
    A(f"s_cselect_b32 s{rWKV}, s{P_WK}, s{P_WV}")
    A(f"s_cselect_b32 s{rWKV+1}, s{P_WK+1}, s{P_WV+1}")
    A(f"s_mov_b32 s{rWKV+2}, {512*16*2}")
    A(f"s_mov_b32 s{rWKV+3}, 0x20000")
    if cfg.touch0:
        A(f"s_lshl_b32 s{sT0}, s{sI}, 2")
        A(f"s_add_u32 s{sT0}, s{sT0}, s{sW}")
        A(f"v_lshlrev_b32 v4, 3, v{vL16}")
        A(f"s_lshl_b32 s{sT1}, s{sT0}, 12")
        A("v_and_b32 v5, 0xfff, v4")
        A.vmem(f"buffer_load_dword v249, v5, {srd(rWQ)}, s{sT1} offen", "t0")
        A(f"s_lshl_b32 s{sT1}, s{sT0}, 11")
        A(f"s_lshl_b32 s{sT0}, s{sX}, 18")
        A(f"s_add_u32 s{sT1}, s{sT1}, s{sT0}")
        A("v_and_b32 v5, 0x7ff, v4")
        A.vmem(f"buffer_load_dword v249, v5, {srd(rXIN)}, s{sT1} offen", "t0")
        A(f"s_and_b32 s{sT1}, s{sW}, 1")
        A(f"s_lshl_b32 s{sT1}, s{sT1}, 13")
        A.vmem(f"buffer_load_dword v249, v4, {srd(rWKV)}, s{sT1} offen", "t0")
    w_dma(0, 0); w_dma(0, 1)
    A(f"s_load_dword s{sTAG}, s[{P_WS}:{P_WS+1}], {WS_EPOCH}")
    main_L, main_vm = A.L, A.vm
    A.L, A.vm = [], []
    A("v_and_b32 v4, 63, v0")
    A("v_lshrrev_b32 v5, 2, v4")
    A("v_lshrrev_b32 v6, 4, v4")
    A("v_sub_u32 v6, 0, v6")
    A("v_xor_b32 v4, v4, v6")
    A("v_and_b32 v4, 3, v4")
    A("v_lshlrev_b32 v4, 4, v4")
    A(f"v_lshl_add_u32 v{vXS}, v5, 10, v4")
    A(f"s_lshl_b32 s{sT0}, s{sTB}, 16")
    A(f"s_and_b32 s{sT1}, s{sW}, 1")
    A(f"s_lshl_b32 s{sT1}, s{sT1}, 14")
    A(f"s_add_u32 s{sT0}, s{sT0}, s{sT1}")
    A(f"s_lshr_b32 s{sT1}, s{sW}, 1")
    A(f"s_lshl_b32 s{sT1}, s{sT1}, 8")
    A(f"s_add_u32 s{sT0}, s{sT0}, s{sT1}")
    A(f"v_add_u32 v{vXS}, s{sT0}, v{vXS}")
    x_dma_setup()
    A(f"s_lshl_b32 s{sG}, s{sX}, 5")
    A(f"s_add_u32 s{sG}, s{sG}, s{sI}")
    if cfg.t512:
        A(f"s_lshr_b32 s{sT0}, s{sI}, 3")
        A(f"s_lshr_b32 s{sBLK}, s{sX}, 1")
        A(f"s_lshl_b32 s{sBLK}, s{sBLK}, 2")
        A(f"s_add_u32 s{sBLK}, s{sBLK}, s{sT0}")
        A(f"s_and_b32 s{sSL}, s{sX}, 1")
        A(f"s_lshl_b32 s{sSL}, s{sSL}, 3")
        A(f"s_add_u32 s{sSL}, s{sSL}, s{sCB}")
    else:
        A(f"s_lshr_b32 s{sBLK}, s{sG}, 4")
        A(f"s_and_b32 s{sSL}, s{sG}, 15")
    A(f"s_lshl_b32 s{sID1}, s{sBLK}, 4")
    A(f"s_add_u32 s{sID1}, s{sID1}, s{sSL}")
    A(f"s_lshl_b32 s{sGW}, s{sWG}, 2")
    A(f"s_add_u32 s{sGW}, s{sGW}, s{sW}")
    A(f"s_and_b32 s{sGUL}, s{sW}, 1")
    A(f"s_lshl_b32 s{sGUL}, s{sGUL}, 13")
    A(f"s_lshr_b32 s{sT0}, s{sW}, 1")
    A(f"s_lshl_b32 s{sT0}, s{sT0}, 16")
    A(f"s_add_u32 s{sGUL}, s{sGUL}, s{sT0}")
    mk_srd(rL, P_WS, LSTRIDE, WS_L0)
    mk_srd(rWS, P_WS, WS_L0)
    mk_srd(rOUT, P_WS, 2048 * 512 * 2, WS_X2)
    vRAW = 224; vRA = 250; vRB = 251
    A("v_and_b32 v4, 63, v0")
    A("v_lshrrev_b32 v5, 3, v4")
    A("v_and_b32 v4, 7, v4")
    A("v_lshlrev_b32 v4, 4, v4")
    A(f"v_lshl_add_u32 v{vRB}, v5, 10, v4")
    A("v_mul_u32_u24 v5, 3584, v5")
    A(f"v_add_u32 v{vRA}, v5, v4")
    A(f"s_cmp_ge_u32 s{sWG}, 224")
    A("s_cbranch_scc1 L_RAW_WO")
    mk_srd(rR0, P_WG, 512 * 1792 * 2)
    mk_srd(rR1, P_WU, 512 * 1792 * 2)
    mk_srd(rR2, P_WD, 512 * 1792 * 2)
    A(f"s_mul_i32 s{sT0}, s{sGW}, 2341")
    A(f"s_lshr_b32 s{sT0}, s{sT0}, 16")
    A(f"s_mul_i32 s{sT1}, s{sT0}, 28")
    A(f"s_sub_u32 s{sT1}, s{sGW}, s{sT1}")
    A(f"s_mul_i32 s{sT2}, s{sT0}, {16*3584}")
    A(f"s_lshl_b32 s{sT1}, s{sT1}, 7")
    A(f"s_add_u32 s{sT2}, s{sT2}, s{sT1}")
    A(f"s_add_u32 s{sT3}, s{sT2}, {8*3584}")
    A(f"s_mov_b32 s{sHO}, s{sT2}")
    A(f"s_mov_b32 s{sHS}, s{sT3}")
    A(f"s_lshr_b32 s{sT4}, s{sGW}, 3")
    A(f"s_lshl_b32 s{sT4}, s{sT4}, 14")
    A(f"s_and_b32 s{sT1}, s{sGW}, 7")
    A(f"s_lshl_b32 s{sT1}, s{sT1}, 7")
    A(f"s_add_u32 s{sT4}, s{sT4}, s{sT1}")
    A(f"s_add_u32 s{sT5}, s{sT4}, 8192")
    A("s_branch L_RAW_DONE")
    A.label("L_RAW_WO")
    mk_srd(rR0, P_WO, 512 * 512 * 2)
    mk_srd(rR1, P_WO, 512 * 512 * 2)
    mk_srd(rR2, P_WO, 512 * 512 * 2)
    A(f"v_mov_b32 v{vRA}, v{vRB}")
    A(f"s_sub_u32 s{sT0}, s{sGW}, 896")
    A(f"s_lshr_b32 s{sT2}, s{sT0}, 3")
    A(f"s_lshl_b32 s{sT2}, s{sT2}, 15")
    A(f"s_and_b32 s{sT1}, s{sT0}, 7")
    A(f"s_lshl_b32 s{sT1}, s{sT1}, 7")
    A(f"s_add_u32 s{sT2}, s{sT2}, s{sT1}")
    A(f"s_add_u32 s{sT3}, s{sT2}, 8192")
    A(f"s_add_u32 s{sHO}, s{sT2}, 16384")
    A(f"s_add_u32 s{sHS}, s{sT2}, 24576")
    A(f"s_mov_b32 s{sT4}, s{sT2}")
    A(f"s_mov_b32 s{sT5}, s{sT2}")
    A.label("L_RAW_DONE")
    def raw_load(n):
        r, so, va = [(rR0, sT2, vRA), (rR0, sT3, vRA), (rR1, sHO, vRA), (rR1, sHS, vRA), (rR2, sT4, vRB), (rR2, sT5, vRB)][n]
        A.vmem(f"buffer_load_dwordx4 {vr(vRAW+4*n)}, v{va}, {srd(r)}, s{so} offen", "raw")

    aWQ, aWKV, aWKO = 0, 64, 96
    QA = [[16, 20], [24, 28]]; GA = [32, 36]; UA = [40, 44]; KA = [48, 52]; vONE = 64
    vXF = 128; NXF = 16
    vTQ = [8, 9]; vTK = [13, 14]; vXR = [[108, 109], [110, 111]]
    vSTW, vSTR, vQST, vKVS, vVTW, vVTR, vKXW, vKXR = 112, [113, 114], 115, 116, 117, 118, 119, 15
    sHF = 21; sPAR = 22; sMH = 24
    def qkv_addrs(layer0):
        A(f"s_lshr_b32 s{sHF}, s{sW}, 1")
        A(f"s_and_b32 s{sPAR}, s{sW}, 1")
        A("v_and_b32 v4, 63, v0")
        A("v_and_b32 v5, 15, v4")
        A("v_lshrrev_b32 v6, 4, v4")
        if layer0:
            A("v_lshrrev_b32 v7, 2, v5")
            A("v_sub_u32 v7, 0, v7")
            A("v_xor_b32 v7, v7, v6")
            A("v_and_b32 v7, 3, v7")
            A("v_lshlrev_b32 v7, 4, v7")
            A("v_lshl_add_u32 v7, v5, 6, v7")
        else:
            A(f"v_mov_b32 v7, v{vL16}")
        A(f"s_lshl_b32 s{sT0}, s{sPAR}, 14")
        A(f"s_lshl_b32 s{sT1}, s{sHF}, 10")
        A(f"s_add_u32 s{sT0}, s{sT0}, s{sT1}")
        A(f"v_add_u32 v{vXR[0][0]}, s{sT0}, v7")
        A(f"v_xor_b32 v{vXR[0][1]}, 0x400, v{vXR[0][0]}")
        A(f"v_xor_b32 v{vXR[1][0]}, 0x4000, v{vXR[0][0]}")
        A(f"v_xor_b32 v{vXR[1][1]}, 0x4400, v{vXR[0][0]}")
        A(f"s_lshl_b32 s{sT0}, s{sPAR}, 8")
        A(f"s_add_u32 s{sT0}, s{sT0}, {LDS_ST}")
        A(f"v_lshl_add_u32 v{vSTR[0]}, v5, 4, s{sT0}")
        A(f"v_xor_b32 v{vSTR[1]}, 0x100, v{vSTR[0]}")
        A(f"s_lshl_b32 s{sT1}, s{sHF}, 3")
        A(f"v_add_u32 v{vSTW}, s{sT1}, v{vSTR[0]}")
        A("v_lshrrev_b32 v7, 2, v5")
        A("v_cmp_eq_u32 vcc, v6, v7")
        A(f"v_lshlrev_b32 v7, 3, v4")
        A(f"v_add_u32 v7, {LDS_ST + 1024}, v7")
        A(f"v_cndmask_b32 v{vSTW}, v7, v{vSTW}, vcc")
        A("v_and_b32 v7, 3, v4")
        A(f"v_cmp_eq_u32 s[{sM0}:{sM0+1}], 1, v7")
        A(f"v_cmp_eq_u32 s[{sM1}:{sM1+1}], 2, v7")
        A(f"v_cmp_eq_u32 s[{sM2}:{sM2+1}], 3, v7")
        A(f"s_lshl_b32 s{sT0}, s{sW}, 10")
        A(f"s_add_u32 s{sT0}, s{sT0}, {LDS_KVX}")
        A(f"v_add_u32 v{vKXR}, s{sT0}, v{vL16}")
        A(f"v_xor_b32 v{vKXW}, 0x800, v{vKXR}")
        A(f"s_lshl_b32 s{sT0}, s{sW}, 9")
        A(f"s_add_u32 s{sT0}, s{sT0}, {LDS_VT}")
        A(f"v_lshl_add_u32 v{vVTW}, v5, 5, s{sT0}")
        A(f"v_lshl_add_u32 v{vVTW}, v6, 3, v{vVTW}")
        A("v_lshrrev_b32 v7, 2, v5")
        A("v_lshl_add_u32 v7, v6, 2, v7")
        A(f"v_lshl_add_u32 v{vVTR}, v7, 5, s{sT0}")
        A("v_and_b32 v7, 1, v4")
        A(f"v_lshl_add_u32 v{vVTR}, v7, 4, v{vVTR}")
        A("v_bfe_u32 v7, v4, 1, 1")
        A(f"v_lshl_add_u32 v{vVTR}, v7, 3, v{vVTR}")
        A(f"s_lshl_b32 s{sT0}, s{sTB}, 11")
        A(f"s_lshl_b32 s{sT1}, s{sHF}, 10")
        A(f"s_add_u32 s{sKO}, s{sT0}, s{sT1}")
        A(f"s_lshl_b32 s{sT1}, s{sPAR}, 8")
        A(f"s_add_u32 s{sKO}, s{sKO}, s{sT1}")
        A(f"s_lshl_b32 s{sT1}, s{sW}, 9")
        A(f"s_add_u32 s{sT0}, s{sT0}, s{sT1}")
        A(f"s_add_u32 s{sT0}, s{sT0}, 0x10000")
        A(f"s_cmp_eq_u32 s{sCB}, 0")
        A(f"s_cselect_b32 s{sKO}, s{sKO}, s{sT0}")
        A(f"s_cselect_b32 s{sT1}, 9, 8")
        A(f"s_add_u32 s{sKO}, s{sKO}, {hex(L_KV)}")
        A("v_lshrrev_b32 v7, 1, v6")
        A(f"v_lshlrev_b32 v7, s{sT1}, v7")
        A(f"v_lshl_add_u32 v{vKVS}, v5, 4, v7")
        A("v_and_b32 v7, 1, v6")
        A(f"v_xor_b32 v7, s{sPAR}, v7")
        A(f"v_lshlrev_b32 v{vQST}, 14, v7")
        A("v_lshrrev_b32 v7, 3, v5")
        A(f"v_lshl_add_u32 v{vQST}, v7, 13, v{vQST}")
        A("v_lshrrev_b32 v7, 1, v6")
        A(f"v_lshl_add_u32 v{vQST}, v7, 9, v{vQST}")
        A("v_and_b32 v7, 7, v5")
        A(f"v_lshl_add_u32 v{vQST}, v7, 4, v{vQST}")
        A(f"s_lshl_b32 s{sQO}, s{sTB}, 16")
        A(f"s_lshl_b32 s{sT0}, s{sCB}, 10")
        A(f"s_add_u32 s{sQO}, s{sQO}, s{sT0}")
        A(f"s_lshl_b32 s{sT0}, s{sW}, 7")
        A(f"s_add_u32 s{sQO}, s{sQO}, s{sT0}")
        A("v_lshrrev_b32 v7, 2, v5")
        A("v_lshl_add_u32 v7, v6, 3, v7")
        A("v_and_b32 v4, 3, v4")
        A(f"s_lshl_b32 s{sT0}, s{sHF}, 10")
        A(f"s_add_u32 s{sT0}, s{sT0}, {LDS_WKV}")
        A(f"v_lshl_add_u32 v{vTK[0]}, v7, 5, s{sT0}")
        A(f"v_lshl_add_u32 v{vTK[0]}, v4, 3, v{vTK[0]}")
        A(f"v_xor_b32 v{vTK[1]}, 0x400, v{vTK[0]}")
        A("v_lshrrev_b32 v5, 3, v5")
        A("v_and_b32 v6, 1, v6")
        A("v_lshl_add_u32 v5, v6, 1, v5")
        A(f"v_xor_b32 v5, s{sW}, v5")
        A(f"s_lshl_b32 s{sT0}, s{sHF}, 12")
        A(f"s_add_u32 s{sT0}, s{sT0}, {LDS_WQ}")
        A(f"v_lshl_add_u32 v{vTQ[0]}, v7, 7, s{sT0}")
        A(f"v_lshl_add_u32 v{vTQ[0]}, v5, 5, v{vTQ[0]}")
        A(f"v_lshl_add_u32 v{vTQ[0]}, v4, 3, v{vTQ[0]}")
        A(f"v_xor_b32 v{vTQ[1]}, 0x1000, v{vTQ[0]}")
        A(f"s_cmp_eq_u32 s{sHF}, 1")
        A(f"s_cselect_b64 s[{sMH}:{sMH+1}], -1, 0")
    def akv(p): return (aWKV if p % 2 == 0 else aWKO) + 4 * (p // 2)
    def tr_reads(c, layer0):
        L = []
        for p in range(4 * c, 4 * c + 4):
            L.append(lambda p=p: A.ds(f"ds_read_b64_tr_b16 {ar(aWQ+4*p, 2)}, v{vTQ[p%2]} offset:{(p&~1)*4096}", f"w{p}"))
            L.append(lambda p=p: A.ds(f"ds_read_b64_tr_b16 {ar(aWQ+4*p+2, 2)}, v{vTQ[p%2]} offset:{(p&~1)*4096+512}", f"w{p}"))
            if layer0 or p % 2 == 0:
                L.append(lambda p=p: A.ds(f"ds_read_b64_tr_b16 {ar(akv(p), 2)}, v{vTK[p%2]} offset:{(p&~1)*1024}", f"w{p}"))
                L.append(lambda p=p: A.ds(f"ds_read_b64_tr_b16 {ar(akv(p)+2, 2)}, v{vTK[p%2]} offset:{(p&~1)*1024+128}", f"w{p}"))
        return L
    def lds_guard():
        if len(A.lg) >= 14:
            n = 12
            A(f"s_waitcnt lgkmcnt({n})"); A.lg = A.lg[-n:]
    def guarded(L): return [(lambda th=th: (lds_guard(), th())) for th in L]

    if cfg.flag_touch:
        A("v_and_b32 v4, 7, v0")
        A("v_min_u32 v4, 5, v4")
        A("v_bfe_u32 v5, v0, 3, 1")
        A("v_and_b32 v6, 1, v4")
        A("v_cmp_eq_u32 vcc, 0, v4")
        A(f"v_mov_b32 v7, s{sG}")
        A(f"v_mov_b32 v8, s{sID1}")
        A("v_cndmask_b32 v6, v6, 1, vcc")
        A("v_cmp_eq_u32 vcc, 1, v6")
        A("v_lshlrev_b32 v4, 15, v4")
        A("v_lshl_add_u32 v4, v5, 24, v4")
        A("v_cndmask_b32 v7, v8, v7, vcc")
        A("v_lshl_add_u32 v4, v7, 7, v4")
        A(f"s_mov_b32 s{sT0}, {hex(WS_L0 + L_FLAG)}")
        A(f"s_mov_b32 s{rWS+2}, {hex(WS_L0 + 2 * LSTRIDE)}")
        A.vmem(f"buffer_load_dword v249, v4, {srd(rWS)}, s{sT0} offen", "ft")
        A(f"s_lshl_b32 s{sT0}, s{sWG}, 4")
        A(f"s_add_u32 s{sT0}, s{sT0}, {WS_WFLAG}")
        A("v_mov_b32 v4, 0")
        A.vmem(f"buffer_load_dword v249, v4, {srd(rWS)}, s{sT0} offen", "ft")
    qkv_addrs(True)
    for r in range(4): A(f"v_mov_b32 v{vONE+r}, 0x3f803f80")
    QS = 0.25 * math.log2(math.e)
    def stat_write(st):
        L = []
        L.append(lambda: A(f"v_cndmask_b32 v57, v{GA[st]}, v{GA[st]+1}, s[{sM0}:{sM0+1}]"))
        L.append(lambda: A(f"v_cndmask_b32 v57, v57, v{GA[st]+2}, s[{sM1}:{sM1+1}]"))
        L.append(lambda: A(f"v_cndmask_b32 v57, v57, v{GA[st]+3}, s[{sM2}:{sM2+1}]"))
        L.append(lambda: A(f"v_mov_b32 v56, v{UA[st]}"))
        L.append(lambda: A.ds(f"ds_write_b64 v{vSTW}, v[56:57] offset:{st*512}", f"sw{st}"))
        return L
    SR = [68, 72]; MU = [[76, 78], [80, 82]]
    def stat_read(st):
        return [(lambda sl=sl: A.ds(f"ds_read_b128 {vr(SR[sl])}, v{vSTR[sl]} offset:{st*512}", f"sr{st}")) for sl in range(2)]
    def q_epi(st):
        L = [lambda: A.wait_lg(f"sr{st}")]
        ops = []
        for sl in range(2):
            r, m = SR[sl], MU[st][sl]
            ops.append([f"v_add_f32 v{m}, v{r}, v{r+2}", f"v_add_f32 v{m+1}, v{r+1}, v{r+3}",
                        f"v_mul_f32 v{m}, {hex(f32(1.0/512))}, v{m}", f"v_mul_f32 v{m+1}, {hex(f32(1.0/512))}, v{m+1}",
                        f"v_fma_f32 v{m+1}, -v{m}, v{m}, v{m+1}", f"v_max_f32 v{m+1}, 0, v{m+1}",
                        f"v_add_f32 v{m+1}, {hex(f32(1e-5))}, v{m+1}", f"v_rsq_f32 v{m+1}, v{m+1}"]
                       + [f"v_fma_f32 v{QA[st][sl]+k}, -v{m}, v{vCS+k}, v{QA[st][sl]+k}" for k in range(4)]
                       + [f"v_mul_f32 v{r}, {hex(f32(QS))}, v{m+1}"]
                       + [f"v_mul_f32 v{QA[st][sl]+k}, v{r}, v{QA[st][sl]+k}" for k in range(4)]
                       + [f"v_cvt_pk_bf16_f32 v{84+4*st+2*sl+k}, v{QA[st][sl]+2*k}, v{QA[st][sl]+2*k+1}" for k in range(2)])
        for a_, b_ in zip(*ops): L += [lambda a_=a_: A(a_), lambda b_=b_: A(b_)]
        d = 84 + 4 * st
        L.append(lambda: (A("s_nop 0"), A(f"v_permlane16_swap_b32 v{d}, v{d+2}"), A(f"v_permlane16_swap_b32 v{d+1}, v{d+3}")))
        L.append(lambda: (A(f"s_add_u32 s{sT0}, s{sQO}, {st*32768}"), A.vmem(f"buffer_store_dwordx4 {vr(d)}, v{vQST}, {srd(rL)}, s{sT0} offen sc1", "st")))
        return L
    XL = 8
    def w_proc(cs_, V):
        A.wait_vm([f"wq{c}" for c in cs_])
        A("s_barrier")
        for c in cs_:
            for n, th in enumerate(guarded(tr_reads(c, True))):
                th()
                if n % 3 == 2 and V: V.pop(0)()
            for p in range(4 * c, 4 * c + 4):
                A.wait_lg(f"w{p}")
                A(f"v_mfma_f32_16x16x32_bf16 {vr(vCS)}, {ar(aWQ+4*p)}, {vr(vONE)}, {vr(vCS) if p else 0}")
                A(f"v_mfma_f32_16x16x32_bf16 {vr(vCKV)}, {ar(akv(p))}, {vr(vONE)}, {vr(vCKV) if p else 0}")
    def qkv_stream(layer0, V):
        order = (0, 2, 1, 3) if layer0 else (0, 1, 2, 3)
        frs = [(ch // 2, p, sl) for ch in order for p in range(8 * (ch % 2), 8 * (ch % 2) + 8) for sl in range(2)]
        def x_read(i):
            st, p, sl = frs[i]
            A.ds(f"ds_read_b128 {vr(vXF+4*(i%NXF))}, v{vXR[sl][p%2]} offset:{st*32768 + (p&~1)*1024}", f"xf{i}")
        exq = {i: [] for i in range(64)}
        endA = 48 if layer0 else 32
        exq[endA + 2] += [lambda: None] * 2 + stat_write(0)
        nb = 56 if layer0 else 48 - XL
        if layer0: exq[nb].append(lambda: (A.wait_lg("sw0"), A("s_barrier")))
        exq[nb] += stat_read(0) + [lambda: None] * 3 + q_epi(0)
        for i in range(XL): x_read(i)
        pend = []
        def take(n):
            for _ in range(n):
                if pend: pend.pop(0)()
        def rd(n):
            if n >= 64: return take(1)
            if n % 16 == 0:
                if n == 48 and not layer0: A.wait_lg("sw0")
                A.wait_vm(f"x{order[n//16]}"); A("s_barrier")
            x_read(n)
        for i0 in range(0, 64, 4):
            st, p0, _ = frs[i0]
            X = [vr(vXF + 4 * ((i0 + k) % NXF)) for k in range(4)]
            def q(k):
                pp, sl = p0 + k // 2, k % 2
                A(f"v_mfma_f32_16x16x32_bf16 {vr(QA[st][sl])}, {ar(aWQ+4*pp)}, {X[k]}, {vr(QA[st][sl]) if pp else 0}")
            def vm():
                if V: V.pop(0)()
                else: take(1)
            for k in range(4): pend.extend(exq[i0 + k])
            if layer0 and i0 == 32:
                assert not V
                w_proc((2, 3), RAWV)
            if i0 == 0 or (layer0 and i0 == 32): A.wait_lg(f"xf{i0+1}")
            q(0); rd(i0 + XL); take(1)
            A(f"v_mfma_f32_16x16x32_bf16 {vr(GA[st])}, {X[0]}, {X[0]}, {vr(GA[st]) if p0 else 0}")
            vm()
            q(1); A.wait_lg(f"xf{i0+3}"); rd(i0 + XL + 1)
            A(f"v_mfma_f32_16x16x32_bf16 {vr(UA[st])}, {vr(vONE)}, {X[0]}, {vr(UA[st]) if p0 else 0}")
            rd(i0 + XL + 2); take(1)
            q(2)
            if not layer0: vm()
            take(1)
            A(f"v_mfma_f32_16x16x32_bf16 {vr(KA[st])}, {ar(akv(p0))}, {X[0]}, {vr(KA[st]) if p0 else 0}")
            rd(i0 + XL + 3); take(1)
            q(3)
            if i0 + 5 < 64: A.wait_lg(f"xf{i0+5}")
            take(1)
            if layer0 and V and i0 < 32: V.pop(0)()
        take(len(pend))
    V0 = [(lambda c=c, n=n: w_dma(c, n)) for c in (2, 3) for n in range(5)] + [(lambda ch=ch, u=u: x_dma(ch, u, True)) for ch in (1, 3) for u in range(4)] \
        + [(lambda n=n: raw_load(n)) for n in range(6)]
    setup, A.L, A.vm = A.L, main_L, main_vm
    units = []; glue = False
    for ln in setup:
        if glue or ln.startswith(("s_cselect", "s_addc", "s_cbranch")): units[-1].append(ln)
        else: units.append([ln])
        if "L_RAW_WO" in ln and ln.startswith("s_cbranch"): glue = True
        if ln.startswith("L_RAW_DONE"): glue = False
    VP = [(lambda c=c, n=n: w_dma(c, n)) for c in (0, 1) for n in range(5)][2:] + [(lambda ch=ch, u=u: x_dma(ch, u, True)) for ch in (0, 2) for u in range(4)]
    VP += [V0.pop(0) for _ in range(cfg.n_up)]
    per = -(-len(units) // len(VP))
    for th in VP:
        for un in units[:per]:
            A.L.extend(un)
            if un[0].startswith("buffer_load"): A.vm.append("ft")
        units = units[per:]
        th()
    assert not units
    stamp("start")
    A("s_waitcnt lgkmcnt(0)")
    RAWV = V0[-6:]; del V0[-6:]
    w_proc((0, 1), V0)
    A(f"s_mul_i32 s{sTAG}, s{sTAG}, 1664525")
    A(f"s_add_u32 s{sTAG}, s{sTAG}, 1013904223")
    A(f"v_mov_b32 v{vTAG}, s{sTAG}")
    A.wait_vm("x0")
    A("s_barrier")
    stamp("qkv_x0")
    qkv_stream(True, V0)
    assert not V0
    A("s_branch L_QKV_EPI")
    A.label("L_QKV_X")
    A.lg = []; A.vm = ["x1"] * 4
    A("s_barrier")
    stamp("qkv_x1")
    qkv_stream(False, [(lambda ch=ch, u=u: x_dma(ch, u, False)) for ch in (2, 3) for u in range(4)])
    A.label("L_QKV_EPI")
    A.lg = []; A.vm = []
    stamp("qkv_mm")
    for k in range(4): A(f"v_cndmask_b32 v{60+k}, v{KA[1]+k}, v{KA[0]+k}, s[{sMH}:{sMH+1}]")
    for th in stat_write(1): th()
    A.ds(f"ds_write_b128 v{vKXW}, v[60:63]")
    for k in range(4): A(f"v_cndmask_b32 v{KA[0]+k}, v{KA[0]+k}, v{KA[1]+k}, s[{sMH}:{sMH+1}]")
    A.wait_lg()
    A("s_barrier")
    for th in stat_read(1): th()
    A.ds(f"ds_read_b128 v[60:63], v{vKXR}", "kx")
    for th in q_epi(1): th()
    sk = A.newlabel("nokvep"); kt = A.newlabel("kvK")
    A(f"s_cmp_ge_u32 s{sCB}, 2")
    A(f"s_cbranch_scc1 {sk}")
    A(f"v_cndmask_b32 v56, v{MU[0][0]}, v{MU[1][0]}, s[{sMH}:{sMH+1}]")
    A(f"v_cndmask_b32 v57, v{MU[0][0]+1}, v{MU[1][0]+1}, s[{sMH}:{sMH+1}]")
    A("s_waitcnt lgkmcnt(0)")
    for k in range(4): A(f"v_add_f32 v{60+k}, v{60+k}, v{KA[0]+k}")
    for k in range(4): A(f"v_fma_f32 v{60+k}, -v56, v{vCKV+k}, v{60+k}")
    for k in range(4): A(f"v_mul_f32 v{60+k}, v57, v{60+k}")
    A("v_cvt_pk_bf16_f32 v72, v60, v61")
    A("v_cvt_pk_bf16_f32 v73, v62, v63")
    A(f"s_cmp_eq_u32 s{sCB}, 0")
    A(f"s_cbranch_scc1 {kt}")
    A(f"ds_write_b64 v{vVTW}, v[72:73]")
    A("s_waitcnt lgkmcnt(0)")
    A(f"ds_read_b64_tr_b16 v[72:73], v{vVTR}")
    A("s_waitcnt lgkmcnt(0)")
    A.label(kt)
    A("v_mov_b32 v74, v72")
    A("v_mov_b32 v75, v73")
    A(f"s_mov_b32 s{sM0}, 0x0000ffff")
    A(f"s_mov_b32 s{sM0+1}, 0x0000ffff")
    A("v_permlane16_swap_b32 v72, v74")
    A("v_permlane16_swap_b32 v73, v75")
    A(f"s_mov_b64 exec, s[{sM0}:{sM0+1}]")
    A(f"buffer_store_dwordx4 v[72:75], v{vKVS}, {srd(rL)}, s{sKO} offen sc1")
    A("s_mov_b64 exec, -1")
    A.label(sk)
    A.wait_lg()
    A("v_and_b32 v5, 11, v0")
    A("v_cmp_eq_u32 vcc, 0, v5")
    A("v_lshlrev_b32 v4, 4, v0")
    A(f"v_add_u32 v4, {LDS_ONES}, v4")
    for r in range(4): A(f"v_cndmask_b32 v{vONE+r}, 0, v{vONE+r}, vcc")
    A.ds(f"ds_write_b128 v4, {vr(vONE)}")
    A.ds(f"ds_write_b128 v4, {vr(vONE)} offset:4096")
    S = [16, 32]; O = [48, 160]; Q = [64, 68]; KB = [72, 76]; V0 = [80, 84]; V1 = [88, 92]
    vIDX = 96; vVA = 97; vVINC = 98; vOXR = 99
    vOXW = 120; vWFL = 121; vRES = 122; vTCH = 123; vJUNK = 124; vRROW = 125; vWFA = 126
    vOF = [128, 132]; vZ = 136; vZR = 152; vPA = 176
    A("v_and_b32 v4, 63, v0")
    A("v_and_b32 v5, 7, v4")
    A("v_bfe_u32 v6, v4, 3, 1")
    A("v_lshrrev_b32 v7, 4, v4")
    A("v_lshlrev_b32 v8, 12, v6")
    A("v_lshrrev_b32 v9, 1, v7")
    A("v_lshl_add_u32 v8, v9, 10, v8")
    A("v_and_b32 v9, 1, v7")
    A("v_lshl_add_u32 v8, v9, 9, v8")
    A("v_lshl_add_u32 v8, v5, 4, v8")
    A(f"s_lshr_b32 s{sT0}, s{sG}, 2")
    A(f"s_lshl_b32 s{sT0}, s{sT0}, 15")
    A(f"s_lshl_b32 s{sT1}, s{sW}, 13")
    A(f"s_add_u32 s{sT0}, s{sT0}, s{sT1}")
    A(f"s_and_b32 s{sT1}, s{sG}, 3")
    A(f"s_lshl_b32 s{sT1}, s{sT1}, 7")
    A(f"s_add_u32 s{sT0}, s{sT0}, s{sT1}")
    A(f"v_add_u32 v{vRES}, s{sT0}, v8")
    A("v_lshlrev_b32 v8, 10, v5")
    A("v_lshl_add_u32 v8, v6, 7, v8")
    A("v_lshl_add_u32 v8, v7, 4, v8")
    A(f"s_lshl_b32 s{sT0}, s{sG}, 13")
    A(f"s_lshl_b32 s{sT1}, s{sW}, 8")
    A(f"s_add_u32 s{sT0}, s{sT0}, s{sT1}")
    A(f"v_add_u32 v8, s{sT0}, v8")
    A(f"s_cmp_eq_u32 s{sLAYER}, 0")
    A("s_cselect_b64 vcc, -1, 0")
    A(f"s_cselect_b32 s{sXA}, 64, 2048")
    A(f"v_cndmask_b32 v{vRROW}, v{vRES}, v8, vcc")
    A("v_and_b32 v5, 15, v4")
    A("v_lshrrev_b32 v6, 5, v4")
    A("v_lshlrev_b32 v5, 4, v5")
    A("v_lshl_add_u32 v5, v6, 8, v5")
    A("v_bfe_u32 v6, v4, 4, 1")
    A("v_cmp_eq_u32 vcc, 0, v6")
    A(f"v_mov_b32 v7, {LDS_ONES}")
    A(f"v_mov_b32 v8, {LDS_V}")
    A("v_cndmask_b32 v7, v7, v8, vcc")
    A(f"v_add_u32 v{vVA}, v5, v7")
    A("v_mov_b32 v7, 0")
    A("v_mov_b32 v8, 0x2000")
    A(f"v_cndmask_b32 v{vVINC}, v7, v8, vcc")
    A(f"v_mov_b32 v{vIDX}, 0xdddd")
    A("v_bfe_u32 v5, v4, 4, 1")
    A("v_lshlrev_b32 v5, 9, v5")
    A("v_bfe_u32 v6, v4, 3, 1")
    A("v_lshl_add_u32 v5, v6, 8, v5")
    A("v_lshrrev_b32 v6, 5, v4")
    A("v_lshl_add_u32 v5, v6, 7, v5")
    A("v_and_b32 v6, 7, v4")
    A("v_lshl_add_u32 v5, v6, 4, v5")
    A(f"s_lshl_b32 s{sT0}, s{sW}, 10")
    A(f"s_add_u32 s{sT0}, s{sT0}, {LDS_OX}")
    A(f"v_add_u32 v{vOXW}, s{sT0}, v5")
    A("v_lshrrev_b32 v5, 4, v4")
    A("v_lshlrev_b32 v5, 7, v5")
    A("v_lshl_add_u32 v5, v6, 4, v5")
    A(f"v_add_u32 v{vOXR}, {LDS_OX}, v5")
    A("v_lshrrev_b32 v5, 2, v4")
    A("v_and_b32 v6, 3, v4")
    A("v_lshlrev_b32 v6, 2, v6")
    A(f"v_lshl_add_u32 v{vTCH}, v5, 7, v6")
    A(f"v_lshlrev_b32 v{vWFA}, 4, v0")
    A(f"v_add_u32 v{vWFA}, {WS_WFLAG}, v{vWFA}")
    A.wait_vm()
    publish(PH_QKV, sG, "st")
    stamp("qkv_pub")
    A(f"s_cmp_eq_u32 s{sLAYER}, 0")
    A("s_cbranch_scc0 L_NORELAY")
    A(f"s_lshl_b32 s{sT0}, s{sW}, 13")
    A(f"v_add_u32 v4, s{sT0}, v{vL16}")
    for n in range(6):
        A(f"ds_write_b128 v4, {vr(vRAW+4*n)} offset:{n*1024}")
    A("v_and_b32 v5, 63, v0")
    A("v_bfe_u32 v6, v5, 2, 2")
    A("v_and_b32 v8, 1, v5")
    A("v_bfe_u32 v7, v5, 1, 1")
    A("v_lshl_add_u32 v8, v8, 1, v7")
    A(f"s_cmp_ge_u32 s{sWG}, 224")
    A("s_cbranch_scc1 L_RELAY_WO")
    A("v_lshrrev_b32 v7, 5, v5")
    A("v_lshl_add_u32 v6, v7, 3, v6")
    A("v_lshlrev_b32 v6, 7, v6")
    A("v_lshl_add_u32 v6, v8, 3, v6")
    A(f"v_add_u32 v6, s{sT0}, v6")
    A("v_bfe_u32 v7, v5, 4, 1")
    A("v_lshl_add_u32 v8, v7, 11, v6")
    A("v_lshl_add_u32 v9, v7, 5, v6")
    A("s_waitcnt lgkmcnt(0)")
    R0 = 192
    for q in range(4):
        A(f"ds_read_b64_tr_b16 {vr(R0+4*q,2)}, v8 offset:{q*32}")
        A(f"ds_read_b64_tr_b16 {vr(R0+2+4*q,2)}, v8 offset:{q*32+512}")
    for ct in range(2):
        A(f"ds_read_b64_tr_b16 {vr(R0+16+4*ct,2)}, v9 offset:{4096+ct*64}")
        A(f"ds_read_b64_tr_b16 {vr(R0+18+4*ct,2)}, v9 offset:{4096+ct*64+512}")
    A(f"s_mul_i32 s{sT1}, s{sGW}, 2341")
    A(f"s_lshr_b32 s{sT1}, s{sT1}, 16")
    A(f"s_mul_i32 s{sT0}, s{sT1}, 28")
    A(f"s_sub_u32 s{sT0}, s{sGW}, s{sT0}")
    A(f"s_lshl_b32 s{sT0}, s{sT0}, 17")
    A(f"s_lshl_b32 s{sT1}, s{sT1}, 10")
    A(f"s_add_u32 s{sT0}, s{sT0}, s{sT1}")
    A(f"s_add_u32 s{sT0}, s{sT0}, {hex(WS_WGUT)}")
    A(f"s_and_b32 s{sT1}, s{sGW}, 7")
    A(f"s_mul_i32 s{sT1}, s{sT1}, 112")
    A(f"s_lshr_b32 s{sT2}, s{sGW}, 3")
    A(f"s_add_u32 s{sT1}, s{sT1}, s{sT2}")
    A(f"s_lshl_b32 s{sT1}, s{sT1}, 11")
    A(f"s_add_u32 s{sT1}, s{sT1}, {hex(WS_WDT)}")
    A("s_waitcnt lgkmcnt(0)")
    for q in range(4):
        A(f"buffer_store_dwordx4 {vr(R0+4*q)}, v{vL16}, {srd(rWS)}, s{sT0} offen sc1")
        A(f"s_add_u32 s{sT0}, s{sT0}, 32768")
    for ct in range(2):
        A(f"buffer_store_dwordx4 {vr(R0+16+4*ct)}, v{vL16}, {srd(rWS)}, s{sT1} offen offset:{ct*1024} sc1")
    A("s_branch L_RELAY_PUB")
    A.label("L_RELAY_WO")
    A("v_lshrrev_b32 v7, 4, v5")
    A("v_lshl_add_u32 v6, v7, 3, v6")
    A("v_lshlrev_b32 v6, 7, v6")
    A("v_and_b32 v8, 3, v5")
    A("v_lshl_add_u32 v6, v8, 4, v6")
    A(f"v_add_u32 v6, s{sT0}, v6")
    A("s_waitcnt lgkmcnt(0)")
    for P in range(2):
        for b in range(2):
            q = 2 * P + b
            A(f"ds_read_b64_tr_b16 {vr(R0+4*q,2)}, v6 offset:{P*64+b*8}")
            A(f"ds_read_b64_tr_b16 {vr(R0+2+4*q,2)}, v6 offset:{P*64+b*8+512}")
    A(f"s_sub_u32 s{sT2}, s{sGW}, 896")
    A(f"s_lshr_b32 s{sT0}, s{sT2}, 3")
    A(f"s_lshl_b32 s{sT0}, s{sT0}, 13")
    A(f"s_bfe_u32 s{sT1}, s{sT2}, 0x20001")
    A(f"s_lshl_b32 s{sT1}, s{sT1}, 17")
    A(f"s_add_u32 s{sT0}, s{sT0}, s{sT1}")
    A(f"s_and_b32 s{sT1}, s{sT2}, 1")
    A(f"s_lshl_b32 s{sT1}, s{sT1}, 12")
    A(f"s_add_u32 s{sT0}, s{sT0}, s{sT1}")
    A(f"s_add_u32 s{sT0}, s{sT0}, {hex(WS_WOT)}")
    A("s_waitcnt lgkmcnt(0)")
    for q in range(4):
        A(f"buffer_store_dwordx4 {vr(R0+4*q)}, v{vL16}, {srd(rWS)}, s{sT0} offen offset:{q*1024} sc1")
    A.label("L_RELAY_PUB")
    shareGU = 4 if cfg.t512 else 2
    sTOUCH = 8
    for d, kind in ((8, "gu"), (9, "wd")):
        share = shareGU if kind == "gu" else 4
        A(f"s_lshr_b32 s{d}, s{sI}, {3 if share == 4 else 4}")
        A(f"s_lshl_b32 s{d}, s{d}, 2")
        A(f"s_add_u32 s{d}, s{d}, s{sW}")
        A(f"s_mul_i32 s{d}, s{d}, {7 * 32768 // (4 * share)}")
        A(f"s_mul_i32 s{sT1}, s{sSL if kind == 'gu' else sCB}, {7*32768}")
        A(f"s_add_u32 s{d}, s{d}, s{sT1}")
        A(f"s_add_u32 s{d}, s{d}, {hex(WS_WGUT if kind == 'gu' else WS_WDT)}")
    sGUB = 16; sWOB = 17; sWDB = 20
    A(f"s_mul_i32 s{sGUB}, s{sSL}, {7*32768}")
    A(f"s_lshl_b32 s{sT1}, s{sW}, 13")
    A(f"s_add_u32 s{sGUB}, s{sGUB}, s{sT1}")
    A(f"s_add_u32 s{sGUB}, s{sGUB}, {hex(WS_WGUT)}")
    A(f"s_lshl_b32 s{sWOB}, s{sW}, 17")
    A(f"s_add_u32 s{sWOB}, s{sWOB}, {hex(WS_WOT)}")
    A(f"s_lshl_b32 s{sWDB}, s{sCB}, 2")
    A(f"s_add_u32 s{sWDB}, s{sWDB}, s{sW}")
    A(f"s_mul_i32 s{sWDB}, s{sWDB}, {56*1024}")
    A(f"s_add_u32 s{sWDB}, s{sWDB}, {hex(WS_WDT)}")
    A.label("L_NORELAY")
    for r in range(16):
        A(f"v_mov_b32 v{O[0]+r}, 0")
        A(f"v_mov_b32 v{O[1]+r}, 0")
    stamp("relay")

    sk = A.newlabel("s1"); w1 = A.newlabel("s1q"); go = A.newlabel("s1go")
    A(f"s_lshl_b32 s{sT2}, s{sG}, 13")
    A(f"s_lshl_b32 s{sT1}, s{sW}, 10")
    A(f"s_add_u32 s{sT2}, s{sT2}, s{sT1}")
    A(f"s_cmp_ge_u32 s{sW}, 2")
    A(f"s_cbranch_scc1 {sk}")
    A("v_and_b32 v4, 63, v0")
    A(f"s_cmp_eq_u32 s{sW}, 1")
    A(f"s_cbranch_scc1 {w1}")
    A("v_lshrrev_b32 v5, 1, v4")
    A("v_lshlrev_b32 v5, 3, v5")
    A("v_and_b32 v4, 1, v4")
    A("v_add_u32 v5, v5, v4")
    A(f"s_branch {go}")
    A.label(w1)
    A("v_and_b32 v5, 7, v4")
    A(f"s_lshl_b32 s{sT0}, s{sTB}, 3")
    A(f"v_add_u32 v5, s{sT0}, v5")
    A.label(go)
    A("v_lshlrev_b32 v5, 7, v5")
    A(f"v_add_u32 v5, {hex(flagbase(PH_QKV))}, v5")
    poll(5, "s1")
    A.label(sk)
    A("s_waitcnt lgkmcnt(0)"); A.lg = []
    A("s_barrier")
    stamp("s1")
    A.vm = []
    chunks = [(0, 4), (4, 16), (16, 32), (32, 64)]
    def kv_dma_list(ci):
        t0, t1 = chunks[ci]
        n = (t1 - t0) // 4
        return [(ci, base + t0 * 1024, n, u) for base in (0, 0x10000) for u in range(n)]
    sKV = sT4
    def kv_pre(ent):
        ci, base, n, u = ent
        if u % 4 == 0:
            if ci < 2: A(f"s_mul_i32 s{sT5}, s{sW}, {n*1024}")
            src = sT5 if ci < 2 else (sT0 if ci == 2 else sT1)
            A(f"s_add_u32 m0, s{src}, {base + u*1024}")
            A(f"s_add_u32 s{sKV}, s{src}, {hex(L_KV + base + u*1024)}")
    def kv_dma(ent, pre=True):
        ci, base, n, u = ent
        if pre: kv_pre(ent)
        A.vmem(f"buffer_load_dwordx4 v{vL16}, {srd(rL)}, s{sKV} offen offset:{(u%4)*1024} sc1 lds", f"kv{ci}")
    A.vmem(f"buffer_load_dwordx4 {vr(Q[0])}, v{vL16}, {srd(rL)}, s{sT2} offen sc1", "q0")
    for e in kv_dma_list(0): kv_dma(e)
    for e in kv_dma_list(1): kv_dma(e)
    sWO = sT3
    def wo_base(part):
        A(f"s_add_u32 s{sWO}, s{sWOB}, {hex(part * 0x10000)}")
    def wo_load(f, part):
        A.vmem(f"buffer_load_dwordx4 {ar(4*f)}, v{vL16}, {srd(rWS)}, s{sWO} offen offset:{(f%4)*1024} sc1", f"wo{part}")
    A(f"s_lshl_b32 s{sT0}, s{sW}, 12")
    A(f"s_lshl_b32 s{sT1}, s{sW}, 13")
    kv_pre(kv_dma_list(2)[0])
    A(f"s_add_u32 s{sT2}, s{sT2}, 4096")
    A.wait_vm("kv0")
    A("s_barrier")
    sk = A.newlabel("wpub")
    A(f"s_cmp_lg_u32 s{sW}, 3")
    A(f"s_cbranch_scc1 {sk}")
    A(f"s_lshl_b32 s{sCNT}, s{sWG}, 4")
    A(f"s_add_u32 s{sCNT}, s{sCNT}, {WS_WFLAG}")
    A("v_mov_b32 v4, 0")
    A("s_mov_b64 exec, 1")
    A(f"buffer_store_dword v{vTAG}, v4, {srd(rWS)}, s{sCNT} offen sc1")
    A("s_mov_b64 exec, -1")
    A.label(sk)
    stamp("att_kv0")
    def rdK(n): A.ds(f"ds_read_b128 {vr(KB[n%2])}, v{vL16} offset:{(n%64)*1024}", f"K{n}")
    def rdV(n):
        A.ds(f"ds_read_b128 {vr(V0[n%2])}, v{vVA} offset:{(n%8)*1024}", f"V{n}")
        A.ds(f"ds_read_b128 {vr(V1[n%2])}, v{vVA} offset:{(n%8)*1024+512}", f"V{n}")
    def qk(n): A(f"v_mfma_f32_32x32x16_bf16 {vr(S[n%2],16)}, {vr(KB[n%2])}, {vr(Q[n//64])}, 0")
    rdK(0); rdK(1); rdV(0)
    A.wait_lg("K0")
    qk(0)
    def finalize_O(p):
        o = O[p]
        fb = f"L_FB{p}"; bk = f"L_FBR{p}"
        L = []
        L.append(lambda: A(f"v_add_u32 v4, {hex((0x100000000 - 0x21800000) & 0xffffffff)}, v{o+8}"))
        L.append(lambda: A(f"v_cmp_lt_u32 vcc, 0x3c000000, v4"))
        L.append(lambda: (A(f"s_cbranch_vccnz {fb}"), A.label(bk), A(f"v_rcp_f32 v4, v{o+8}")))
        for r in range(8):
            L.append(lambda r=r: A(f"v_mul_f32 v{o+r}, v4, v{o+r}"))
        for r in range(4):
            L.append(lambda r=r: A(f"v_cvt_pk_bf16_f32 v{8+r}, v{o+2*r}, v{o+2*r+1}"))
        L.append(lambda: A.ds(f"ds_write_b128 v{vOXW}, v[8:11] offset:{p*4096}", "oxw"))
        return L
    def oproj_mfma(f, part):
        jl, ctl = f // 8, f % 8
        Pp, b = ctl // 2, ctl % 2
        c = vr(vPA + 4 * ctl)
        if part == 0 and jl == 0: c = vr(vZ + 8 * (Pp % 2) + 4 * b)
        A.wait_lg(f"of{part}_{jl}")
        A(f"v_mfma_f32_16x16x32_bf16 {vr(vPA+4*ctl)}, {ar(4*f)}, {vr(vOF[jl%2])}, {c}")
    def of_read(part, jl): A.ds(f"ds_read_b128 {vr(vOF[jl%2])}, v{vOXR} offset:{part*4096 + jl*512}", f"of{part}_{jl}")
    sGU = sT4
    def gu_pre(tile, u):
        if u % 4: return
        if tile == 4:
            A(f"s_lshl_b32 m0, s{sW}, 13"); A(f"s_add_u32 m0, m0, {0x20000 + u * 1024}")
        else: A(f"s_add_u32 m0, s{sGUL}, {(tile % 5) * 16384 + u * 1024}")
        A(f"s_add_u32 s{sGU}, s{sGUB}, {tile * 32768 + u * 1024}")
    def gu_dma(tile, u, pre=True):
        if pre: gu_pre(tile, u)
        A.vmem(f"buffer_load_dwordx4 v{vL16}, {srd(rWS)}, s{sGU} offen offset:{(u%4)*1024} sc1 lds", f"gu{tile}")
    def gu_addr(j, s):
        if j == 4: return 0x20000 + s * 1024
        return (j % 5) * 16384 + (s // 16) * 0x10000 + (s % 16) * 1024

    postqk = {n: [] for n in range(128)}
    valu = {n: [] for n in range(128)}
    m16 = {n: [] for n in range(128)}
    pre_reads = {n: [] for n in range(128)}
    postsm1 = {n: [] for n in range(128)}
    first = [lambda: A.vmem(f"buffer_load_dword v{vWFL}, v{vWFA}, {srd(rWS)}, 0 offen sc1", "wfl"),
             lambda: A.vmem(f"buffer_load_dwordx4 {vr(Q[1])}, v{vL16}, {srd(rL)}, s{sT2} offen sc1", "q1")]
    dle = kv_dma_list(2) + kv_dma_list(3)
    dl = [(lambda e=e: kv_dma(e, False)) for e in dle]
    last = [lambda: A.vmem(f"buffer_load_dwordx4 {vr(vZR)}, v{vRROW}, {srd(rXIN)}, 0 offen sc1", "res"),
            lambda: A.vmem(f"buffer_load_dwordx4 {vr(vZR+4)}, v{vRROW}, {srd(rXIN)}, s{sXA} offen sc1", "res")]
    for k, th in enumerate(dl + last + first[::-1]): postqk[k // 2].append(th)
    for k, e in enumerate(dle):
        n_ = k // 2
        if e[3] % 4 == 0 and n_ > 0: postsm1[n_ - 1].append(lambda e=e: kv_pre(e))
    def bar(tags):
        def f():
            A.wait_vm(tags); A("s_barrier")
        return f
    for ci in (1, 2, 3):
        pre_reads[chunks[ci][0] - 2].append(bar(f"kv{ci}"))
    W0 = cfg.wo0
    pre_reads[W0].insert(0, lambda: (check_or_spin(vWFL, vWFA, rWS, "wfl", "wfl"), A("s_barrier")))
    postsm1[W0 - 1].append(lambda: wo_base(0))
    for f in range(64):
        postqk[W0 + f // 2].append(lambda f=f: wo_load(f, 0))
        if f % 4 == 3 and f < 63: postsm1[W0 + f // 2].append(lambda: A(f"s_add_u32 s{sWO}, s{sWO}, 4096"))
    def touch(m):
        A.vmem(f"buffer_load_dword v{vJUNK}, v{vTCH}, {srd(rWS)}, s{sT0} offen offset:{(m % 2) * 2048} sc1", "touch")
    tl = ([(8, m) for m in range(28 // shareGU)] if cfg.warm_gu else []) + ([(9, m) for m in range(7)] if cfg.warm_wd else [])
    for k_, (d, m) in enumerate(tl):
        n_ = cfg.warm0 + (k_ * cfg.warm_span) // len(tl)
        if m % 2 == 0: postsm1[n_ - 1].append(lambda d=d, m=m: A(f"s_add_u32 s{sT0}, s{d}, {m * 2048}"))
        postqk[n_].append(lambda m=m: touch(m))
    valu[55].append(lambda: A.wait_vm("res"))
    for k in range(16):
        valu[56 + k // 4].append(lambda k=k: unpack(vZ, vZR, k))
    fin0 = finalize_O(0)
    for k, th in enumerate(fin0[:-1]):
        valu[65 if k < 9 else 66].append(th)
    postqk[67].append(fin0[-1])
    def ox_bar():
        A.wait_lg("oxw"); A.wait_vm("wo0"); A("s_barrier")
    pre_reads[68].append(ox_bar)
    postqk[68].append(lambda: of_read(0, 0))
    postsm1[69].append(lambda: wo_base(1))
    for f in range(64):
        n = 69 + f // 2
        m16[n].append(lambda f=f: oproj_mfma(f, 0))
        postqk[n + 1].append(lambda f=f: wo_load(f, 1))
        if f % 4 == 3 and f < 63: postsm1[n + 1].append(lambda: A(f"s_add_u32 s{sWO}, s{sWO}, 4096"))
        if f % 8 == 0 and f // 8 + 1 < 8:
            postqk[n + 1].append(lambda f=f: of_read(0, f // 8 + 1))
    for j, (nb, n0) in enumerate(cfg.gu_att):
        assert nb >= 64 + 16 * (j + 1) and n0 >= nb
        if j == 0 or cfg.gu_att[j - 1][0] != nb: pre_reads[nb].append(lambda: A("s_barrier"))
        for u in range(8):
            postqk[n0 + u // 2].append(lambda j=j, u=u: gu_dma(j, u, False))
            if u % 4 == 0: postsm1[n0 + u // 2 - 1].append(lambda j=j, u=u: gu_pre(j, u))
    for n in range(128):
        cur, nxt = S[n % 2], S[(n + 1) % 2]
        e = lambda i: A(f"v_exp_f32 v{cur+i}, v{cur+i}")
        e(0); e(1); e(2)
        if n > 0:
            A(f"v_smfmac_f32_32x32x32_bf16 {vr(O[(n-1)//64],16)}, {vr(V1[(n-1)%2])}, {vr(nxt+8,8)}, v{vIDX}")
        A.wait_lg([f"K{n+1}", f"V{n}"])
        e(3); e(4); e(5)
        if n < 127:
            if n + 1 == 64: A.wait_vm("q1")
            qk(n + 1)
        for th in pre_reads[n]: th()
        if n + 2 < 128: rdK(n + 2)
        if n + 1 < 128: rdV(n + 1)
        for th in postqk[n]: th()
        e(6); e(7); e(8)
        if len(m16[n]) > 0: m16[n][0]()
        e(9); e(10)
        A(f"v_smfmac_f32_32x32x32_bf16 {vr(O[n//64],16)}, {vr(V0[n%2])}, {vr(cur,8)}, v{vIDX}")
        for th in postsm1[n]: th()
        e(11); e(12)
        for th in valu[n]: th()
        if n % 8 == 6 and n < 126:
            if n == 62:
                A(f"v_mul_u32_u24 v5, 7, v{vVINC}"); A(f"v_sub_u32 v{vVA}, v{vVA}, v5")
            else: A(f"v_add_u32 v{vVA}, v{vVA}, v{vVINC}")
        e(13)
        if len(m16[n]) > 1: m16[n][1]()
        e(14); e(15)
    A("s_nop 1")
    A(f"v_smfmac_f32_32x32x32_bf16 {vr(O[1],16)}, {vr(V1[1])}, {vr(S[1]+8,8)}, v{vIDX}")
    vY = 16
    A("v_and_b32 v12, 63, v0")
    A("v_bfe_u32 v5, v12, 3, 1")
    A(f"v_cmp_eq_u32 s[{sM0}:{sM0+1}], 0, v5")
    A("v_and_b32 v6, 7, v12")
    A(f"s_lshl_b32 s{sT0}, s{sW}, 3")
    A(f"s_add_u32 s{sT0}, s{sT0}, {LDS_LNX}")
    A(f"v_lshl_add_u32 v13, v6, 5, s{sT0}")
    A(f"v_lshlrev_b32 v6, 5, v6")
    A(f"v_add_u32 v14, {LDS_LNX}, v6")
    stamp("att_main")
    for th in finalize_O(1): th()
    A.wait_lg()
    A.wait_vm(["wo1"] + [f"gu{t}" for t in range(len(cfg.gu_att))])
    A("s_barrier")
    ngu_att = len(cfg.gu_att)
    gul = [(t, u) for t in range(ngu_att, 4) for u in range(8)]
    wdl = list(range(56))
    def wd_load():
        f = wdl.pop(0)
        if f == 0: A(f"s_mov_b32 s{sWDO}, s{sWDB}")
        elif f % 4 == 0: A(f"s_add_u32 s{sWDO}, s{sWDO}, 4096")
        A.vmem(f"buffer_load_dwordx4 {ar(4*f)}, v{vL16}, {srd(rWS)}, s{sWDO} offen offset:{(f%4)*1024} sc1", "wd")
    vOF8 = 208
    for jl in range(8): A.ds(f"ds_read_b128 {vr(vOF8+4*jl)}, v{vOXR} offset:{4096 + jl*512}", f"og{jl}")
    def stat_ops(t):
        L = []
        for k in range(4 * t, 4 * t + 4):
            L.append(lambda k=k: A(f"v_cndmask_b32 v{vY+k}, v{vPA+16+k}, v{vPA+k}, s[{sM0}:{sM0+1}]"))
        for k in range(4 * t, 4 * t + 4):
            if k == 0:
                L.append(lambda: A(f"v_mov_b32 v8, v{vY}")); L.append(lambda: A(f"v_mul_f32 v9, v{vY}, v{vY}"))
            else:
                L.append(lambda k=k: A(f"v_add_f32 v8, v8, v{vY+k}")); L.append(lambda k=k: A(f"v_fmac_f32 v9, v{vY+k}, v{vY+k}"))
        return L
    def pack_ops(t):
        return [(lambda k=k: A(f"v_cvt_pk_bf16_f32 v{vY+16+k}, v{vY+2*k}, v{vY+2*k+1}")) for k in (2 * t, 2 * t + 1)]
    pend = []; nm = 0; done_f = set()
    groups = [(0, 4, 1, 5), (2, 6), (3, 7)]
    for gi, grp in enumerate(groups):
        for jl in range(8):
            for ci, ctl in enumerate(grp):
                f = jl * 8 + ctl
                A.wait_lg(f"og{jl}")
                A(f"v_mfma_f32_16x16x32_bf16 {vr(vPA+4*ctl)}, {ar(4*f)}, {vr(vOF8+4*jl)}, {vr(vPA+4*ctl)}")
                done_f.add(f); nm += 1
                if nm % 5 == 2 and nm < cfg.op_vm * 5:
                    if gul: gu_dma(*gul.pop(0))
                    elif wdl[0] in done_f and wdl[0] != f: wd_load()
                elif pend and (jl > 1):
                    pend.pop(0)()
                    if pend: pend.pop(0)()
        for t in grp:
            if t < 4: pend += stat_ops(t) + (pack_ops(t) if gi < 2 else [])
    stamp("att_oproj")
    while pend: pend.pop(0)()
    A("s_nop 0")
    A(f"v_add_f32_dpp v8, v8, v8 row_ror:8 row_mask:0xf bank_mask:0xf")
    A(f"v_add_f32_dpp v9, v9, v9 row_ror:8 row_mask:0xf bank_mask:0xf")
    for sw in ("v_permlane16_swap_b32", "v_permlane32_swap_b32"):
        A("v_mov_b32 v10, v8")
        A("v_mov_b32 v11, v9")
        A("s_nop 0")
        A(f"{sw} v8, v10")
        A(f"{sw} v9, v11")
        A("v_add_f32 v8, v8, v10")
        A("v_add_f32 v9, v9, v11")
    A("s_mov_b64 exec, 0xff")
    A.ds("ds_write_b64 v13, v[8:9]")
    A("s_mov_b64 exec, -1")
    for th in pack_ops(3): th()
    A(f"s_mov_b32 s{sT1}, {hex(L_X1)}")
    A.vmem(f"buffer_store_dwordx4 {vr(vY+16)}, v{vRES}, {srd(rL)}, s{sT1} offen sc1", "st")
    A.vmem(f"buffer_store_dwordx4 {vr(vY+20)}, v{vRES}, {srd(rL)}, s{sT1} offen offset:2048 sc1", "st")
    A.wait_lg()
    A("s_barrier")
    A.ds("ds_read_b128 v[40:43], v14")
    A.ds("ds_read_b128 v[44:47], v14 offset:16")
    A(f"s_mov_b32 s{sT1}, {hex(f32(1.0/512))}")
    A.wait_lg()
    A("v_add_f32 v8, v40, v42")
    A("v_add_f32 v9, v41, v43")
    A("v_add_f32 v10, v44, v46")
    A("v_add_f32 v11, v45, v47")
    A("v_add_f32 v8, v8, v10")
    A("v_add_f32 v9, v9, v11")
    A(f"v_mul_f32 v8, s{sT1}, v8")
    A(f"v_mul_f32 v9, s{sT1}, v9")
    A("v_fma_f32 v9, -v8, v8, v9")
    A("v_max_f32 v9, 0, v9")
    A(f"v_add_f32 v9, {hex(f32(1e-5))}, v9")
    A("v_rsq_f32 v9, v9")
    A(f"s_mov_b32 s{sT1}, {hex(L_XN1)}")
    A("v_mul_f32 v8, v8, v9")
    for k in range(16):
        A(f"v_fma_f32 v{vY+k}, v{vY+k}, v9, -v8")
        if k % 2 == 1: A(f"v_cvt_pk_bf16_f32 v{40+k//2}, v{vY+k-1}, v{vY+k}")
        if k == 7: A.vmem(f"buffer_store_dwordx4 v[40:43], v{vRES}, {srd(rL)}, s{sT1} offen sc1", "st")
    A.vmem(f"buffer_store_dwordx4 v[44:47], v{vRES}, {srd(rL)}, s{sT1} offen offset:2048 sc1", "st")
    gul += [(4, u) for u in range(7)]
    for _ in range(cfg.ack_vm):
        if gul: gu_dma(*gul.pop(0))
        else: wd_load()
    vTKV_, aTK = 160, 224; ACC = [16, 32, 48, 64]; vWB = 80; NWB = 5; vHP = 120; vX1R = 128; vHA = 8
    vSB = [vL16, 9, 10]; vFE = 12; vFF = 13; vFR = 14
    def tk(s): return vr(vTKV_ + 4 * s) if s < 24 else ar(aTK + 4 * (s - 24))
    A("v_and_b32 v7, 3, v0")
    A(f"s_lshl_b32 s{sT0}, s{sBLK}, 2")
    A(f"s_add_u32 s{sT0}, s{sT0}, s{sW}")
    A(f"s_lshl_b32 s{sT1}, s{sT0}, 2")
    A(f"s_lshl_b32 s{sHO}, s{sT1}, 7")
    A(f"s_add_u32 s{sHO}, s{sHO}, {hex(flagbase(PH_ATT))}")
    A(f"v_add_u32 v{vSB[1]}, 0x10000, v{vL16}")
    A(f"v_add_u32 v{vSB[2]}, 0x20000, v{vL16}")
    A(f"s_mul_i32 s{sT2}, s{sT0}, 112")
    A(f"s_mul_i32 s{sT1}, s{sSL}, 7")
    A(f"s_add_u32 s{sT2}, s{sT2}, s{sT1}")
    A(f"s_lshl_b32 s{sT2}, s{sT2}, 10")
    A(f"s_add_u32 s{sT2}, s{sT2}, {hex(L_H)}")
    A(f"v_add_u32 v{vHA}, s{sT2}, v{vL16}")
    A(f"s_lshl_b32 s{sT0}, s{sT0}, 15")
    A(f"s_add_u32 s{sT0}, s{sT0}, {hex(L_XN1)}")
    A(f"s_lshr_b32 s{sT1}, s{sTB}, 1")
    A(f"s_lshl_b32 s{sT1}, s{sT1}, 2")
    A(f"s_add_u32 s{sT1}, s{sT1}, s{sW}")
    A(f"s_lshl_b32 s{sT1}, s{sT1}, 2")
    A(f"v_add_u32 v7, s{sT1}, v7")
    A("v_lshlrev_b32 v7, 7, v7")
    A(f"v_add_u32 v{vFE}, {hex(flagbase(PH_FF1E))}, v7")
    A(f"s_lshl_b32 s{sXB}, s{sT1}, 7")
    A(f"s_add_u32 s{sXB}, s{sXB}, {hex(flagbase(PH_FF1))}")
    publish(PH_ATT, sG, "st")
    stamp("att_pub")
    while gul: gu_dma(*gul.pop(0))
    gu_dma(4, 7)
    for _ in range(cfg.wd_s2): wd_load()
    assert ngu_att == 3

    s_spin(rL, sHO, 4, "s2")
    stamp("s2")
    def tk_load(s):
        if s % 4 == 0 and s: A(f"s_add_u32 s{sT0}, s{sT0}, 4096")
        A.vmem(f"buffer_load_dwordx4 {tk(s)}, v{vL16}, {srd(rL)}, s{sT0} offen offset:{(s%4)*1024} sc1", f"tk{s}")
    seq = [(j, s) for s in range(32) for j in range(3)] + [(j, s) for j in range(3, 7) for s in range(32)]
    acc_of = {0: 0, 1: 1, 2: 2, 3: 3, 4: 0, 5: 1, 6: 2}
    def w_read(k):
        off = gu_addr(*seq[k])
        A.ds(f"ds_read_b128 {vr(vWB+4*(k%NWB))}, v{vSB[off>>16]} offset:{off & 0xffff}", f"wb{k}")
    def h_epi(j):
        a = ACC[acc_of[j]]
        L = []
        for r in range(8):
            L.append(lambda r=r: A(f"v_max_f32 v{a+r}, 0, v{a+r}"))
            L.append(lambda r=r: A(f"v_mul_f32 v{a+r}, v{a+r}, v{a+8+r}"))
            if r % 2 == 1: L.append(lambda r=r: A(f"v_cvt_pk_bf16_f32 v{vHP+4*(j%2)+r//2}, v{a+r-1}, v{a+r}"))
        L.append(lambda: A.vmem(f"buffer_store_dwordx4 {vr(vHP+4*(j%2))}, v{vHA}, {srd(rL)}, s{sT1} offen offset:{(j%4)*1024} sc1", f"hst{j}"))
        return L
    extras = {k: [] for k in range(len(seq))}
    LOOK = NWB - 1
    k3 = 96
    NTK0 = cfg.tk0
    for s in range(NTK0): tk_load(s)
    for s in range(NTK0, 32): extras[(s - NTK0) * 2].append(lambda s=s: tk_load(s))
    ep = h_epi(0) + h_epi(1) + h_epi(2) + h_epi(3)
    for n, th in enumerate(ep): extras[k3 + 3 + (2 * n) // 3].append(th)
    for j in (4, 5):
        for n, th in enumerate(h_epi(j)): extras[k3 + 32 * (j - 2) + 3 + n // 2].append(th)
    g56 = [(5, u) for u in range(8)] + [(6, u) for u in range(8)]
    for n, e in enumerate(g56):
        extras[k3 + cfg.g56 * n].append(lambda e=e: gu_pre(*e))
        extras[k3 + 1 + cfg.g56 * n].insert(0, lambda e=e: gu_dma(*e, False))
    def x1_load():
        A(f"s_lshl_b32 s{sT0}, s{sTB}, 6")
        A(f"s_lshl_b32 s{sT2}, s{sCB}, 2")
        A(f"s_add_u32 s{sT0}, s{sT0}, s{sT2}")
        A(f"s_and_b32 s{sT2}, s{sW}, 1")
        A(f"s_lshl_b32 s{sT2}, s{sT2}, 1")
        A(f"s_add_u32 s{sT0}, s{sT0}, s{sT2}")
        A(f"s_lshr_b32 s{sT2}, s{sW}, 1")
        A(f"s_add_u32 s{sT0}, s{sT0}, s{sT2}")
        A(f"s_lshl_b32 s{sT0}, s{sT0}, 10")
        A(f"s_add_u32 s{sT0}, s{sT0}, {hex(L_X1)}")
        A(f"s_add_u32 s{sT2}, s{sT0}, 32768")
    split_later = [(x1_load, 82, 2)]
    extras[k3 + 50].append(lambda: A.vmem(f"buffer_load_dwordx4 {vr(vX1R)}, v{vL16}, {srd(rL)}, s{sT0} offen sc1", "x1"))
    extras[k3 + 53].append(lambda: A.vmem(f"buffer_load_dwordx4 {vr(vX1R+4)}, v{vL16}, {srd(rL)}, s{sT2} offen sc1", "x1"))
    slots = list(range((32 - NTK0) * 2 + 1, k3 - 2, 3))
    ntail = len(wdl) - len(slots)
    slots += [k3 + 58 + (n * (122 - 58)) // max(ntail, 1) for n in range(ntail)]
    nrem = len(wdl)
    assert len(slots) >= nrem, (len(slots), nrem)
    for n in range(nrem): extras[slots[n]].append(wd_load)
    def early_pub():
        A.wait_vm("hst4"); A("s_barrier"); flag_store(PH_FF1E, sID1)
    extras[k3 + cfg.epub].append(early_pub)
    extras[k3 + cfg.epoll].append(lambda: A.vmem(f"buffer_load_dword v{vFR}, v{vFE}, {srd(rL)}, 0 offen sc1", "fe"))
    def h_base():
        A(f"s_mul_i32 s{sHO}, s{sTB}, 224")
        A(f"s_mul_i32 s{sHS}, s{sW}, 28")
        A(f"s_add_u32 s{sHO}, s{sHO}, s{sHS}")
        A(f"s_lshl_b32 s{sHO}, s{sHO}, 10")
        A(f"s_add_u32 s{sHO}, s{sHO}, {hex(L_H)}")
    extras[k3 + 116].append(h_base)
    AC = [[16, 32], [48, 64]]; vHR = 156; NHR = 19; vRT = 232; vOA = 152; vRW = 153; vRR = 154; vRS = 136
    def ffn2_addrs():
        A(f"s_lshl_b32 s{sT0}, s{sW}, 11")
        A(f"v_add_u32 v{vRW}, s{sT0}, v{vL16}")
        A(f"s_lshl_b32 s{sT0}, s{sW}, 13")
        A(f"v_add_u32 v{vRR}, s{sT0}, v{vL16}")
        A(f"s_and_b32 s{sT3}, s{sW}, 1")
        A(f"s_lshl_b32 s{sT3}, s{sT3}, 1")
        A(f"s_lshr_b32 s{sT2}, s{sW}, 1")
        A(f"s_add_u32 s{sT3}, s{sT3}, s{sT2}")
        A(f"s_lshl_b32 s{sT2}, s{sCB}, 2")
        A(f"s_add_u32 s{sT3}, s{sT3}, s{sT2}")
        A(f"s_lshl_b32 s{sT0}, s{sTB}, 16")
        A(f"s_cmp_eq_u32 s{sLAYER}, 0")
        A("s_cselect_b64 vcc, -1, 0")
        A(f"s_cselect_b32 s{sT2}, 10, 5")
        A(f"s_lshl_b32 s{sT3}, s{sT3}, s{sT2}")
        A(f"s_add_u32 s{sT0}, s{sT0}, s{sT3}")
        A("v_and_b32 v6, 31, v0")
        A("v_bfe_u32 v7, v0, 5, 1")
        A("v_lshlrev_b32 v6, 10, v6")
        A("v_lshl_add_u32 v6, v7, 4, v6")
        A(f"v_cndmask_b32 v6, v6, v{vL16}, vcc")
        A(f"v_add_u32 v{vOA}, s{sT0}, v6")
    def split(fn, k0, per):
        B = A.L; A.L = []; fn(); ins = A.L; A.L = B
        units = []
        for ln in ins:
            if ln.startswith("s_cselect"): units[-1].append(ln)
            else: units.append([ln])
        for n in range(0, len(units), per):
            extras[k0 + n // per].append(lambda part=sum(units[n:n + per], []): A.L.extend(part))
    for e in split_later: split(*e)
    split(ffn2_addrs, 60, 2)
    split(w_dma_setup, 74, 2)
    for k_ in range(16): extras[k3 + cfg.epub + 1 + k_ // 2].append(lambda k_=k_: unpack(vRS + 8 * (k_ // 8), vX1R + 4 * (k_ // 8), k_ % 8))

    A(f"s_mov_b32 s{sT1}, 0")
    for k in range(LOOK): w_read(k)
    for k, (j, s) in enumerate(seq):
        if k == 0: A.wait_vm("tk0"); A.wait_lg("wb0")
        a = ACC[acc_of[j]]
        A(f"v_mfma_f32_32x32x16_bf16 {vr(a,16)}, {vr(vWB+4*(k%NWB))}, {tk(s)}, {vr(a,16) if s else 0}")
        if k + 1 < len(seq):
            A.wait_lg(f"wb{k+1}")
            if k + 1 < k3 and seq[k + 1][0] == 0: A.wait_vm(f"tk{seq[k+1][1]}")
        if k == k3: A("s_barrier")
        kn = k + LOOK
        if kn < len(seq):
            if kn == k3:
                A.wait_vm(["gu3", "gu4"]); A("s_barrier")
            if kn == k3 + 64:
                A.wait_vm(["gu5", "gu6"]); A("s_barrier")
            w_read(kn)
        if k in (2, k3 - 1, k3 + 63): fstamp(f"f1_k{k}")
        if k == k3 + 64: A(f"s_mov_b32 s{sT1}, 4096")
        for th in extras[k]: th()
    assert not wdl
    for th in h_epi(6): th()
    stamp("ffn1_mm")

    early = [7 * sl + j for sl in range(4) for j in range(5)]; late = [7 * sl + j for sl in range(4) for j in (5, 6)]
    ne = cfg.e1
    order = [(0, k) for k in early] + [(1, k) for k in early[:ne]] + [(0, k) for k in late] + [(1, k) for k in early[ne:]] + [(1, k) for k in late]
    nlate = 20 + ne; nA = 28 + ne
    def h_load(n):
        tt, k = order[n]
        A(f"s_add_u32 s{sHS}, s{sHO}, {tt*112*1024 + (k // 4) * 4096}")
        A.vmem(f"buffer_load_dwordx4 {vr(vHR+4*(n%NHR))}, v{vL16}, {srd(rL)}, s{sHS} offen offset:{(k%4)*1024} sc1", f"h{n}")
    NH0 = cfg.h0
    slow = A.newlabel("eslow"); join = A.newlabel("ejoin")
    A.wait_vm("fe")
    A(f"v_cmp_ne_u32 vcc, v{vFR}, v{vTAG}")
    A(f"s_cbranch_vccnz {slow}")
    sv = list(A.vm)
    for n in range(NH0): h_load(n)
    publish(PH_FF1, sID1, "hst6")
    A(f"s_branch {join}")
    A.label(slow)
    after = list(A.vm); A.vm = sv
    publish(PH_FF1, sID1, "hst6")
    spin(vFE, rL, "s3e", vFR); A.vm = []
    for n in range(NH0): h_load(n)
    assert A.vm == after
    A.label(join)
    stamp("ffn1_pub")
    def red_write(tt):
        L = []
        for own in range(4):
            a = AC[tt][own % 2] + 8 * (own // 2)
            for h in range(2):
                L.append(lambda a=a, own=own, h=h: A.ds(f"ds_write_b128 v{vRW}, {vr(a+4*h)} offset:{tt*32768 + own*8192 + h*1024}", f"rw{tt}"))
        return L
    def out_store(tt):
        A(f"s_mov_b32 s{sT2}, {tt*32768}")
        if cfg.out_plain:
            pl = A.newlabel("opl"); dn = A.newlabel("odn")
            A(f"s_cmp_eq_u32 s{sLAYER}, 0")
            A(f"s_cbranch_scc0 {pl}")
            A.vmem(f"buffer_store_dwordx4 {vr(92+4*tt)}, v{vOA}, {srd(rOUT)}, s{sT2} offen sc1", f"ost{tt}")
            A(f"s_branch {dn}")
            A.label(pl)
            A(f"buffer_store_dwordx4 {vr(92+4*tt)}, v{vOA}, {srd(rOUT)}, s{sT2} offen")
            A.label(dn)
        else:
            A.vmem(f"buffer_store_dwordx4 {vr(92+4*tt)}, v{vOA}, {srd(rOUT)}, s{sT2} offen sc1", f"ost{tt}")
    def red_final(tt):
        L = []
        for src in range(4):
            for h in range(2):
                d = (vRT + 8 * src + 4 * h) if src < 3 else (84 + 4 * h)
                L.append(lambda src=src, h=h, d=d: A.ds(f"ds_read_b128 {vr(d)}, v{vRR} offset:{tt*32768 + src*2048 + h*1024}", f"rr{tt}"))
        L.append(lambda: A.wait_lg(f"rr{tt}"))
        for r in range(8):
            L.append(lambda r=r: A(f"v_add_f32 v{vRT+r}, v{vRT+r}, v{vRT+8+r}"))
            L.append(lambda r=r: A(f"v_add_f32 v{84+r}, v{84+r}, v{vRT+16+r}"))
            L.append(lambda r=r: A(f"v_add_f32 v{vRT+r}, v{vRT+r}, v{vRS+8*tt+r}"))
        for r in range(8):
            L.append(lambda r=r: A(f"v_add_f32 v{vRT+r}, v{vRT+r}, v{84+r}"))
            if r % 2 == 1: L.append(lambda r=r: A(f"v_cvt_pk_bf16_f32 v{92+4*tt+r//2}, v{vRT+r-1}, v{vRT+r}"))
        L.append(lambda: out_store(tt))
        return L
    def red_last():
        dn = A.newlabel("rl")
        labs = [A.newlabel("rlw") for _ in range(4)]
        A("s_nop 9")
        A(f"s_cmp_eq_u32 s{sW}, 1"); A(f"s_cbranch_scc1 {labs[1]}")
        A(f"s_cmp_eq_u32 s{sW}, 2"); A(f"s_cbranch_scc1 {labs[2]}")
        A(f"s_cmp_eq_u32 s{sW}, 3"); A(f"s_cbranch_scc1 {labs[3]}")
        for wv in range(4):
            A.label(labs[wv])
            for own in [(wv + d) % 4 for d in (2, 1, 3)]:
                a = AC[1][own % 2] + 8 * (own // 2)
                for h in range(2):
                    A(f"ds_write_b128 v{vL16}, {vr(a+4*h)} offset:{32768 + own*8192 + ((wv - own) % 4)*2048 + h*1024}")
            a = AC[1][wv % 2] + 8 * (wv // 2)
            for r in range(8): A(f"v_add_f32 v{84+r}, v{a+r}, v{vRS+8+r}")
            if wv < 3: A(f"s_branch {dn}")
        A.label(dn)
        A.wait_lg()
        A("s_barrier")
        for src in range(3):
            for h in range(2):
                A.ds(f"ds_read_b128 {vr(vRT + 8*src + 4*h)}, v{vRR} offset:{32768 + (src+1)*2048 + h*1024}", f"r{src}")
        for src in range(3):
            A.wait_lg(f"r{src}")
            for r in range(8):
                A(f"v_add_f32 v{84+r}, v{84+r}, v{vRT+8*src+r}")
                if src == 2 and r % 2 == 1: A(f"v_cvt_pk_bf16_f32 v{96+r//2}, v{84+r-1}, v{84+r}")
        out_store(1)
    ex2 = {n: [] for n in range(56)}
    for i_, th in enumerate(red_write(0)): ex2[nA + 1 + i_ // 3].append(th)
    def rbar():
        A.wait_lg("rw0"); A("s_barrier")
    ex2[nA + 5].append(rbar)
    rf = red_final(0)
    for i_, th in enumerate(rf): ex2[min(nA + 5 + i_ // 8, 55)].append(th)
    def next_addrs():
        A("v_and_b32 v4, 63, v0")
        A("v_and_b32 v5, 15, v4")
        A("v_lshrrev_b32 v6, 4, v4")
        A("v_lshlrev_b32 v5, 4, v5")
        A("v_lshl_add_u32 v5, v6, 9, v5")
        A(f"s_lshl_b32 s{sT0}, s{sTB}, 16")
        A(f"s_and_b32 s{sT1}, s{sW}, 1")
        A(f"s_lshl_b32 s{sT1}, s{sT1}, 8")
        A(f"s_add_u32 s{sT0}, s{sT0}, s{sT1}")
        A(f"s_lshr_b32 s{sT1}, s{sW}, 1")
        A(f"s_lshl_b32 s{sT1}, s{sT1}, 13")
        A(f"s_add_u32 s{sT0}, s{sT0}, s{sT1}")
        A(f"v_add_u32 v{vXS}, s{sT0}, v5")
        qkv_addrs(False)
    extras = ex2
    split(next_addrs, 1, 6)
    ex2[cfg.fchk + 2].append(x_dma_setup)
    wl = [(c, n) for c in range(4) for n in range(5)]
    nxt_load = NH0
    ahead = cfg.h_ahead
    for n in range(56):
        tt, k = order[n]
        if n == 0: A.wait_vm("h0")
        for ct in range(2):
            A(f"v_mfma_f32_32x32x16_bf16 {vr(AC[tt][ct],16)}, {ar(4*(2*k+ct))}, {vr(vHR+4*(n%NHR))}, {vr(AC[tt][ct],16) if n not in (0, 20) else 0}")
            if ct == 1 and n < 55: A.wait_vm(f"h{n+1}")
            if nxt_load < 56 and nxt_load <= n + min(ahead, NHR - 1):
                if nxt_load == nlate:
                    if n < cfg.fchk: continue
                    s_spin(rL, sXB, 4, "s3f", issued=True)
                h_load(nxt_load); nxt_load += 1
            elif nxt_load == 56 and ct == 0 and len(wl) > cfg.w_tail:
                w_dma(*wl.pop(0))
        if n == cfg.fpos: s_issue(rL, sXB, 4)
        if n in (0, 19, nA - 1): fstamp(f"f2_n{n}")
        for th in ex2[n]: th()
    assert nxt_load == 56
    stamp("ffn2_mm")
    red_last()
    A(f"s_cmp_eq_u32 s{sLAYER}, 0")
    A("s_cbranch_scc0 L_FINISH")
    A.wait_vm("ost0")
    A("s_barrier")
    flag_store(PH_FF2E, sG)
    while wl: w_dma(*wl.pop(0))
    A(f"s_mov_b32 s{rXIN}, s{rOUT}")
    A(f"s_mov_b32 s{rXIN+1}, s{rOUT+1}")
    A(f"s_mov_b32 s{rOUT}, s{P_OUT}")
    A(f"s_mov_b32 s{rOUT+1}, s{P_OUT+1}")
    for r in range(4): A(f"v_mov_b32 v{vONE+r}, 0x3f803f80")
    A("v_and_b32 v5, 7, v0")
    A(f"s_lshl_b32 s{sT0}, s{sTB}, 3")
    A(f"v_add_u32 v5, s{sT0}, v5")
    A("v_lshlrev_b32 v5, 7, v5")
    A(f"v_add_u32 v6, {hex(flagbase(PH_FF2))}, v5")
    A(f"v_add_u32 v5, {hex(flagbase(PH_FF2E))}, v5")
    A(f"s_lshl_b32 s{sHO}, s{sTB}, 10")
    A(f"s_add_u32 s{sHO}, s{sHO}, {hex(flagbase(PH_FF2E))}")
    assert A.vm_n("wq1") > A.vm_n("ost1")
    publish(PH_FF2, sG, "ost1")
    stamp("ffn2_pub")
    for c in range(2):
        for th in guarded(tr_reads(c, False)): th()
    sk = A.newlabel("s4e")
    A(f"s_cmp_lg_u32 s{sW}, 0")
    A(f"s_cbranch_scc1 {sk}")
    s_spin(rL, sHO, 8, "s4e")
    A.label(sk)
    A("s_barrier")
    A.lg = ["?"] * 14
    stamp("s4e")
    for ch in range(2):
        for u in range(4): x_dma(ch, u, False)
    A.wait_vm(["wq2", "wq3"])
    A("s_barrier")
    sk = A.newlabel("s4i")
    A(f"s_add_u32 s{sHO}, s{sHO}, {(flagbase(PH_FF2) - flagbase(PH_FF2E)) & 0xffffffff}")
    A(f"s_cmp_lg_u32 s{sW}, 0")
    A(f"s_cbranch_scc1 {sk}")
    s_issue(rL, sHO, 8)
    A.label(sk)
    A.wait_lg()if False else None
    for th in tr_reads(2, False)[:7]: th()
    A.wait_lg()
    for th in tr_reads(2, False)[7:] + tr_reads(3, False)[:9]: th()
    A.wait_lg()
    for th in tr_reads(3, False)[9:]: th()
    A.wait_lg()
    sk = A.newlabel("s4f")
    A(f"s_cmp_lg_u32 s{sW}, 0")
    A(f"s_cbranch_scc1 {sk}")
    s_spin(rL, sHO, 8, "s4f", issued=True)
    A.label(sk)
    A.wait_vm("x0")
    A(f"s_mov_b32 s{sLAYER}, 1")
    A(f"s_add_u32 s{rL}, s{rL}, {hex(LSTRIDE)}")
    A(f"s_addc_u32 s{rL+1}, s{rL+1}, 0")
    A("s_branch L_QKV_X")

    A.label("L_FINISH")
    stamp("finish")
    if cfg.prof:
        A(f"s_lshl_b32 s{sT0}, s{sGW}, 8")
        A(f"s_add_u32 s{sT0}, s{sT0}, {hex(WS_PROF)}")
        A(f"v_lshrrev_b32 v4, 2, v{vL16}")
        A(f"buffer_store_dword v{vPROF}, v4, {srd(rWS)}, s{sT0} offen")
    A(f"s_cmp_lg_u32 s{sGW}, 0")
    A("s_cbranch_scc1 L_END")
    if cfg.dbg:
        A(f"v_readlane_b32 s{sT1}, v{vPROF}, 0")
        A("v_mov_b32 v5, 0")
        for n, j in enumerate(cfg.dbg):
            A(f"v_readlane_b32 s{sT0}, v{vPROF}, {j}")
            A("s_nop 3")
            A(f"s_sub_u32 s{sT0}, s{sT0}, s{sT1}")
            A(f"v_writelane_b32 v5, s{sT0}, {n}")
        mk_srd(rR0, P_DBG, 256)
        A(f"v_lshrrev_b32 v4, 2, v{vL16}")
        A(f"buffer_store_dword v5, v4, {srd(rR0)}, 0 offen")
    A("v_mov_b32 v4, 0")
    A("s_mov_b64 exec, 1")
    A(f"buffer_store_dword v{vTAG}, v4, {srd(rWS)}, 0 offen")
    A.label("L_END")
    A("s_endpgm")
    A.label("L_TIMEOUT")
    A("s_endpgm")

    for p in range(2):
        o = O[p]; q = Q[p]
        fS, fN, fK, fV0, fV1, fM, fA = 208, 224, 240, 244, 248, 252, 253
        A.label(f"L_FB{p}")
        A(f"v_mov_b32 v{fM}, 0xff800000")
        A(f"s_mov_b32 s{sT0}, {hex(L_KV)}")
        A.label(f"L_FB{p}_a")
        A(f"buffer_load_dwordx4 {vr(fK)}, v{vL16}, {srd(rL)}, s{sT0} offen sc1")
        A(f"s_add_u32 s{sT0}, s{sT0}, 1024")
        A("s_waitcnt vmcnt(0)")
        A(f"v_mfma_f32_32x32x16_bf16 {vr(fS,16)}, {vr(fK)}, {vr(q)}, 0")
        A("s_nop 7"); A("s_nop 7")
        for r in range(8): A(f"v_max3_f32 v{fM}, v{fS+2*r}, v{fS+2*r+1}, v{fM}")
        A(f"s_cmp_lg_u32 s{sT0}, {hex(L_KV + 0x10000)}")
        A(f"s_cbranch_scc1 L_FB{p}_a")
        A(f"v_mov_b32 v{fA}, v{fM}")
        A("s_nop 1")
        A(f"v_permlane32_swap_b32 v{fM}, v{fA}")
        A(f"v_max_f32 v{fM}, v{fM}, v{fA}")
        for r in range(16):
            A(f"v_sub_f32 v{fN+r}, 0, v{fM}")
            A(f"v_mov_b32 v{o+r}, 0")
        A("v_and_b32 v4, 63, v0")
        A("v_and_b32 v5, 27, v4")
        A("v_cmp_eq_u32 vcc, 16, v5")
        A("v_mov_b32 v6, 0x3f803f80")
        for r in range(8): A(f"v_cndmask_b32 v{fV0+r}, 0, v6, vcc")
        A("v_and_b32 v5, 15, v4")
        A("v_lshrrev_b32 v6, 5, v4")
        A("v_lshlrev_b32 v5, 4, v5")
        A("v_lshl_add_u32 v5, v6, 8, v5")
        A(f"v_add_u32 v5, 0x10000, v5")
        A(f"s_mov_b32 s{sT0}, {hex(L_KV)}")
        A(f"s_mov_b32 s{sM1}, 0x0000ffff")
        A(f"s_mov_b32 s{sM1+1}, 0x0000ffff")
        A.label(f"L_FB{p}_b")
        A(f"buffer_load_dwordx4 {vr(fK)}, v{vL16}, {srd(rL)}, s{sT0} offen sc1")
        A(f"s_mov_b64 exec, s[{sM1}:{sM1+1}]")
        A(f"buffer_load_dwordx4 {vr(fV0)}, v5, {srd(rL)}, s{sT0} offen sc1")
        A(f"buffer_load_dwordx4 {vr(fV1)}, v5, {srd(rL)}, s{sT0} offen offset:512 sc1")
        A("s_mov_b64 exec, -1")
        A(f"s_add_u32 s{sT0}, s{sT0}, 1024")
        A("s_waitcnt vmcnt(0)")
        A(f"v_mfma_f32_32x32x16_bf16 {vr(fS,16)}, {vr(fK)}, {vr(q)}, {vr(fN,16)}")
        A("s_nop 7"); A("s_nop 7")
        for r in range(16): A(f"v_exp_f32 v{fS+r}, v{fS+r}")
        A("s_nop 1")
        A(f"v_smfmac_f32_32x32x32_bf16 {vr(o,16)}, {vr(fV0)}, {vr(fS,8)}, v{vIDX}")
        A(f"v_smfmac_f32_32x32x32_bf16 {vr(o,16)}, {vr(fV1)}, {vr(fS+8,8)}, v{vIDX}")
        A(f"s_cmp_lg_u32 s{sT0}, {hex(L_KV + 0x10000)}")
        A(f"s_cbranch_scc1 L_FB{p}_b")
        A("s_nop 7"); A("s_nop 7")
        A(f"s_branch L_FBR{p}")
    A.label("L_CODE_END")
    lines, nfix, probs = check_hazards(A.L)
    for p_ in probs: print("HAZARD:", p_, file=sys.stderr)
    print(f"auto nops: {nfix}", file=sys.stderr)
    body = "\n".join(l if l.endswith(":") else "    " + l for l in lines)
    hdr = open("cdna_kernels/" + NAME + ".s.ref").read().split("; Override launch")[0]
    out = hdr + f"""; Persistent kernel: 256 workgroups (one per CU), flag-based hand-offs through d_ws. Generated by gen3.py.
; @launch grid=(256,1,1) block=(256,1,1) lds={LDS_TOTAL}
.amdgcn_target "amdgcn-amd-amdhsa--gfx950"
.text
.globl {NAME}_kernel
.p2align 8
.type {NAME}_kernel,@function
{NAME}_kernel:
L_CODE_START:
{body}
.section .rodata,"a"
.p2align 6
.amdhsa_kernel {NAME}_kernel
  .amdhsa_next_free_vgpr 512
  .amdhsa_next_free_sgpr 102
  .amdhsa_accum_offset 256
  .amdhsa_group_segment_fixed_size 0
  .amdhsa_kernarg_size 96
  .amdhsa_user_sgpr_count 2
  .amdhsa_user_sgpr_kernarg_segment_ptr 1
  .amdhsa_system_sgpr_workgroup_id_x 1
.end_amdhsa_kernel
"""
    return out

DEFAULTS = dict(prof=None, fine=False, dbg=None, t512=True, spin_limit=200000,
                warm_gu=True, warm_wd=True, warm0=22, warm_span=76, gu_att=[(96, 103), (96, 107), (112, 113)],
                op_vm=12, ack_vm=7, wd_s2=16, s4='vec',  flag_touch=True, out_plain=True, g56=2, wo0=18, tk0=10, epub=102, epoll=124, e1=12, h0=12, h_ahead=14, fpos=14, fchk=22, w_tail=7, n_up=5, touch0=True)
if __name__ == "__main__":
    import argparse, json, ast
    ap = argparse.ArgumentParser()
    ap.add_argument("-o", default="cdna_kernels/" + NAME + ".s")
    ap.add_argument("opts", nargs="*")
    a = ap.parse_args()
    cfg = Cfg()
    for k, v in DEFAULTS.items(): setattr(cfg, k, v)
    for o in a.opts:
        k, v = o.split("=", 1)
        assert k in DEFAULTS, k
        try: v = ast.literal_eval(v)
        except Exception: pass
        setattr(cfg, k, v)
    s = gen(cfg)
    open(a.o, "w").write(s)
    json.dump(cfg.stamps, open(a.o + ".stamps.json", "w"))
```

```python
import sys, math, struct
sys.path.insert(0, "gen")
from asmlib import Asm, check_hazards

NAME = "interleave_layers__grouped_kv_mqa__glu_gated_reglu__prompt"

WS_EPOCH = 0
WS_WFLAG = 0x1000
WS_PROF = 0x10000
WS_WOT = 0x100000
WS_WDT = 0x200000
WS_WGUT = 0x400000
WS_X2 = 0x800000
WS_L0 = 0x1000000
LSTRIDE = 0x1000000
L_Q = 0
L_KV = 0x200000
L_FLAG = 0x280000
L_X1 = 0x300000
L_XN1 = 0x500000
L_H = 0x700000
PH_QKV, PH_ATT, PH_FF1, PH_FF2, PH_FF1E, PH_FF2E = 0, 1, 2, 3, 4, 5
def flagbase(ph): return L_FLAG + ph * 256 * 128

LDS_WQ = 0x10000
LDS_WKV = 0x20000
LDS_ST = 0x24000
LDS_KVX = 0x25000
LDS_VT = 0x26000
LDS_V = 0x10000
LDS_ONES = 0x20000
LDS_OX = 0x22000
LDS_EX = 0x24000
LDS_LNX = 0x27f00
LDS_TOTAL = 160 * 1024

sWG = 2; sW = 3; sX = 4; sI = 5; sLAYER = 6; sTAG = 7
P_X, P_WQ, P_WK, P_WV, P_WO, P_BX, P_WG, P_WU, P_WD, P_OUT, P_DBG, P_WS = [8 + 2 * i for i in range(12)]
rXIN = 32; rWQ = 36; rWKV = 40; rL = 44; rWS = 48; rOUT = 52; rR0 = 56; rR1 = 60; rR2 = 64
sTB = 68; sCB = 69; sG = 70; sBLK = 71; sSL = 72; sID1 = 73; sXST = 74; sGW = 75
sT0 = 76; sT1 = 77; sT2 = 78; sT3 = 79; sT4 = 80; sT5 = 81
sCNT = 82; sGUL = 83
sM0 = 84; sM1 = 86; sM2 = 88
sWA = 90; sWB = 91
sTS = 92
sWDO = 94; sXA = 95; sXB = 99; sQO = 100; sKO = 101
sHO = 18; sHS = 19

def srd(n): return f"s[{n}:{n+3}]"
def vr(a, n=4): return f"v[{a}:{a+n-1}]"
def ar(a, n=4): return f"a[{a}:{a+n-1}]"
def f32(x): return struct.unpack("<I", struct.pack("<f", x))[0]

vL16 = 1; vTAG = 2; vPROF = 3; vCS = 100; vCKV = 104

class Cfg: pass

def gen(cfg):
    A = Asm()
    stamp_idx = [0]
    cfg.stamps = []
    clk = "s_memtime" if cfg.prof == "clk" else "s_memrealtime"
    def stamp(name):
        if not cfg.prof: return
        A(f"{clk} s[{sTS}:{sTS+1}]")
        A("s_waitcnt lgkmcnt(0)"); A.lg = []
        k = stamp_idx[0]; stamp_idx[0] += 1
        assert k < 32
        A(f"s_lshl_b32 s{sTS+1}, s{sLAYER}, 5")
        A(f"s_add_u32 s{sTS+1}, s{sTS+1}, {k}")
        A("s_mov_b32 s98, m0")
        A(f"s_mov_b32 m0, s{sTS+1}")
        A("s_nop 1")
        A(f"v_writelane_b32 v{vPROF}, s{sTS}, m0")
        A("s_mov_b32 m0, s98")
        cfg.stamps.append(name)
    def fstamp(name):
        if cfg.fine: stamp(name)

    def spin(vaddr, r, name, tmp=4):
        lp = A.newlabel("poll_" + name); dn = A.newlabel("polld_" + name)
        A(f"s_mov_b32 s{sCNT}, {cfg.spin_limit}")
        A.label(lp)
        A(f"buffer_load_dword v{tmp}, v{vaddr}, {srd(r)}, 0 offen sc1")
        A("s_waitcnt vmcnt(0)")
        A(f"v_cmp_ne_u32 vcc, v{tmp}, v{vTAG}")
        A(f"s_cbranch_vccz {dn}")
        A(f"s_sub_u32 s{sCNT}, s{sCNT}, 1")
        A(f"s_cmp_lg_u32 s{sCNT}, 0")
        A(f"s_cbranch_scc1 {lp}")
        A("s_branch L_TIMEOUT")
        A.label(dn)
    def poll(vaddr, name, tmp=4):
        spin(vaddr, rL, name, tmp); A.vm = []
    sPF = 56
    def s_issue(r, sbase, n):
        for q in range(n): A(f"s_buffer_load_dword s{sPF+q}, {srd(r)}, s{sbase} offset:{q*128} glc")
    def s_test(n):
        A("s_waitcnt lgkmcnt(0)"); A.lg = []
        for q in range(n): A(f"s_xor_b32 s{sPF+q}, s{sPF+q}, s{sTAG}")
        m = n
        while m > 1:
            for q in range(m // 2): A(f"s_or_b32 s{sPF+q}, s{sPF+q}, s{sPF+q+m//2}")
            m //= 2
    def s_spin(r, sbase, n, name, issued=False):
        lp = A.newlabel("sp_" + name); dn = A.newlabel("spd_" + name); ck = A.newlabel("spc_" + name)
        A(f"s_mov_b32 s{sCNT}, {cfg.spin_limit}")
        if issued: A(f"s_branch {ck}")
        A.label(lp)
        s_issue(r, sbase, n)
        A(f"s_sub_u32 s{sCNT}, s{sCNT}, 1")
        A("s_cbranch_scc1 L_TIMEOUT")
        A.label(ck)
        s_test(n)
        A(f"s_cbranch_scc1 {lp}")
    def check_or_spin(vres, vaddr, r, tag, name):
        ok = A.newlabel("ok_" + name)
        A.wait_vm(tag)
        A(f"v_cmp_ne_u32 vcc, v{vres}, v{vTAG}")
        A(f"s_cbranch_vccz {ok}")
        spin(vaddr, r, name, vres)
        A.label(ok)
    def flag_store(phase, sid, tmp=4):
        sk = A.newlabel("pub")
        A(f"s_cmp_lg_u32 s{sW}, 0")
        A(f"s_cbranch_scc1 {sk}")
        A(f"s_lshl_b32 s{sCNT}, s{sid}, 7")
        A(f"s_add_u32 s{sCNT}, s{sCNT}, {hex(flagbase(phase))}")
        A(f"v_mov_b32 v{tmp}, 0")
        A("s_mov_b64 exec, 1")
        A(f"buffer_store_dword v{vTAG}, v{tmp}, {srd(rL)}, s{sCNT} offen sc1")
        A("s_mov_b64 exec, -1")
        A.label(sk)
    def publish(phase, sid, tags, tmp=4):
        A.wait_vm(tags)
        A("s_barrier")
        flag_store(phase, sid, tmp)
    def unpack(dst, src, k):
        if k % 2 == 0: A(f"v_lshlrev_b32 v{dst+k}, 16, v{src+k//2}")
        else: A(f"v_and_b32 v{dst+k}, 0xffff0000, v{src+k//2}")
    def mk_srd(r, p, size, add=0):
        if add:
            A(f"s_add_u32 s{r}, s{p}, {hex(add)}")
            A(f"s_addc_u32 s{r+1}, s{p+1}, 0")
        else:
            A(f"s_mov_b32 s{r}, s{p}")
            A(f"s_mov_b32 s{r+1}, s{p+1}")
        A(f"s_mov_b32 s{r+2}, {hex(size)}")
        A(f"s_mov_b32 s{r+3}, 0x20000")

    vWSe, vWSo = 11, 155
    def w_dma_setup():
        A("v_and_b32 v4, 63, v0")
        A("v_lshrrev_b32 v5, 3, v4")
        A("v_bfe_u32 v6, v4, 4, 1")
        A("v_lshlrev_b32 v6, 1, v6")
        A("v_and_b32 v4, 7, v4")
        A("v_xor_b32 v4, v4, v6")
        A("v_lshlrev_b32 v4, 4, v4")
        A(f"v_lshl_add_u32 v{vWSe}, v5, 10, v4")
        A(f"v_xor_b32 v{vWSo}, 64, v{vWSe}")
        A(f"s_lshl_b32 s{sWA}, s{sW}, 15")
        A(f"s_lshl_b32 s{sWB}, s{sCB}, 7")
        A(f"s_add_u32 s{sWA}, s{sWA}, s{sWB}")
        A(f"s_lshl_b32 s{sWB}, s{sW}, 12")
        A(f"s_add_u32 s{sWB}, s{sWB}, {LDS_WQ}")
    def w_dma(c, n):
        if n < 4:
            A(f"s_mov_b32 m0, s{sWB}")
            A(f"s_add_u32 s{sWB}, s{sWB}, {1024 if n < 3 else 16384 - 3072}")
            A.vmem(f"buffer_load_dwordx4 v{vWSe if n % 2 == 0 else vWSo}, {srd(rWQ)}, s{sWA} offen lds", f"wq{c}")
            A(f"s_add_u32 s{sWA}, s{sWA}, {8192 if n < 3 else 131072 - 3 * 8192}")
        else:
            A(f"s_lshl_b32 s{sCNT}, s{sW}, 10")
            A(f"s_add_u32 m0, s{sCNT}, {LDS_WKV + c*4096}")
            A(f"s_add_u32 s{sCNT}, s{sCNT}, {c*4096}")
            A.vmem(f"buffer_load_dwordx4 v{vL16}, {srd(rWKV)}, s{sCNT} offen lds", f"wq{c}")
    vXS = 12
    def x_dma_setup():
        A(f"s_and_b32 s{sXB}, s{sW}, 1")
        A(f"s_lshl_b32 s{sXB}, s{sXB}, 14")
        A(f"s_lshr_b32 s{sXA}, s{sW}, 1")
        A(f"s_lshl_b32 s{sXA}, s{sXA}, 12")
        A(f"s_add_u32 s{sXB}, s{sXB}, s{sXA}")
    def x_dma(ch, u, layer0):
        st, c = ch // 2, ch % 2
        A(f"s_add_u32 m0, s{sXB}, {st*32768 + (8*c + u)*1024}")
        A(f"s_mov_b32 s{sXA}, {st*32768 + (8*c + u)*(64 if layer0 else 2048)}")
        A.vmem(f"buffer_load_dwordx4 v{vXS}, {srd(rXIN)}, s{sXA} offen{'' if layer0 else ' sc1'} lds", f"x{ch}")

    A(f"s_cmp_ge_u32 s{sWG}, 256")
    A("s_cbranch_scc1 L_END")
    if cfg.prof: A(f"{clk} s[96:97]")
    A("s_load_dwordx16 s[8:23], s[0:1], 0")
    A("s_load_dwordx8 s[24:31], s[0:1], 64")
    A(f"s_getpc_b64 s[{sM0}:{sM0+1}]")
    A(f"s_and_b32 s{sM0}, s{sM0}, 0xffffffc0")
    A(f"v_and_b32 v4, 63, v0")
    A(f"v_lshlrev_b32 v{vL16}, 4, v4")
    A(f"v_lshrrev_b32 v5, 6, v0")
    A(f"s_and_b32 s{sX}, s{sWG}, 7")
    A(f"s_lshr_b32 s{sI}, s{sWG}, 3")
    A(f"v_readfirstlane_b32 s{sW}, v5")
    A(f"s_and_b32 s{sT0}, s{sI}, 1")
    A(f"s_lshl_b32 s{sT0}, s{sT0}, 15")
    A(f"v_lshlrev_b32 v6, 7, v0")
    A(f"v_add_u32 v6, s{sT0}, v6")
    A(f"v_min_u32 v6, L_CODE_END-L_CODE_START-64, v6")
    A(f"global_load_dword v248, v6, s[{sM0}:{sM0+1}]")
    A.vm.append("code")
    A(f"s_lshr_b32 s{sT0}, s{sI}, 3")
    A(f"s_lshl_b32 s{sTB}, s{sX}, 2")
    A(f"s_add_u32 s{sTB}, s{sTB}, s{sT0}")
    A(f"s_and_b32 s{sCB}, s{sI}, 7")
    w_dma_setup()
    A(f"s_mov_b32 s{sLAYER}, 0")
    if cfg.prof: A(f"v_mov_b32 v{vPROF}, 0")
    A("s_waitcnt lgkmcnt(0)")
    if cfg.prof:
        A(f"v_writelane_b32 v{vPROF}, s96, 0")
        stamp_idx[0] = 1; cfg.stamps.append("entry")
    mk_srd(rWQ, P_WQ, 512 * 512 * 2)
    mk_srd(rXIN, P_X, 2048 * 512 * 2)
    A(f"s_cmp_eq_u32 s{sCB}, 0")
    A(f"s_cselect_b32 s{rWKV}, s{P_WK}, s{P_WV}")
    A(f"s_cselect_b32 s{rWKV+1}, s{P_WK+1}, s{P_WV+1}")
    A(f"s_mov_b32 s{rWKV+2}, {512*16*2}")
    A(f"s_mov_b32 s{rWKV+3}, 0x20000")
    if cfg.touch0:
        A(f"s_lshl_b32 s{sT0}, s{sI}, 2")
        A(f"s_add_u32 s{sT0}, s{sT0}, s{sW}")
        A(f"v_lshlrev_b32 v4, 3, v{vL16}")
        A(f"s_lshl_b32 s{sT1}, s{sT0}, 12")
        A("v_and_b32 v5, 0xfff, v4")
        A.vmem(f"buffer_load_dword v249, v5, {srd(rWQ)}, s{sT1} offen", "t0")
        A(f"s_lshl_b32 s{sT1}, s{sT0}, 11")
        A(f"s_lshl_b32 s{sT0}, s{sX}, 18")
        A(f"s_add_u32 s{sT1}, s{sT1}, s{sT0}")
        A("v_and_b32 v5, 0x7ff, v4")
        A.vmem(f"buffer_load_dword v249, v5, {srd(rXIN)}, s{sT1} offen", "t0")
        A(f"s_and_b32 s{sT1}, s{sW}, 1")
        A(f"s_lshl_b32 s{sT1}, s{sT1}, 13")
        A.vmem(f"buffer_load_dword v249, v4, {srd(rWKV)}, s{sT1} offen", "t0")
    w_dma(0, 0); w_dma(0, 1)
    A(f"s_load_dword s{sTAG}, s[{P_WS}:{P_WS+1}], {WS_EPOCH}")
    main_L, main_vm = A.L, A.vm
    A.L, A.vm = [], []
    A("v_and_b32 v4, 63, v0")
    A("v_lshrrev_b32 v5, 2, v4")
    A("v_lshrrev_b32 v6, 4, v4")
    A("v_sub_u32 v6, 0, v6")
    A("v_xor_b32 v4, v4, v6")
    A("v_and_b32 v4, 3, v4")
    A("v_lshlrev_b32 v4, 4, v4")
    A(f"v_lshl_add_u32 v{vXS}, v5, 10, v4")
    A(f"s_lshl_b32 s{sT0}, s{sTB}, 16")
    A(f"s_and_b32 s{sT1}, s{sW}, 1")
    A(f"s_lshl_b32 s{sT1}, s{sT1}, 14")
    A(f"s_add_u32 s{sT0}, s{sT0}, s{sT1}")
    A(f"s_lshr_b32 s{sT1}, s{sW}, 1")
    A(f"s_lshl_b32 s{sT1}, s{sT1}, 8")
    A(f"s_add_u32 s{sT0}, s{sT0}, s{sT1}")
    A(f"v_add_u32 v{vXS}, s{sT0}, v{vXS}")
    x_dma_setup()
    A(f"s_lshl_b32 s{sG}, s{sX}, 5")
    A(f"s_add_u32 s{sG}, s{sG}, s{sI}")
    if cfg.t512:
        A(f"s_lshr_b32 s{sT0}, s{sI}, 3")
        A(f"s_lshr_b32 s{sBLK}, s{sX}, 1")
        A(f"s_lshl_b32 s{sBLK}, s{sBLK}, 2")
        A(f"s_add_u32 s{sBLK}, s{sBLK}, s{sT0}")
        A(f"s_and_b32 s{sSL}, s{sX}, 1")
        A(f"s_lshl_b32 s{sSL}, s{sSL}, 3")
        A(f"s_add_u32 s{sSL}, s{sSL}, s{sCB}")
    else:
        A(f"s_lshr_b32 s{sBLK}, s{sG}, 4")
        A(f"s_and_b32 s{sSL}, s{sG}, 15")
    A(f"s_lshl_b32 s{sID1}, s{sBLK}, 4")
    A(f"s_add_u32 s{sID1}, s{sID1}, s{sSL}")
    A(f"s_lshl_b32 s{sGW}, s{sWG}, 2")
    A(f"s_add_u32 s{sGW}, s{sGW}, s{sW}")
    A(f"s_lshl_b32 s{sGUL}, s{sW}, 15")
    mk_srd(rL, P_WS, LSTRIDE, WS_L0)
    mk_srd(rWS, P_WS, WS_L0)
    mk_srd(rOUT, P_WS, 2048 * 512 * 2, WS_X2)
    vRAW = 224; vRA = 250; vRB = 251
    A("v_and_b32 v4, 63, v0")
    A("v_lshrrev_b32 v5, 3, v4")
    A("v_and_b32 v4, 7, v4")
    A("v_lshlrev_b32 v4, 4, v4")
    A(f"v_lshl_add_u32 v{vRB}, v5, 10, v4")
    A("v_mul_u32_u24 v5, 3584, v5")
    A(f"v_add_u32 v{vRA}, v5, v4")
    A(f"s_cmp_ge_u32 s{sWG}, 224")
    A("s_cbranch_scc1 L_RAW_WO")
    mk_srd(rR0, P_WG, 512 * 1792 * 2)
    mk_srd(rR1, P_WU, 512 * 1792 * 2)
    mk_srd(rR2, P_WD, 512 * 1792 * 2)
    A(f"s_mul_i32 s{sT0}, s{sGW}, 2341")
    A(f"s_lshr_b32 s{sT0}, s{sT0}, 16")
    A(f"s_mul_i32 s{sT1}, s{sT0}, 28")
    A(f"s_sub_u32 s{sT1}, s{sGW}, s{sT1}")
    A(f"s_mul_i32 s{sT2}, s{sT0}, {16*3584}")
    A(f"s_lshl_b32 s{sT1}, s{sT1}, 7")
    A(f"s_add_u32 s{sT2}, s{sT2}, s{sT1}")
    A(f"s_add_u32 s{sT3}, s{sT2}, {8*3584}")
    A(f"s_mov_b32 s{sHO}, s{sT2}")
    A(f"s_mov_b32 s{sHS}, s{sT3}")
    A(f"s_lshr_b32 s{sT4}, s{sGW}, 3")
    A(f"s_lshl_b32 s{sT4}, s{sT4}, 14")
    A(f"s_and_b32 s{sT1}, s{sGW}, 7")
    A(f"s_lshl_b32 s{sT1}, s{sT1}, 7")
    A(f"s_add_u32 s{sT4}, s{sT4}, s{sT1}")
    A(f"s_add_u32 s{sT5}, s{sT4}, 8192")
    A("s_branch L_RAW_DONE")
    A.label("L_RAW_WO")
    mk_srd(rR0, P_WO, 512 * 512 * 2)
    mk_srd(rR1, P_WO, 512 * 512 * 2)
    mk_srd(rR2, P_WO, 512 * 512 * 2)
    A(f"v_mov_b32 v{vRA}, v{vRB}")
    A(f"s_sub_u32 s{sT0}, s{sGW}, 896")
    A(f"s_lshr_b32 s{sT2}, s{sT0}, 3")
    A(f"s_lshl_b32 s{sT2}, s{sT2}, 15")
    A(f"s_and_b32 s{sT1}, s{sT0}, 7")
    A(f"s_lshl_b32 s{sT1}, s{sT1}, 7")
    A(f"s_add_u32 s{sT2}, s{sT2}, s{sT1}")
    A(f"s_add_u32 s{sT3}, s{sT2}, 8192")
    A(f"s_add_u32 s{sHO}, s{sT2}, 16384")
    A(f"s_add_u32 s{sHS}, s{sT2}, 24576")
    A(f"s_mov_b32 s{sT4}, s{sT2}")
    A(f"s_mov_b32 s{sT5}, s{sT2}")
    A.label("L_RAW_DONE")
    def raw_load(n):
        r, so, va = [(rR0, sT2, vRA), (rR0, sT3, vRA), (rR1, sHO, vRA), (rR1, sHS, vRA), (rR2, sT4, vRB), (rR2, sT5, vRB)][n]
        A.vmem(f"buffer_load_dwordx4 {vr(vRAW+4*n)}, v{va}, {srd(r)}, s{so} offen{' nt' if cfg.nt_raw else ''}", "raw")

    aWQ, aWKV, aWKO = 0, 64, 96
    QA = [[16, 20], [24, 28]]; GA = [32, 36]; UA = [40, 44]; KA = [48, 52]; vONE = 64
    vXF = 128; NXF = 16
    vTQ = [8, 9]; vTK = [120, 121]; vXR = [[108, 109], [110, 111]]
    vSTW, vSTR, vQST, vKVS, vVTW, vVTR, vKXW, vKXR = 112, [113, 114], 115, 116, 117, 118, 119, 122
    sHF = 21; sPAR = 22; sMH = 24
    def qkv_addrs(layer0):
        A(f"s_lshr_b32 s{sHF}, s{sW}, 1")
        A(f"s_and_b32 s{sPAR}, s{sW}, 1")
        A("v_and_b32 v4, 63, v0")
        A("v_and_b32 v5, 15, v4")
        A("v_lshrrev_b32 v6, 4, v4")
        if layer0:
            A("v_lshrrev_b32 v7, 2, v5")
            A("v_sub_u32 v7, 0, v7")
            A("v_xor_b32 v7, v7, v6")
            A("v_and_b32 v7, 3, v7")
            A("v_lshlrev_b32 v7, 4, v7")
            A("v_lshl_add_u32 v7, v5, 6, v7")
        else:
            A(f"v_mov_b32 v7, v{vL16}")
        A(f"s_lshl_b32 s{sT0}, s{sPAR}, 14")
        A(f"s_lshl_b32 s{sT1}, s{sHF}, 10")
        A(f"s_add_u32 s{sT0}, s{sT0}, s{sT1}")
        A(f"v_add_u32 v{vXR[0][0]}, s{sT0}, v7")
        A(f"v_xor_b32 v{vXR[0][1]}, 0x400, v{vXR[0][0]}")
        A(f"v_xor_b32 v{vXR[1][0]}, 0x4000, v{vXR[0][0]}")
        A(f"v_xor_b32 v{vXR[1][1]}, 0x4400, v{vXR[0][0]}")
        A(f"s_lshl_b32 s{sT0}, s{sPAR}, 8")
        A(f"s_add_u32 s{sT0}, s{sT0}, {LDS_ST}")
        A(f"v_lshl_add_u32 v{vSTR[0]}, v5, 4, s{sT0}")
        A(f"v_xor_b32 v{vSTR[1]}, 0x100, v{vSTR[0]}")
        A(f"s_lshl_b32 s{sT1}, s{sHF}, 3")
        A(f"v_add_u32 v{vSTW}, s{sT1}, v{vSTR[0]}")
        A("v_lshrrev_b32 v7, 2, v5")
        A("v_cmp_eq_u32 vcc, v6, v7")
        A(f"v_lshlrev_b32 v7, 3, v4")
        A(f"v_add_u32 v7, {LDS_ST + 1024}, v7")
        A(f"v_cndmask_b32 v{vSTW}, v7, v{vSTW}, vcc")
        A("v_and_b32 v7, 3, v4")
        A(f"v_cmp_eq_u32 s[{sM0}:{sM0+1}], 1, v7")
        A(f"v_cmp_eq_u32 s[{sM1}:{sM1+1}], 2, v7")
        A(f"v_cmp_eq_u32 s[{sM2}:{sM2+1}], 3, v7")
        A(f"s_lshl_b32 s{sT0}, s{sW}, 10")
        A(f"s_add_u32 s{sT0}, s{sT0}, {LDS_KVX}")
        A(f"v_add_u32 v{vKXR}, s{sT0}, v{vL16}")
        A(f"v_xor_b32 v{vKXW}, 0x800, v{vKXR}")
        A(f"s_lshl_b32 s{sT0}, s{sW}, 9")
        A(f"s_add_u32 s{sT0}, s{sT0}, {LDS_VT}")
        A(f"v_lshl_add_u32 v{vVTW}, v5, 5, s{sT0}")
        A(f"v_lshl_add_u32 v{vVTW}, v6, 3, v{vVTW}")
        A("v_lshrrev_b32 v7, 2, v5")
        A("v_lshl_add_u32 v7, v6, 2, v7")
        A(f"v_lshl_add_u32 v{vVTR}, v7, 5, s{sT0}")
        A("v_and_b32 v7, 1, v4")
        A(f"v_lshl_add_u32 v{vVTR}, v7, 4, v{vVTR}")
        A("v_bfe_u32 v7, v4, 1, 1")
        A(f"v_lshl_add_u32 v{vVTR}, v7, 3, v{vVTR}")
        A(f"s_lshl_b32 s{sT0}, s{sTB}, 11")
        A(f"s_lshl_b32 s{sT1}, s{sHF}, 10")
        A(f"s_add_u32 s{sKO}, s{sT0}, s{sT1}")
        A(f"s_lshl_b32 s{sT1}, s{sPAR}, 8")
        A(f"s_add_u32 s{sKO}, s{sKO}, s{sT1}")
        A(f"s_lshl_b32 s{sT1}, s{sW}, 9")
        A(f"s_add_u32 s{sT0}, s{sT0}, s{sT1}")
        A(f"s_add_u32 s{sT0}, s{sT0}, 0x10000")
        A(f"s_cmp_eq_u32 s{sCB}, 0")
        A(f"s_cselect_b32 s{sKO}, s{sKO}, s{sT0}")
        A(f"s_cselect_b32 s{sT1}, 9, 8")
        A(f"s_add_u32 s{sKO}, s{sKO}, {hex(L_KV)}")
        A("v_lshrrev_b32 v7, 1, v6")
        A(f"v_lshlrev_b32 v7, s{sT1}, v7")
        A(f"v_lshl_add_u32 v{vKVS}, v5, 4, v7")
        A("v_and_b32 v7, 1, v6")
        A(f"v_xor_b32 v7, s{sPAR}, v7")
        A(f"v_lshlrev_b32 v{vQST}, 14, v7")
        A("v_lshrrev_b32 v7, 3, v5")
        A(f"v_lshl_add_u32 v{vQST}, v7, 13, v{vQST}")
        A("v_lshrrev_b32 v7, 1, v6")
        A(f"v_lshl_add_u32 v{vQST}, v7, 9, v{vQST}")
        A("v_and_b32 v7, 7, v5")
        A(f"v_lshl_add_u32 v{vQST}, v7, 4, v{vQST}")
        A(f"s_lshl_b32 s{sQO}, s{sTB}, 16")
        A(f"s_lshl_b32 s{sT0}, s{sCB}, 10")
        A(f"s_add_u32 s{sQO}, s{sQO}, s{sT0}")
        A(f"s_lshl_b32 s{sT0}, s{sW}, 7")
        A(f"s_add_u32 s{sQO}, s{sQO}, s{sT0}")
        A("v_lshrrev_b32 v7, 2, v5")
        A("v_lshl_add_u32 v7, v6, 3, v7")
        A("v_and_b32 v4, 3, v4")
        A(f"s_lshl_b32 s{sT0}, s{sHF}, 10")
        A(f"s_add_u32 s{sT0}, s{sT0}, {LDS_WKV}")
        A(f"v_lshl_add_u32 v{vTK[0]}, v7, 5, s{sT0}")
        A(f"v_lshl_add_u32 v{vTK[0]}, v4, 3, v{vTK[0]}")
        A(f"v_xor_b32 v{vTK[1]}, 0x400, v{vTK[0]}")
        A("v_lshrrev_b32 v5, 3, v5")
        A("v_and_b32 v6, 1, v6")
        A("v_lshl_add_u32 v5, v6, 1, v5")
        A(f"v_xor_b32 v5, s{sW}, v5")
        A(f"s_lshl_b32 s{sT0}, s{sHF}, 12")
        A(f"s_add_u32 s{sT0}, s{sT0}, {LDS_WQ}")
        A(f"v_lshl_add_u32 v{vTQ[0]}, v7, 7, s{sT0}")
        A(f"v_lshl_add_u32 v{vTQ[0]}, v5, 5, v{vTQ[0]}")
        A(f"v_lshl_add_u32 v{vTQ[0]}, v4, 3, v{vTQ[0]}")
        A(f"v_xor_b32 v{vTQ[1]}, 0x1000, v{vTQ[0]}")
        A(f"s_cmp_eq_u32 s{sHF}, 1")
        A(f"s_cselect_b64 s[{sMH}:{sMH+1}], -1, 0")
    def akv(p): return (aWKV if p % 2 == 0 else aWKO) + 4 * (p // 2)
    def tr_reads(c, layer0):
        L = []
        for p in range(4 * c, 4 * c + 4):
            L.append(lambda p=p: A.ds(f"ds_read_b64_tr_b16 {ar(aWQ+4*p, 2)}, v{vTQ[p%2]} offset:{(p&~1)*4096}", f"w{p}"))
            L.append(lambda p=p: A.ds(f"ds_read_b64_tr_b16 {ar(aWQ+4*p+2, 2)}, v{vTQ[p%2]} offset:{(p&~1)*4096+512}", f"w{p}"))
            if layer0 or p % 2 == 0:
                L.append(lambda p=p: A.ds(f"ds_read_b64_tr_b16 {ar(akv(p), 2)}, v{vTK[p%2]} offset:{(p&~1)*1024}", f"w{p}"))
                L.append(lambda p=p: A.ds(f"ds_read_b64_tr_b16 {ar(akv(p)+2, 2)}, v{vTK[p%2]} offset:{(p&~1)*1024+128}", f"w{p}"))
        return L
    def lds_guard():
        if len(A.lg) >= 14:
            n = 12
            A(f"s_waitcnt lgkmcnt({n})"); A.lg = A.lg[-n:]
    def guarded(L): return [(lambda th=th: (lds_guard(), th())) for th in L]

    if cfg.flag_touch:
        A("v_and_b32 v4, 7, v0")
        A("v_min_u32 v4, 5, v4")
        A("v_bfe_u32 v5, v0, 3, 1")
        A("v_and_b32 v6, 1, v4")
        A("v_cmp_eq_u32 vcc, 0, v4")
        A(f"v_mov_b32 v7, s{sG}")
        A(f"v_mov_b32 v8, s{sID1}")
        A("v_cndmask_b32 v6, v6, 1, vcc")
        A("v_cmp_eq_u32 vcc, 1, v6")
        A("v_lshlrev_b32 v4, 15, v4")
        A("v_lshl_add_u32 v4, v5, 24, v4")
        A("v_cndmask_b32 v7, v8, v7, vcc")
        A("v_lshl_add_u32 v4, v7, 7, v4")
        A(f"s_mov_b32 s{sT0}, {hex(WS_L0 + L_FLAG)}")
        A(f"s_mov_b32 s{rWS+2}, {hex(WS_L0 + 2 * LSTRIDE)}")
        A.vmem(f"buffer_load_dword v249, v4, {srd(rWS)}, s{sT0} offen", "ft")
        A(f"s_lshl_b32 s{sT0}, s{sWG}, 4")
        A(f"s_add_u32 s{sT0}, s{sT0}, {WS_WFLAG}")
        A("v_mov_b32 v4, 0")
        A.vmem(f"buffer_load_dword v249, v4, {srd(rWS)}, s{sT0} offen", "ft")
    qkv_addrs(True)
    for r in range(4): A(f"v_mov_b32 v{vONE+r}, 0x3f803f80")
    QS = 0.25 * math.log2(math.e)
    def stat_write(st):
        L = []
        L.append(lambda: A(f"v_cndmask_b32 v57, v{GA[st]}, v{GA[st]+1}, s[{sM0}:{sM0+1}]"))
        L.append(lambda: A(f"v_cndmask_b32 v57, v57, v{GA[st]+2}, s[{sM1}:{sM1+1}]"))
        L.append(lambda: A(f"v_cndmask_b32 v57, v57, v{GA[st]+3}, s[{sM2}:{sM2+1}]"))
        L.append(lambda: A(f"v_mov_b32 v56, v{UA[st]}"))
        L.append(lambda: A.ds(f"ds_write_b64 v{vSTW}, v[56:57] offset:{st*512}", f"sw{st}"))
        return L
    SR = [68, 72]; MU = [[76, 78], [80, 82]]
    def stat_read(st):
        return [(lambda sl=sl: A.ds(f"ds_read_b128 {vr(SR[sl])}, v{vSTR[sl]} offset:{st*512}", f"sr{st}")) for sl in range(2)]
    def q_epi(st):
        L = [lambda: A.wait_lg(f"sr{st}")]
        ops = []
        for sl in range(2):
            r, m = SR[sl], MU[st][sl]
            ops.append([f"v_add_f32 v{m}, v{r}, v{r+2}", f"v_add_f32 v{m+1}, v{r+1}, v{r+3}",
                        f"v_mul_f32 v{m}, {hex(f32(1.0/512))}, v{m}", f"v_mul_f32 v{m+1}, {hex(f32(1.0/512))}, v{m+1}",
                        f"v_fma_f32 v{m+1}, -v{m}, v{m}, v{m+1}", f"v_max_f32 v{m+1}, 0, v{m+1}",
                        f"v_add_f32 v{m+1}, {hex(f32(1e-5))}, v{m+1}", f"v_rsq_f32 v{m+1}, v{m+1}"]
                       + [f"v_fma_f32 v{QA[st][sl]+k}, -v{m}, v{vCS+k}, v{QA[st][sl]+k}" for k in range(4)]
                       + [f"v_mul_f32 v{r}, {hex(f32(QS))}, v{m+1}"]
                       + [f"v_mul_f32 v{QA[st][sl]+k}, v{r}, v{QA[st][sl]+k}" for k in range(4)]
                       + [f"v_cvt_pk_bf16_f32 v{84+4*st+2*sl+k}, v{QA[st][sl]+2*k}, v{QA[st][sl]+2*k+1}" for k in range(2)])
        for a_, b_ in zip(*ops): L += [lambda a_=a_: A(a_), lambda b_=b_: A(b_)]
        d = 84 + 4 * st
        L.append(lambda: (A("s_nop 0"), A(f"v_permlane16_swap_b32 v{d}, v{d+2}"), A(f"v_permlane16_swap_b32 v{d+1}, v{d+3}")))
        L.append(lambda: (A(f"s_add_u32 s{sT0}, s{sQO}, {st*32768}"), A.vmem(f"buffer_store_dwordx4 {vr(d)}, v{vQST}, {srd(rL)}, s{sT0} offen sc1", "st")))
        return L
    XL = 8
    def w_proc(cs_, V):
        A.wait_vm([f"wq{c}" for c in cs_])
        A("s_barrier")
        for c in cs_:
            for n, th in enumerate(guarded(tr_reads(c, True))):
                th()
                if n % 3 == 2 and V: V.pop(0)()
            for p in range(4 * c, 4 * c + 4):
                A.wait_lg(f"w{p}")
                A(f"v_mfma_f32_16x16x32_bf16 {vr(vCS)}, {ar(aWQ+4*p)}, {vr(vONE)}, {vr(vCS) if p else 0}")
                A(f"v_mfma_f32_16x16x32_bf16 {vr(vCKV)}, {ar(akv(p))}, {vr(vONE)}, {vr(vCKV) if p else 0}")
    def qkv_stream(layer0, V):
        order = (0, 2, 1, 3) if layer0 else (0, 1, 2, 3)
        frs = [(ch // 2, p, sl) for ch in order for p in range(8 * (ch % 2), 8 * (ch % 2) + 8) for sl in range(2)]
        def x_read(i):
            st, p, sl = frs[i]
            A.ds(f"ds_read_b128 {vr(vXF+4*(i%NXF))}, v{vXR[sl][p%2]} offset:{st*32768 + (p&~1)*1024}", f"xf{i}")
        exq = {i: [] for i in range(64)}
        endA = 48 if layer0 else 32
        exq[endA + 2] += [lambda: None] * 2 + stat_write(0)
        nb = 56 if layer0 else 48 - XL
        if layer0: exq[nb].append(lambda: (A.wait_lg("sw0"), A("s_barrier")))
        exq[nb] += stat_read(0) + [lambda: None] * 3 + q_epi(0)
        for i in range(XL): x_read(i)
        pend = []
        def take(n):
            for _ in range(n):
                if pend: pend.pop(0)()
        def rd(n):
            if n >= 64: return take(1)
            if n % 16 == 0:
                if n == 48 and not layer0: A.wait_lg("sw0")
                A.wait_vm(f"x{order[n//16]}"); A("s_barrier")
            x_read(n)
        for i0 in range(0, 64, 4):
            st, p0, _ = frs[i0]
            X = [vr(vXF + 4 * ((i0 + k) % NXF)) for k in range(4)]
            def q(k):
                pp, sl = p0 + k // 2, k % 2
                A(f"v_mfma_f32_16x16x32_bf16 {vr(QA[st][sl])}, {ar(aWQ+4*pp)}, {X[k]}, {vr(QA[st][sl]) if pp else 0}")
            def vm():
                if V: V.pop(0)()
                else: take(1)
            for k in range(4): pend.extend(exq[i0 + k])
            if layer0 and i0 == 32:
                assert not V
                w_proc((2, 3), RAWV)
            if i0 == 0 or (layer0 and i0 == 32): A.wait_lg(f"xf{i0+1}")
            q(0); rd(i0 + XL); take(1)
            A(f"v_mfma_f32_16x16x32_bf16 {vr(GA[st])}, {X[0]}, {X[0]}, {vr(GA[st]) if p0 else 0}")
            vm()
            q(1); A.wait_lg(f"xf{i0+3}"); rd(i0 + XL + 1)
            A(f"v_mfma_f32_16x16x32_bf16 {vr(UA[st])}, {vr(vONE)}, {X[0]}, {vr(UA[st]) if p0 else 0}")
            rd(i0 + XL + 2); take(1)
            q(2)
            if not layer0: vm()
            take(1)
            A(f"v_mfma_f32_16x16x32_bf16 {vr(KA[st])}, {ar(akv(p0))}, {X[0]}, {vr(KA[st]) if p0 else 0}")
            rd(i0 + XL + 3); take(1)
            q(3)
            if i0 + 5 < 64: A.wait_lg(f"xf{i0+5}")
            take(1)
            if layer0 and V and i0 < 32: V.pop(0)()
        take(len(pend))
    V0 = [(lambda c=c, n=n: w_dma(c, n)) for c in (2, 3) for n in range(5)] + [(lambda ch=ch, u=u: x_dma(ch, u, True)) for ch in (1, 3) for u in range(4)] \
        + [(lambda n=n: raw_load(n)) for n in range(6)]
    setup, A.L, A.vm = A.L, main_L, main_vm
    units = []; glue = False
    for ln in setup:
        if glue or ln.startswith(("s_cselect", "s_addc", "s_cbranch")): units[-1].append(ln)
        else: units.append([ln])
        if "L_RAW_WO" in ln and ln.startswith("s_cbranch"): glue = True
        if ln.startswith("L_RAW_DONE"): glue = False
    VP = [(lambda c=c, n=n: w_dma(c, n)) for c in (0, 1) for n in range(5)][2:] + [(lambda ch=ch, u=u: x_dma(ch, u, True)) for ch in (0, 2) for u in range(4)]
    VP += [V0.pop(0) for _ in range(cfg.n_up)]
    per = -(-len(units) // len(VP))
    for th in VP:
        for un in units[:per]:
            A.L.extend(un)
            if un[0].startswith("buffer_load"): A.vm.append("ft")
        units = units[per:]
        th()
    assert not units
    stamp("start")
    A("s_waitcnt lgkmcnt(0)")
    RAWV = V0[-6:]; del V0[-6:]
    w_proc((0, 1), V0)
    A(f"s_mul_i32 s{sTAG}, s{sTAG}, 1664525")
    A(f"s_add_u32 s{sTAG}, s{sTAG}, 1013904223")
    A(f"v_mov_b32 v{vTAG}, s{sTAG}")
    A.wait_vm("x0")
    A("s_barrier")
    stamp("qkv_x0")
    qkv_stream(True, V0)
    assert not V0
    A("s_branch L_QKV_EPI")
    A.label("L_QKV_X")
    A.lg = []; A.vm = ["x1"] * 4
    A("s_barrier")
    stamp("qkv_x1")
    qkv_stream(False, [(lambda ch=ch, u=u: x_dma(ch, u, False)) for ch in (2, 3) for u in range(4)])
    A.label("L_QKV_EPI")
    A.lg = []; A.vm = []
    stamp("qkv_mm")
    for k in range(4): A(f"v_cndmask_b32 v{60+k}, v{KA[1]+k}, v{KA[0]+k}, s[{sMH}:{sMH+1}]")
    for th in stat_write(1): th()
    A.ds(f"ds_write_b128 v{vKXW}, v[60:63]")
    for k in range(4): A(f"v_cndmask_b32 v{KA[0]+k}, v{KA[0]+k}, v{KA[1]+k}, s[{sMH}:{sMH+1}]")
    A.wait_lg()
    A("s_barrier")
    for th in stat_read(1): th()
    A.ds(f"ds_read_b128 v[60:63], v{vKXR}", "kx")
    for th in q_epi(1): th()
    sk = A.newlabel("nokvep"); kt = A.newlabel("kvK")
    A(f"s_cmp_ge_u32 s{sCB}, 2")
    A(f"s_cbranch_scc1 {sk}")
    A(f"v_cndmask_b32 v56, v{MU[0][0]}, v{MU[1][0]}, s[{sMH}:{sMH+1}]")
    A(f"v_cndmask_b32 v57, v{MU[0][0]+1}, v{MU[1][0]+1}, s[{sMH}:{sMH+1}]")
    A("s_waitcnt lgkmcnt(0)")
    for k in range(4): A(f"v_add_f32 v{60+k}, v{60+k}, v{KA[0]+k}")
    for k in range(4): A(f"v_fma_f32 v{60+k}, -v56, v{vCKV+k}, v{60+k}")
    for k in range(4): A(f"v_mul_f32 v{60+k}, v57, v{60+k}")
    A("v_cvt_pk_bf16_f32 v72, v60, v61")
    A("v_cvt_pk_bf16_f32 v73, v62, v63")
    A(f"s_cmp_eq_u32 s{sCB}, 0")
    A(f"s_cbranch_scc1 {kt}")
    A(f"ds_write_b64 v{vVTW}, v[72:73]")
    A("s_waitcnt lgkmcnt(0)")
    A(f"ds_read_b64_tr_b16 v[72:73], v{vVTR}")
    A("s_waitcnt lgkmcnt(0)")
    A.label(kt)
    A("v_mov_b32 v74, v72")
    A("v_mov_b32 v75, v73")
    A(f"s_mov_b32 s{sM0}, 0x0000ffff")
    A(f"s_mov_b32 s{sM0+1}, 0x0000ffff")
    A("v_permlane16_swap_b32 v72, v74")
    A("v_permlane16_swap_b32 v73, v75")
    A(f"s_mov_b64 exec, s[{sM0}:{sM0+1}]")
    A(f"buffer_store_dwordx4 v[72:75], v{vKVS}, {srd(rL)}, s{sKO} offen sc1")
    A("s_mov_b64 exec, -1")
    A.label(sk)
    A.wait_lg()
    A("v_and_b32 v5, 11, v0")
    A("v_cmp_eq_u32 vcc, 0, v5")
    A("v_lshlrev_b32 v4, 4, v0")
    A(f"v_add_u32 v4, {LDS_ONES}, v4")
    for r in range(4): A(f"v_cndmask_b32 v{vONE+r}, 0, v{vONE+r}, vcc")
    A.ds(f"ds_write_b128 v4, {vr(vONE)}")
    A.ds(f"ds_write_b128 v4, {vr(vONE)} offset:4096")
    S = [16, 32]; O = [[48, 160], [208, 224]]; Q = [[64, 68], [112, 116]]; KB = [72, 76]; V0 = [80, 84]; V1 = [88, 92]
    vIDX = 96; vVA = 97; vVINC = 98; vOXR = 99
    vOXW = 120; vWFL = 121; vRES = 122; vTCH = 123; vJUNK = 124; vRROW = 125; vWFA = 126; vKA = 127; vEXW = 108; vEXR = 109
    vOF = [128, 132]; vZ = 136; vZR = 152; vPA = 176
    A("v_and_b32 v4, 63, v0")
    A("v_and_b32 v5, 7, v4")
    A("v_bfe_u32 v6, v4, 3, 1")
    A("v_lshrrev_b32 v7, 4, v4")
    A("v_lshlrev_b32 v8, 12, v6")
    A("v_lshrrev_b32 v9, 1, v7")
    A("v_lshl_add_u32 v8, v9, 10, v8")
    A("v_and_b32 v9, 1, v7")
    A("v_lshl_add_u32 v8, v9, 9, v8")
    A("v_lshl_add_u32 v8, v5, 4, v8")
    A(f"s_lshr_b32 s{sT0}, s{sG}, 2")
    A(f"s_lshl_b32 s{sT0}, s{sT0}, 15")
    A(f"s_lshl_b32 s{sT1}, s{sW}, 13")
    A(f"s_add_u32 s{sT0}, s{sT0}, s{sT1}")
    A(f"s_and_b32 s{sT1}, s{sG}, 3")
    A(f"s_lshl_b32 s{sT1}, s{sT1}, 7")
    A(f"s_add_u32 s{sT0}, s{sT0}, s{sT1}")
    A(f"v_add_u32 v{vRES}, s{sT0}, v8")
    A("v_lshlrev_b32 v8, 10, v5")
    A("v_lshl_add_u32 v8, v6, 7, v8")
    A("v_lshl_add_u32 v8, v7, 4, v8")
    A(f"s_lshl_b32 s{sT0}, s{sG}, 13")
    A(f"s_lshl_b32 s{sT1}, s{sW}, 8")
    A(f"s_add_u32 s{sT0}, s{sT0}, s{sT1}")
    A(f"v_add_u32 v8, s{sT0}, v8")
    A(f"s_cmp_eq_u32 s{sLAYER}, 0")
    A("s_cselect_b64 vcc, -1, 0")
    A(f"s_cselect_b32 s{sXA}, 64, 2048")
    A(f"v_cndmask_b32 v{vRROW}, v{vRES}, v8, vcc")
    A("v_and_b32 v5, 15, v4")
    A("v_lshrrev_b32 v6, 5, v4")
    A("v_lshlrev_b32 v5, 4, v5")
    A("v_lshl_add_u32 v5, v6, 8, v5")
    A("v_bfe_u32 v6, v4, 4, 1")
    A("v_cmp_eq_u32 vcc, 0, v6")
    A(f"v_mov_b32 v7, {LDS_ONES}")
    A(f"s_and_b32 s{sT0}, s{sW}, 1")
    A(f"s_lshl_b32 s{sT0}, s{sT0}, 15")
    A(f"v_add_u32 v{vKA}, s{sT0}, v{vL16}")
    A(f"s_add_u32 s{sT0}, s{sT0}, {LDS_V}")
    A(f"v_mov_b32 v8, s{sT0}")
    A("v_cndmask_b32 v7, v7, v8, vcc")
    A(f"v_add_u32 v{vVA}, v5, v7")
    A("v_mov_b32 v7, 0")
    A("v_mov_b32 v8, 0x2000")
    A(f"v_cndmask_b32 v{vVINC}, v7, v8, vcc")
    A(f"v_mov_b32 v{vIDX}, 0xdddd")
    A(f"s_mul_i32 s{sT0}, s{sW}, 3072")
    A(f"s_add_u32 s{sT0}, s{sT0}, {LDS_EX}")
    A(f"v_add_u32 v{vEXR}, s{sT0}, v{vL16}")
    A(f"s_xor_b32 s{sT0}, s{sW}, 1")
    A(f"s_mul_i32 s{sT0}, s{sT0}, 3072")
    A(f"s_add_u32 s{sT0}, s{sT0}, {LDS_EX}")
    A(f"v_add_u32 v{vEXW}, s{sT0}, v{vL16}")
    A("v_bfe_u32 v5, v4, 4, 1")
    A("v_lshlrev_b32 v5, 9, v5")
    A("v_bfe_u32 v6, v4, 3, 1")
    A("v_lshl_add_u32 v5, v6, 8, v5")
    A("v_lshrrev_b32 v6, 5, v4")
    A("v_lshl_add_u32 v5, v6, 7, v5")
    A("v_and_b32 v6, 7, v4")
    A("v_lshl_add_u32 v5, v6, 4, v5")
    A(f"s_lshl_b32 s{sT0}, s{sW}, 10")
    A(f"s_add_u32 s{sT0}, s{sT0}, {LDS_OX}")
    A(f"v_add_u32 v{vOXW}, s{sT0}, v5")
    A("v_lshrrev_b32 v5, 4, v4")
    A("v_lshlrev_b32 v5, 7, v5")
    A("v_lshl_add_u32 v5, v6, 4, v5")
    A(f"v_add_u32 v{vOXR}, {LDS_OX}, v5")
    A("v_lshrrev_b32 v5, 2, v4")
    A("v_and_b32 v6, 3, v4")
    A("v_lshlrev_b32 v6, 2, v6")
    A(f"v_lshl_add_u32 v{vTCH}, v5, 7, v6")
    A(f"v_lshlrev_b32 v{vWFA}, 4, v0")
    A(f"v_add_u32 v{vWFA}, {WS_WFLAG}, v{vWFA}")
    A("s_waitcnt vmcnt(0)")
    A.vm = []
    publish(PH_QKV, sG, "st")
    A(f"buffer_load_dwordx4 {vr(vZR)}, v{vRROW}, {srd(rXIN)}, 0 offen sc1")
    A(f"buffer_load_dwordx4 {vr(vZR+4)}, v{vRROW}, {srd(rXIN)}, s{sXA} offen sc1")
    stamp("qkv_pub")
    A(f"s_cmp_eq_u32 s{sLAYER}, 0")
    A("s_cbranch_scc0 L_NORELAY")
    A(f"s_lshl_b32 s{sT0}, s{sW}, 13")
    A(f"v_add_u32 v4, s{sT0}, v{vL16}")
    for n in range(6):
        A(f"ds_write_b128 v4, {vr(vRAW+4*n)} offset:{n*1024}")
    A("v_and_b32 v5, 63, v0")
    A("v_bfe_u32 v6, v5, 2, 2")
    A(f"s_cmp_ge_u32 s{sWG}, 224")
    A("s_cbranch_scc1 L_RELAY_WO")
    A("v_bfe_u32 v7, v5, 4, 1")
    A("v_lshl_add_u32 v6, v7, 3, v6")
    A("v_lshlrev_b32 v6, 7, v6")
    A("v_and_b32 v8, 3, v5")
    A("v_lshl_add_u32 v6, v8, 3, v6")
    A(f"v_add_u32 v6, s{sT0}, v6")
    A("v_lshrrev_b32 v7, 5, v5")
    A("v_lshl_add_u32 v8, v7, 11, v6")
    A("v_lshl_add_u32 v9, v7, 5, v6")
    A("s_waitcnt lgkmcnt(0)")
    R0 = 192
    for q in range(4):
        A(f"ds_read_b64_tr_b16 {vr(R0+4*q,2)}, v8 offset:{q*32}")
        A(f"ds_read_b64_tr_b16 {vr(R0+2+4*q,2)}, v8 offset:{q*32+512}")
    for cp in range(2):
        A(f"ds_read_b64_tr_b16 {vr(R0+16+4*cp,2)}, v9 offset:{4096+cp*64}")
        A(f"ds_read_b64_tr_b16 {vr(R0+18+4*cp,2)}, v9 offset:{4096+cp*64+512}")
    A("v_and_b32 v5, 31, v5")
    A("v_lshlrev_b32 v5, 4, v5")
    A("v_lshl_add_u32 v5, v7, 10, v5")
    A(f"s_mul_i32 s{sT1}, s{sGW}, 2341")
    A(f"s_lshr_b32 s{sT1}, s{sT1}, 16")
    A(f"s_mul_i32 s{sT0}, s{sT1}, 28")
    A(f"s_sub_u32 s{sT0}, s{sGW}, s{sT0}")
    A(f"s_lshl_b32 s{sT0}, s{sT0}, 17")
    A(f"s_lshr_b32 s{sT2}, s{sT1}, 1")
    A(f"s_lshl_b32 s{sT2}, s{sT2}, 11")
    A(f"s_add_u32 s{sT0}, s{sT0}, s{sT2}")
    A(f"s_and_b32 s{sT2}, s{sT1}, 1")
    A(f"s_lshl_b32 s{sT2}, s{sT2}, 9")
    A(f"s_add_u32 s{sT0}, s{sT0}, s{sT2}")
    A(f"s_add_u32 s{sT0}, s{sT0}, {hex(WS_WGUT)}")
    A(f"s_lshr_b32 s{sT2}, s{sGW}, 3")
    A(f"s_mul_i32 s{sT3}, s{sT2}, 9363")
    A(f"s_lshr_b32 s{sT3}, s{sT3}, 16")
    A(f"s_mul_i32 s{sT4}, s{sT3}, 7")
    A(f"s_sub_u32 s{sT2}, s{sT2}, s{sT4}")
    A(f"s_and_b32 s{sT4}, s{sT3}, 3")
    A(f"s_mul_i32 s{sT5}, s{sT4}, 5")
    A(f"s_add_u32 s{sT5}, s{sT5}, s{sT2}")
    A(f"s_lshl_b32 s{sT4}, s{sT4}, 1")
    A(f"s_add_u32 s{sT4}, s{sT4}, s{sT2}")
    A(f"s_add_u32 s{sT4}, s{sT4}, 15")
    A(f"s_cmp_ge_u32 s{sT2}, 5")
    A(f"s_cselect_b32 s{sT5}, s{sT4}, s{sT5}")
    A(f"s_and_b32 s{sT1}, s{sGW}, 7")
    A(f"s_lshl_b32 s{sT1}, s{sT1}, 2")
    A(f"s_lshr_b32 s{sT3}, s{sT3}, 2")
    A(f"s_add_u32 s{sT1}, s{sT1}, s{sT3}")
    A(f"s_mul_i32 s{sT1}, s{sT1}, {56*1024}")
    A(f"s_lshr_b32 s{sT4}, s{sT5}, 1")
    A(f"s_lshl_b32 s{sT4}, s{sT4}, 12")
    A(f"s_add_u32 s{sT1}, s{sT1}, s{sT4}")
    A(f"s_and_b32 s{sT4}, s{sT5}, 1")
    A(f"s_lshl_b32 s{sT4}, s{sT4}, 9")
    A(f"s_add_u32 s{sT1}, s{sT1}, s{sT4}")
    A(f"s_add_u32 s{sT1}, s{sT1}, {hex(WS_WDT)}")
    A("s_waitcnt lgkmcnt(0)")
    for q in range(4):
        A(f"buffer_store_dwordx4 {vr(R0+4*q)}, v5, {srd(rWS)}, s{sT0} offen sc1")
        A(f"s_add_u32 s{sT0}, s{sT0}, 32768")
    for cp in range(2):
        A(f"buffer_store_dwordx4 {vr(R0+16+4*cp)}, v5, {srd(rWS)}, s{sT1} offen offset:{cp*2048} sc1")
    A("s_branch L_RELAY_PUB")
    A.label("L_RELAY_WO")
    A("v_lshrrev_b32 v7, 4, v5")
    A("v_lshl_add_u32 v6, v7, 3, v6")
    A("v_lshlrev_b32 v6, 7, v6")
    A("v_and_b32 v8, 3, v5")
    A("v_lshl_add_u32 v6, v8, 4, v6")
    A(f"v_add_u32 v6, s{sT0}, v6")
    A("s_waitcnt lgkmcnt(0)")
    for P in range(2):
        for b in range(2):
            q = 2 * P + b
            A(f"ds_read_b64_tr_b16 {vr(R0+4*q,2)}, v6 offset:{P*64+b*8}")
            A(f"ds_read_b64_tr_b16 {vr(R0+2+4*q,2)}, v6 offset:{P*64+b*8+512}")
    A(f"s_sub_u32 s{sT2}, s{sGW}, 896")
    A(f"s_lshr_b32 s{sT0}, s{sT2}, 3")
    A(f"s_lshl_b32 s{sT0}, s{sT0}, 13")
    A(f"s_bfe_u32 s{sT1}, s{sT2}, 0x20001")
    A(f"s_lshl_b32 s{sT1}, s{sT1}, 17")
    A(f"s_add_u32 s{sT0}, s{sT0}, s{sT1}")
    A(f"s_and_b32 s{sT1}, s{sT2}, 1")
    A(f"s_lshl_b32 s{sT1}, s{sT1}, 12")
    A(f"s_add_u32 s{sT0}, s{sT0}, s{sT1}")
    A(f"s_add_u32 s{sT0}, s{sT0}, {hex(WS_WOT)}")
    A("s_waitcnt lgkmcnt(0)")
    for q in range(4):
        A(f"buffer_store_dwordx4 {vr(R0+4*q)}, v{vL16}, {srd(rWS)}, s{sT0} offen offset:{q*1024} sc1")
    A.label("L_RELAY_PUB")
    shareGU = 4 if cfg.t512 else 2
    sTOUCH = 8
    for d, kind in ((8, "gu"), (9, "wd")):
        share = shareGU if kind == "gu" else 4
        A(f"s_lshr_b32 s{d}, s{sI}, {3 if share == 4 else 4}")
        A(f"s_lshl_b32 s{d}, s{d}, 2")
        A(f"s_add_u32 s{d}, s{d}, s{sW}")
        A(f"s_mul_i32 s{d}, s{d}, {7 * 32768 // (4 * share)}")
        A(f"s_mul_i32 s{sT1}, s{sSL if kind == 'gu' else sCB}, {7*32768}")
        A(f"s_add_u32 s{d}, s{d}, s{sT1}")
        A(f"s_add_u32 s{d}, s{d}, {hex(WS_WGUT if kind == 'gu' else WS_WDT)}")
    sGUB = 16; sWOB = 17; sWDB = 20
    A(f"s_mul_i32 s{sGUB}, s{sSL}, {7*32768}")
    A(f"s_lshl_b32 s{sT1}, s{sW}, 13")
    A(f"s_add_u32 s{sGUB}, s{sGUB}, s{sT1}")
    A(f"s_add_u32 s{sGUB}, s{sGUB}, {hex(WS_WGUT)}")
    A(f"s_lshl_b32 s{sWOB}, s{sW}, 17")
    A(f"s_add_u32 s{sWOB}, s{sWOB}, {hex(WS_WOT)}")
    A(f"s_lshl_b32 s{sWDB}, s{sCB}, 2")
    A(f"s_add_u32 s{sWDB}, s{sWDB}, s{sW}")
    A(f"s_mul_i32 s{sWDB}, s{sWDB}, {56*1024}")
    A(f"s_add_u32 s{sWDB}, s{sWDB}, {hex(WS_WDT)}")
    A.label("L_NORELAY")
    for o in O[0] + O[1]:
        for r in range(16): A(f"v_mov_b32 v{o+r}, 0")
    stamp("relay")

    A(f"s_lshl_b32 s{sT2}, s{sG}, 13")
    A(f"s_lshl_b32 s{sT1}, s{sW}, 10")
    A(f"s_add_u32 s{sT2}, s{sT2}, s{sT1}")
    A(f"s_xor_b32 s{sT1}, s{sT2}, 1024")
    sKG = 56
    A(f"s_lshl_b32 s{sT0}, s{sX}, 13")
    A(f"s_and_b32 s{sT4}, s{sW}, 1")
    A(f"s_lshl_b32 s{sT4}, s{sT4}, 12")
    A(f"s_add_u32 s{sT0}, s{sT0}, s{sT4}")
    A(f"s_lshr_b32 s{sT4}, s{sW}, 1")
    A(f"s_lshl_b32 s{sT4}, s{sT4}, 16")
    A(f"s_add_u32 s{sT4}, s{sT4}, {hex(L_KV)}")
    for g_ in range(8):
        A(f"s_add_u32 s{sKG+g_}, s{sT0}, {g_*8192}")
        A(f"s_and_b32 s{sKG+g_}, s{sKG+g_}, 0xffff")
        A(f"s_add_u32 s{sKG+g_}, s{sKG+g_}, s{sT4}")
    vSA, vSBf, vBOK = 5, 110, 111
    LDS_BOK = LDS_LNX
    sk = A.newlabel("s1")
    A(f"s_cmp_lg_u32 s{sW}, 0")
    A(f"s_cbranch_scc1 {sk}")
    A("v_lshrrev_b32 v6, 1, v0")
    A("v_lshlrev_b32 v6, 3, v6")
    A("v_and_b32 v4, 1, v0")
    A("v_add_u32 v6, v6, v4")
    A(f"v_lshlrev_b32 v{vSBf}, 7, v6")
    A(f"v_add_u32 v{vSBf}, {hex(flagbase(PH_QKV))}, v{vSBf}")
    A("v_and_b32 v6, 31, v6")
    A(f"s_lshl_b32 s{sT0}, s{sX}, 5")
    A(f"v_add_u32 v6, s{sT0}, v6")
    A("v_and_b32 v7, 7, v0")
    A(f"s_lshl_b32 s{sT0}, s{sTB}, 3")
    A(f"v_add_u32 v7, s{sT0}, v7")
    A("v_and_b32 v4, 8, v0")
    A("v_cmp_eq_u32 vcc, 0, v4")
    A("s_nop 1")
    A("v_cndmask_b32 v6, v7, v6, vcc")
    A(f"v_lshlrev_b32 v{vSA}, 7, v6")
    A(f"v_add_u32 v{vSA}, {hex(flagbase(PH_QKV))}, v{vSA}")
    spin(vSA, rL, "s1a")
    A(f"buffer_load_dword v{vBOK}, v{vSBf}, {srd(rL)}, 0 offen sc1")
    A.label(sk)
    A("s_waitcnt lgkmcnt(0)"); A.lg = []
    A("s_barrier")
    stamp("s1")
    A.vm = []
    chunks = [(0, 2), (2, 4), (4, 8), (8, 16), (16, 32)]
    def kv_dma_list(ci):
        j0, j1 = chunks[ci]
        return [(ci, j) for j in range(j0, j1)]
    def kv_pre(ent):
        ci, j = ent
        if j % 4 == 0: A(f"s_add_u32 m0, s{sGUL}, {j*1024}")
    def kv_dma(ent, pre=True):
        ci, j = ent
        if pre: kv_pre(ent); A("s_nop 0") if j % 4 == 0 else None
        A.vmem(f"buffer_load_dwordx4 v{vL16}, {srd(rL)}, s{sKG + j//4} offen offset:{(j%4)*1024} sc1 lds", f"kv{ci}")
    A.vmem(f"buffer_load_dwordx4 {vr(Q[0][1])}, v{vL16}, {srd(rL)}, s{sT1} offen sc1", "q0")
    A.vmem(f"buffer_load_dwordx4 {vr(Q[0][0])}, v{vL16}, {srd(rL)}, s{sT2} offen sc1", "q0b")
    for e in kv_dma_list(0): kv_dma(e)
    for e in kv_dma_list(1): kv_dma(e)
    A(f"s_add_u32 s{sT2}, s{sT2}, 4096")
    A(f"s_add_u32 s{sT1}, s{sT1}, 4096")
    kv_pre(kv_dma_list(2)[0])
    A(f"s_waitcnt vmcnt({len(A.vm) + 1})")
    sk = A.newlabel("resw")
    A(f"s_cmp_eq_u32 s{sW}, 0")
    A(f"s_cbranch_scc1 {sk}")
    A(f"s_waitcnt vmcnt({len(A.vm)})")
    A.label(sk)
    for k in range(16): unpack(vZ, vZR, k)
    sk = A.newlabel("s1b")
    A(f"s_cmp_lg_u32 s{sW}, 0")
    A(f"s_cbranch_scc1 {sk}")
    A(f"s_waitcnt vmcnt({len(A.vm)})")
    A(f"v_cmp_ne_u32 vcc, v{vBOK}, v{vTAG}")
    A(f"s_cbranch_vccz {sk}")
    spin(vSBf, rL, "s1b")
    A.label(sk)
    A.wait_vm("kv0")
    sWO = sT3
    def wo_base(part):
        A(f"s_add_u32 s{sWO}, s{sWOB}, {hex(part * 0x10000)}")
    def wo_load(f, part):
        A.vmem(f"buffer_load_dwordx4 {ar(4*f)}, v{vL16}, {srd(rWS)}, s{sWO} offen offset:{(f%4)*1024} sc1", f"wo{part}")
    A("s_barrier")
    sk = A.newlabel("wpub")
    A(f"s_cmp_lg_u32 s{sW}, 3")
    A(f"s_cbranch_scc1 {sk}")
    A(f"s_lshl_b32 s{sCNT}, s{sWG}, 4")
    A(f"s_add_u32 s{sCNT}, s{sCNT}, {WS_WFLAG}")
    A("v_mov_b32 v4, 0")
    A("s_mov_b64 exec, 1")
    A(f"buffer_store_dword v{vTAG}, v4, {srd(rWS)}, s{sCNT} offen sc1")
    A("s_mov_b64 exec, -1")
    A.label(sk)
    stamp("att_kv0")
    def rdK(jj): A.ds(f"ds_read_b128 {vr(KB[jj%2])}, v{vKA} offset:{(jj%32)*1024}", f"K{jj}")
    def rdV(jj):
        A.ds(f"ds_read_b128 {vr(V0[jj%2])}, v{vVA} offset:{(jj%8)*1024}", f"V{jj}")
        A.ds(f"ds_read_b128 {vr(V1[jj%2])}, v{vVA} offset:{(jj%8)*1024+512}", f"V{jj}")
    def slot(n): return 1 - n % 2
    def Oacc(n): return O[n // 64][slot(n)]
    def qk(n): A(f"v_mfma_f32_32x32x16_bf16 {vr(S[n%2],16)}, {vr(KB[(n//2)%2])}, {vr(Q[n//64][slot(n)])}, 0")
    vEX = 240
    def ex_write(p):
        o = O[p][1]
        return [lambda: A.ds(f"ds_write_b128 v{vEXW}, {vr(o)}", "exw"),
                lambda: A.ds(f"ds_write_b128 v{vEXW}, {vr(o+4)} offset:1024", "exw"),
                lambda: A.ds(f"ds_write_b32 v{vEXW}, v{o+8} offset:2048", "exw")]
    def ex_read():
        return [lambda: A.ds(f"ds_read_b128 {vr(vEX)}, v{vEXR}", "exr"),
                lambda: A.ds(f"ds_read_b128 {vr(vEX+4)}, v{vEXR} offset:1024", "exr"),
                lambda: A.ds(f"ds_read_b32 v{vEX+8}, v{vEXR} offset:2048", "exr")]
    def finalize_O(p):
        o = O[p][0]
        fb = f"L_FB{p}"; bk = f"L_FBR{p}"
        L = []
        L.append(lambda: (A.wait_lg("exr"), A(f"v_add_f32 v{o+8}, v{o+8}, v{vEX+8}")))
        L.append(lambda: A(f"v_add_u32 v4, {hex((0x100000000 - 0x21800000) & 0xffffffff)}, v{o+8}"))
        L.append(lambda: A(f"v_cmp_lt_u32 vcc, 0x3c000000, v4"))
        for r in range(8):
            L.append(lambda r=r: A(f"v_add_f32 v{o+r}, v{o+r}, v{vEX+r}"))
        L.append(lambda: (A(f"s_cbranch_vccnz {fb}"), A.label(bk), A(f"v_rcp_f32 v4, v{o+8}")))
        for r in range(8):
            L.append(lambda r=r: A(f"v_mul_f32 v{o+r}, v4, v{o+r}"))
        for r in range(4):
            L.append(lambda r=r: A(f"v_cvt_pk_bf16_f32 v{8+r}, v{o+2*r}, v{o+2*r+1}"))
        L.append(lambda: A.ds(f"ds_write_b128 v{vOXW}, v[8:11] offset:{p*4096}", "oxw"))
        return L
    def oproj_mfma(f, part):
        jl, ctl = f // 8, f % 8
        Pp, b = ctl // 2, ctl % 2
        c = vr(vPA + 4 * ctl)
        if part == 0 and jl == 0: c = vr(vZ + 8 * (Pp % 2) + 4 * b)
        A.wait_lg(f"of{part}_{jl}")
        A(f"v_mfma_f32_16x16x32_bf16 {vr(vPA+4*ctl)}, {ar(4*f)}, {vr(vOF[jl%2])}, {c}")
    def of_read(part, jl): A.ds(f"ds_read_b128 {vr(vOF[jl%2])}, v{vOXR} offset:{part*4096 + jl*512}", f"of{part}_{jl}")
    sGU = sT4
    def gu_pre(tile, u):
        if u % 4: return
        if tile == 4:
            A(f"s_lshl_b32 m0, s{sW}, 13"); A(f"s_add_u32 m0, m0, {0x20000 + u * 1024}")
        else: A(f"s_add_u32 m0, s{sGUL}, {(tile % 5) * 8192 + u * 1024}")
        A(f"s_add_u32 s{sGU}, s{sGUB}, {tile * 32768 + u * 1024}")
    def gu_dma(tile, u, pre=True):
        if pre: gu_pre(tile, u)
        A.vmem(f"buffer_load_dwordx4 v{vL16}, {srd(rWS)}, s{sGU} offen offset:{(u%4)*1024} sc1 lds", f"gu{tile}")
    def gu_addr(j, s):
        if j == 4: return 0x20000 + s * 1024
        return (s // 8) * 0x8000 + (j % 5) * 8192 + (s % 8) * 1024

    postqk = {n: [] for n in range(128)}
    valu = {n: [] for n in range(128)}
    m16 = {n: [] for n in range(128)}
    pre_reads = {n: [] for n in range(128)}
    postsm1 = {n: [] for n in range(128)}
    first = [lambda: A.vmem(f"buffer_load_dword v{vWFL}, v{vWFA}, {srd(rWS)}, 0 offen sc1", "wfl"),
             lambda: A.vmem(f"buffer_load_dwordx4 {vr(Q[1][0])}, v{vL16}, {srd(rL)}, s{sT2} offen sc1", "q1"),
             lambda: A.vmem(f"buffer_load_dwordx4 {vr(Q[1][1])}, v{vL16}, {srd(rL)}, s{sT1} offen sc1", "q1")]
    dle = kv_dma_list(2) + kv_dma_list(3) + kv_dma_list(4)
    dl = [(lambda e=e: kv_dma(e, False)) for e in dle]
    last = []
    first4 = dl[:cfg.g1_now]; dl = dl[cfg.g1_now:]
    for k, th in enumerate(dl + last + first[::-1]): postqk[k // 2].append(th)
    for k, e in enumerate(dle[cfg.g1_now:]):
        if e[1] % 4 == 0:
            if k // 2 > 0 and k % 2 == 0: postsm1[k // 2 - 1].append(lambda e=e: kv_pre(e))
            elif k: raise RuntimeError
            elif cfg.g1_now: first4.append(lambda e=e: kv_pre(e))
    def bar(tags):
        def f():
            A.wait_vm(tags); A("s_barrier")
        return f
    for ci in (1, 2, 3, 4):
        pre_reads[2 * chunks[ci][0] - 3].append(bar(f"kv{ci}"))
    W0 = cfg.wo0
    assert W0 > 29
    pre_reads[29].insert(0, lambda: check_or_spin(vWFL, vWFA, rWS, "wfl", "wfl"))
    postsm1[W0 - 1].append(lambda: wo_base(0))
    for f in range(64):
        postqk[W0 + f // 2].append(lambda f=f: wo_load(f, 0))
        if f % 4 == 3 and f < 63: postsm1[W0 + f // 2].append(lambda: A(f"s_add_u32 s{sWO}, s{sWO}, 4096"))
    def touch(m):
        A.vmem(f"buffer_load_dword v{vJUNK}, v{vTCH}, {srd(rWS)}, s{sT0} offen offset:{(m % 2) * 2048} sc1", "touch")
    tl = ([(8, m) for m in range(28 // shareGU)] if cfg.warm_gu else []) + ([(9, m) for m in range(7)] if cfg.warm_wd else [])
    for k_, (d, m) in enumerate(tl):
        n_ = cfg.warm0 + (k_ * cfg.warm_span) // len(tl)
        if m % 2 == 0: postsm1[n_ - 1].append(lambda d=d, m=m: A(f"s_add_u32 s{sT0}, s{d}, {m * 2048}"))
        postqk[n_].append(lambda m=m: touch(m))
    postqk[64] += ex_write(0)
    pre_reads[65].append(lambda: (A.wait_lg("exw"), A("s_barrier")))
    postqk[65] += ex_read()
    fin0 = finalize_O(0)
    for k, th in enumerate(fin0[:-1]):
        valu[66 + k // 9].append(th)
    postqk[69].append(fin0[-1])
    def ox_bar():
        A.wait_lg("oxw"); A.wait_vm("wo0"); A("s_barrier")
    pre_reads[70].append(ox_bar)
    postqk[70].append(lambda: of_read(0, 0))
    postsm1[71].append(lambda: wo_base(1))
    for f in range(64):
        n = 71 + f // 2
        m16[n].append(lambda f=f: oproj_mfma(f, 0))
        postqk[n + 1].append(lambda f=f: wo_load(f, 1))
        if f % 4 == 3 and f < 63: postsm1[n + 1].append(lambda: A(f"s_add_u32 s{sWO}, s{sWO}, 4096"))
        if f % 8 == 0 and f // 8 + 1 < 8:
            postqk[n + 1].append(lambda f=f: of_read(0, f // 8 + 1))
    for j, (nb, n0) in enumerate(cfg.gu_att):
        assert nb >= 64 + 16 * (j + 1) and n0 >= nb
        if j == 0 or cfg.gu_att[j - 1][0] != nb: pre_reads[nb].append(lambda: A("s_barrier"))
        for u in range(8):
            postqk[n0 + u // 2].append(lambda j=j, u=u: gu_dma(j, u, False))
            if u % 4 == 0: postsm1[n0 + u // 2 - 1].append(lambda j=j, u=u: gu_pre(j, u))
    rdK(0); rdV(0); rdK(1)
    A.wait_lg("K0")
    qk(0)
    for th in first4: th()
    postsm1[127] += ex_write(1)
    for n in range(128):
        cur, nxt = S[n % 2], S[(n + 1) % 2]
        jj = n // 2
        e = lambda i: A(f"v_exp_f32 v{cur+i}, v{cur+i}")
        e(0); e(1); e(2)
        if n > 0:
            A(f"v_smfmac_f32_32x32x32_bf16 {vr(Oacc(n-1),16)}, {vr(V1[((n-1)//2)%2])}, {vr(nxt+8,8)}, v{vIDX}")
        A.wait_lg([f"K{(n+1)//2}", f"V{jj}"])
        if n == 0: A.wait_vm("q0b")
        e(3); e(4); e(5)
        if n < 127:
            if n + 1 == 64: A.wait_vm("q1")
            qk(n + 1)
        for th in pre_reads[n]: th()
        if n % 2 == 1 and jj + 2 < 64: rdK(jj + 2)
        if n % 2 == 0 and jj + 1 < 64: rdV(jj + 1)
        for th in postqk[n]: th()
        e(6); e(7); e(8)
        if len(m16[n]) > 0: m16[n][0]()
        e(9); e(10)
        A(f"v_smfmac_f32_32x32x32_bf16 {vr(Oacc(n),16)}, {vr(V0[jj%2])}, {vr(cur,8)}, v{vIDX}")
        for th in postsm1[n]: th()
        e(11); e(12)
        for th in valu[n]: th()
        if n % 16 == 13 and n < 125:
            if n == 61:
                A(f"v_mul_u32_u24 v5, 3, v{vVINC}"); A(f"v_sub_u32 v{vVA}, v{vVA}, v5")
            else: A(f"v_add_u32 v{vVA}, v{vVA}, v{vVINC}")
        e(13)
        if len(m16[n]) > 1: m16[n][1]()
        e(14); e(15)
    A.wait_lg("exw")
    A("s_barrier")
    A(f"v_smfmac_f32_32x32x32_bf16 {vr(O[1][0],16)}, {vr(V1[1])}, {vr(S[1]+8,8)}, v{vIDX}")
    for th in ex_read(): th()
    vY = 16
    A("v_bfe_u32 v5, v0, 3, 1")
    A(f"v_cmp_eq_u32 s[{sM0}:{sM0+1}], 0, v5")
    stamp("att_main")
    for th in finalize_O(1): th()
    A("v_and_b32 v6, 7, v0")
    A(f"s_lshl_b32 s{sT0}, s{sW}, 3")
    A(f"s_add_u32 s{sT0}, s{sT0}, {LDS_LNX}")
    A(f"v_lshl_add_u32 v13, v6, 5, s{sT0}")
    A(f"v_lshlrev_b32 v6, 5, v6")
    A(f"v_add_u32 v14, {LDS_LNX}, v6")
    A.wait_lg()
    A.wait_vm(["wo1"] + [f"gu{t}" for t in range(len(cfg.gu_att))])
    A("s_barrier")
    ngu_att = len(cfg.gu_att)
    gul = [(t, u) for t in range(ngu_att, 4) for u in range(8)]
    wdl = list(range(56))
    def wd_load():
        f = wdl.pop(0)
        if f == 0: A(f"s_mov_b32 s{sWDO}, s{sWDB}")
        elif f % 4 == 0: A(f"s_add_u32 s{sWDO}, s{sWDO}, 4096")
        A.vmem(f"buffer_load_dwordx4 {ar(4*f)}, v{vL16}, {srd(rWS)}, s{sWDO} offen offset:{(f%4)*1024} sc1", "wd")
    vOF8 = 208
    for jl in range(8): A.ds(f"ds_read_b128 {vr(vOF8+4*jl)}, v{vOXR} offset:{4096 + jl*512}", f"og{jl}")
    def stat_ops(t):
        L = []
        for k in range(4 * t, 4 * t + 4):
            L.append(lambda k=k: A(f"v_cndmask_b32 v{vY+k}, v{vPA+16+k}, v{vPA+k}, s[{sM0}:{sM0+1}]"))
        for k in range(4 * t, 4 * t + 4):
            if k == 0:
                L.append(lambda: A(f"v_mov_b32 v8, v{vY}")); L.append(lambda: A(f"v_mul_f32 v9, v{vY}, v{vY}"))
            else:
                L.append(lambda k=k: A(f"v_add_f32 v8, v8, v{vY+k}")); L.append(lambda k=k: A(f"v_fmac_f32 v9, v{vY+k}, v{vY+k}"))
        return L
    def pack_ops(t):
        return [(lambda k=k: A(f"v_cvt_pk_bf16_f32 v{vY+16+k}, v{vY+2*k}, v{vY+2*k+1}")) for k in (2 * t, 2 * t + 1)]
    pend = []; nm = 0; done_f = set()
    groups = [(0, 4, 1, 5), (2, 6), (3, 7)]
    for gi, grp in enumerate(groups):
        for jl in range(8):
            for ci, ctl in enumerate(grp):
                f = jl * 8 + ctl
                A.wait_lg(f"og{jl}")
                A(f"v_mfma_f32_16x16x32_bf16 {vr(vPA+4*ctl)}, {ar(4*f)}, {vr(vOF8+4*jl)}, {vr(vPA+4*ctl)}")
                done_f.add(f); nm += 1
                if nm % 5 == 2 and nm < cfg.op_vm * 5:
                    if gul: gu_dma(*gul.pop(0))
                    elif wdl[0] in done_f and wdl[0] != f: wd_load()
                elif pend and (jl > 1):
                    pend.pop(0)()
                    if pend: pend.pop(0)()
        for t in grp:
            if t < 4: pend += stat_ops(t) + (pack_ops(t) if gi < 2 else [])
    stamp("att_oproj")
    while pend: pend.pop(0)()
    A("s_nop 0")
    A(f"v_add_f32_dpp v8, v8, v8 row_ror:8 row_mask:0xf bank_mask:0xf")
    A(f"v_add_f32_dpp v9, v9, v9 row_ror:8 row_mask:0xf bank_mask:0xf")
    for sw in ("v_permlane16_swap_b32", "v_permlane32_swap_b32"):
        A("v_mov_b32 v10, v8")
        A("v_mov_b32 v11, v9")
        A("s_nop 0")
        A(f"{sw} v8, v10")
        A(f"{sw} v9, v11")
        A("v_add_f32 v8, v8, v10")
        A("v_add_f32 v9, v9, v11")
    A("s_mov_b64 exec, 0xff")
    A.ds("ds_write_b64 v13, v[8:9]")
    A("s_mov_b64 exec, -1")
    for th in pack_ops(3): th()
    A(f"s_mov_b32 s{sT1}, {hex(L_X1)}")
    A.vmem(f"buffer_store_dwordx4 {vr(vY+16)}, v{vRES}, {srd(rL)}, s{sT1} offen sc1", "st")
    A.vmem(f"buffer_store_dwordx4 {vr(vY+20)}, v{vRES}, {srd(rL)}, s{sT1} offen offset:2048 sc1", "st")
    A.wait_lg()
    A("s_barrier")
    fstamp("e_lnbar")
    A.ds("ds_read_b128 v[40:43], v14")
    A.ds("ds_read_b128 v[44:47], v14 offset:16")
    A(f"s_mov_b32 s{sT1}, {hex(f32(1.0/512))}")
    A.wait_lg()
    A("v_add_f32 v8, v40, v42")
    A("v_add_f32 v9, v41, v43")
    A("v_add_f32 v10, v44, v46")
    A("v_add_f32 v11, v45, v47")
    A("v_add_f32 v8, v8, v10")
    A("v_add_f32 v9, v9, v11")
    A(f"v_mul_f32 v8, s{sT1}, v8")
    A(f"v_mul_f32 v9, s{sT1}, v9")
    A("v_fma_f32 v9, -v8, v8, v9")
    A("v_max_f32 v9, 0, v9")
    A(f"v_add_f32 v9, {hex(f32(1e-5))}, v9")
    A("v_rsq_f32 v9, v9")
    A(f"s_mov_b32 s{sT1}, {hex(L_XN1)}")
    A("v_mul_f32 v8, v8, v9")
    for k in range(16):
        A(f"v_fma_f32 v{vY+k}, v{vY+k}, v9, -v8")
        if k % 2 == 1: A(f"v_cvt_pk_bf16_f32 v{40+k//2}, v{vY+k-1}, v{vY+k}")
        if k == 7: A.vmem(f"buffer_store_dwordx4 v[40:43], v{vRES}, {srd(rL)}, s{sT1} offen sc1", "st")
    A.vmem(f"buffer_store_dwordx4 v[44:47], v{vRES}, {srd(rL)}, s{sT1} offen offset:2048 sc1", "st")
    fstamp("e_stores")
    gul += [(4, u) for u in range(7)]
    for _ in range(cfg.ack_vm):
        if gul: gu_dma(*gul.pop(0))
        else: wd_load()
    vTKV_, aTK = 160, 224; ACC = [16, 32, 48, 64]; vWB = 80; NWB = 5; vHP = 120; vX1R = 128; vHA = 8
    vSB = [vL16, 9, 10]; vFE = 12; vG1 = 13; vFR = 14; vG3 = 15
    A("v_and_b32 v5, 15, v0")
    A("v_bfe_u32 v6, v0, 4, 2")
    A("v_lshlrev_b32 v5, 4, v5")
    A(f"v_lshl_add_u32 v{vG1}, v6, 9, v5")
    A("v_lshrrev_b32 v6, 1, v6")
    A(f"v_lshl_add_u32 v{vG3}, v6, 11, v{vG1}")
    def tk(s): return vr(vTKV_ + 4 * s) if s < 24 else ar(aTK + 4 * (s - 24))
    A("v_and_b32 v7, 3, v0")
    A(f"s_lshl_b32 s{sT0}, s{sBLK}, 2")
    A(f"s_add_u32 s{sT0}, s{sT0}, s{sW}")
    A(f"s_lshl_b32 s{sT1}, s{sT0}, 2")
    A(f"s_lshl_b32 s{sHO}, s{sT1}, 7")
    A(f"s_add_u32 s{sHO}, s{sHO}, {hex(flagbase(PH_ATT))}")
    A(f"v_add_u32 v{vSB[1]}, 0x10000, v{vL16}")
    A(f"v_add_u32 v{vSB[2]}, 0x20000, v{vL16}")
    A(f"s_mul_i32 s{sT2}, s{sT0}, 112")
    A(f"s_mul_i32 s{sT1}, s{sSL}, 7")
    A(f"s_add_u32 s{sT2}, s{sT2}, s{sT1}")
    A(f"s_lshl_b32 s{sT2}, s{sT2}, 10")
    A(f"s_add_u32 s{sT2}, s{sT2}, {hex(L_H)}")
    A(f"v_add_u32 v{vHA}, s{sT2}, v{vL16}")
    A(f"s_lshl_b32 s{sT0}, s{sT0}, 15")
    A(f"s_add_u32 s{sT0}, s{sT0}, {hex(L_XN1)}")
    A(f"s_lshr_b32 s{sT1}, s{sTB}, 1")
    A(f"s_lshl_b32 s{sT1}, s{sT1}, 2")
    A(f"s_add_u32 s{sT1}, s{sT1}, s{sW}")
    A(f"s_lshl_b32 s{sT1}, s{sT1}, 2")
    A(f"v_add_u32 v7, s{sT1}, v7")
    A("v_lshlrev_b32 v7, 7, v7")
    A(f"v_add_u32 v{vFE}, {hex(flagbase(PH_FF1E))}, v7")
    A(f"s_lshl_b32 s{sXB}, s{sT1}, 7")
    A(f"s_add_u32 s{sXB}, s{sXB}, {hex(flagbase(PH_FF1))}")
    fstamp("e_issued")
    A.wait_vm("st")
    fstamp("e_acked")
    publish(PH_ATT, sG, "st")
    stamp("att_pub")
    while gul: gu_dma(*gul.pop(0))
    gu_dma(4, 7)
    for _ in range(cfg.wd_s2): wd_load()
    assert ngu_att == 3

    s_spin(rL, sHO, 4, "s2")
    stamp("s2")
    def mem(th):
        th.mem = True; return th
    def tk_load(s):
        if s % 4 == 0 and s: A(f"s_add_u32 s{sT0}, s{sT0}, 4096")
        A.vmem(f"buffer_load_dwordx4 {tk(s)}, v{vG1}, {srd(rL)}, s{sT0} offen offset:{((s//2)%2)*2048 + (s%2)*256} sc1", f"tk{s}")
    seq = [(t, 2 * j + m) for j in range(16) for t in range(3) for m in range(2)] + [(t, u) for t in range(3, 7) for u in range(32)]
    acc_of = {0: 0, 1: 1, 2: 2, 3: 3, 4: 0, 5: 1, 6: 2}
    def w_read(k):
        off = gu_addr(*seq[k])
        A.ds(f"ds_read_b128 {vr(vWB+4*(k%NWB))}, v{vSB[off>>16]} offset:{off & 0xffff}", f"wb{k}")
    done_at = {}
    cur_k = [0]
    def h_epi(j):
        a = ACC[acc_of[j]]; hp = vHP + 4 * (j % 2)
        L = []
        for r in range(8):
            L.append(lambda r=r: A(f"v_max_f32 v{a+r}, 0, v{a+r}"))
            L.append(lambda r=r: A(f"v_mul_f32 v{a+r}, v{a+r}, v{a+8+r}"))
            if r % 2 == 1: L.append(lambda r=r: A(f"v_cvt_pk_bf16_f32 v{hp+r//2}, v{a+r-1}, v{a+r}"))
        L.append(lambda: done_at.__setitem__(f"epi{j}", cur_k[0]))
        L.append(lambda: A(f"v_permlane16_swap_b32 v{hp}, v{hp+2}"))
        L.append(lambda: A(f"v_permlane16_swap_b32 v{hp+1}, v{hp+3}"))
        L.append(mem(lambda: (done_at.__setitem__(f"st{j}", cur_k[0]), A.vmem(f"buffer_store_dwordx4 {vr(hp)}, v{vHA}, {srd(rL)}, s{sT1 if j < 4 else sT3} offen offset:{(j%4)*1024} sc1", f"hst{j}"))))
        return L
    extras = {k: [] for k in range(len(seq))}
    exm = {k: [] for k in range(len(seq))}
    LOOK = NWB - 1
    k3 = 96
    NTK0 = cfg.tk0
    for s in range(NTK0): tk_load(s)
    for s in range(NTK0, 32): exm[(s - NTK0) * 2].append(lambda s=s: tk_load(s))
    extras[k3 + 2] += h_epi(0) + h_epi(1) + h_epi(2)
    for j in (3, 4, 5): extras[k3 + 32 * (j - 2) + 2] += h_epi(j)
    g56 = [(5, u) for u in range(8)] + [(6, u) for u in range(8)]
    for n, e in enumerate(g56): exm[k3 + 1 + cfg.g56 * n].append(lambda e=e: gu_dma(*e))
    def x1_load():
        A(f"s_lshl_b32 s{sT0}, s{sTB}, 6")
        A(f"s_lshl_b32 s{sT2}, s{sCB}, 2")
        A(f"s_add_u32 s{sT0}, s{sT0}, s{sT2}")
        A(f"s_add_u32 s{sT0}, s{sT0}, s{sW}")
        A(f"s_lshl_b32 s{sT0}, s{sT0}, 10")
        A(f"s_add_u32 s{sT0}, s{sT0}, {hex(L_X1)}")
        A(f"s_add_u32 s{sT2}, s{sT0}, 32768")
    split_later = [(x1_load, 82, 2)]
    exm[k3 + 50].append(lambda: A.vmem(f"buffer_load_dwordx4 {vr(vX1R)}, v{vL16}, {srd(rL)}, s{sT0} offen sc1", "x1"))
    exm[k3 + 53].append(lambda: A.vmem(f"buffer_load_dwordx4 {vr(vX1R+4)}, v{vL16}, {srd(rL)}, s{sT2} offen sc1", "x1"))
    slots = list(range((32 - NTK0) * 2 + 1, k3 - 2, 3))
    ntail = len(wdl) - len(slots)
    slots += [k3 + 58 + (n * (122 - 58)) // max(ntail, 1) for n in range(ntail)]
    nrem = len(wdl)
    assert len(slots) >= nrem, (len(slots), nrem)
    for n in range(nrem): exm[slots[n]].append(wd_load)
    def early_pub():
        A.wait_vm("hst4"); A("s_barrier"); flag_store(PH_FF1E, sID1)
    exm[k3 + cfg.epub].append(early_pub)
    exm[k3 + cfg.epoll].append(lambda: A.vmem(f"buffer_load_dword v{vFR}, v{vFE}, {srd(rL)}, 0 offen sc1", "fe"))
    def h_base():
        A(f"s_mul_i32 s{sHO}, s{sTB}, 224")
        A(f"s_mul_i32 s{sHS}, s{sW}, 28")
        A(f"s_add_u32 s{sHO}, s{sHO}, s{sHS}")
        A(f"s_lshl_b32 s{sHO}, s{sHO}, 10")
        A(f"s_add_u32 s{sHO}, s{sHO}, {hex(L_H)}")
    AC = [16, 48]; vHR = 156; NHR = 19; vRT = 232; vOA = 152; vRW = 153; vRR = 154; vRS = 136
    def ffn2_addrs():
        A(f"s_lshl_b32 s{sT0}, s{sW}, 11")
        A(f"v_add_u32 v{vRW}, s{sT0}, v{vL16}")
        A(f"s_lshl_b32 s{sT0}, s{sW}, 13")
        A(f"v_add_u32 v{vRR}, s{sT0}, v{vL16}")
        A(f"s_lshl_b32 s{sT2}, s{sCB}, 2")
        A(f"s_add_u32 s{sT3}, s{sW}, s{sT2}")
        A(f"s_lshl_b32 s{sT0}, s{sTB}, 16")
        A(f"s_cmp_eq_u32 s{sLAYER}, 0")
        A("s_cselect_b64 vcc, -1, 0")
        A(f"s_cselect_b32 s{sT2}, 10, 5")
        A(f"s_lshl_b32 s{sT3}, s{sT3}, s{sT2}")
        A(f"s_add_u32 s{sT0}, s{sT0}, s{sT3}")
        A("v_and_b32 v6, 31, v0")
        A("v_bfe_u32 v7, v0, 5, 1")
        A("v_lshlrev_b32 v6, 10, v6")
        A("v_lshl_add_u32 v6, v7, 4, v6")
        A(f"v_cndmask_b32 v6, v6, v{vL16}, vcc")
        A(f"v_add_u32 v{vOA}, s{sT0}, v6")
    def split(fn, k0, per):
        B = A.L; A.L = []; fn(); ins = A.L; A.L = B
        units = []
        for ln in ins:
            if ln.startswith("s_cselect"): units[-1].append(ln)
            else: units.append([ln])
        for n, un in enumerate(units):
            extras[k0 + n // per].append(lambda part=un: A.L.extend(part))
    split(ffn2_addrs, 46, 2)
    split(w_dma_setup, 58, 2)
    for e in split_later: split(*e)
    extras[92].append(lambda: A(f"s_mov_b32 s{sT3}, 4096"))
    split(h_base, k3 + 60, 2)
    kr = k3 + cfg.epub + 1
    for k_ in range(16): extras[kr].append(lambda k_=k_: unpack(vRS + 8 * (k_ // 8), vX1R + 4 * (k_ // 8), k_ % 8))
    for k_ in range(8): extras[kr].append(lambda k_=k_: A(f"v_permlane16_swap_b32 v{vRS + 8*(k_//4) + k_%4}, v{vRS + 8*(k_//4) + 4 + k_%4}"))
    def fill(pend, budget, mem_ok):
        n = 0
        while pend and n < budget:
            if getattr(pend[0], "mem", False):
                if not mem_ok or n: return
                pend.pop(0)(); n += 2
            else:
                l0_ = len(A.L); pend.pop(0)(); n += min(1, len(A.L) - l0_)
    A(f"s_mov_b32 s{sT1}, 0")
    for k in range(LOOK): w_read(k)
    pend = []; pm = []
    for k, (t, u) in enumerate(seq):
        cur_k[0] = k
        j, m = u // 2, u % 2
        if k == 0: A.wait_vm("tk1"); A.wait_lg("wb0")
        a = ACC[acc_of[t]] + 8 * m
        if u == 0 and t > 3: assert done_at[f"epi{t-4}"] < k, (t, done_at)
        pend += extras[k]; pm += exm[k]
        A(f"v_mfma_f32_16x16x32_bf16 {vr(a)}, {vr(vWB+4*(k%NWB))}, {tk(2*j)}, {vr(a) if j else 0}")
        if k == k3: A("s_barrier")
        kn = k + LOOK
        if kn < len(seq):
            if kn == k3:
                A.wait_vm(["gu3", "gu4"]); A("s_barrier")
            if kn == k3 + 64:
                A.wait_vm("gu5"); A("s_barrier")
            if kn == k3 + 96:
                A.wait_vm("gu6"); A("s_barrier")
            w_read(kn)
        fill(pend, 1, False)
        A(f"v_mfma_f32_16x16x32_bf16 {vr(a+4)}, {vr(vWB+4*(k%NWB))}, {tk(2*j+1)}, {vr(a+4) if j else 0}")
        if k + 1 < len(seq):
            A.wait_lg(f"wb{k+1}")
            if k + 1 < k3 and (k + 1) % 6 == 0: A.wait_vm(f"tk{2*((k+1)//6)+1}")
        if pend and getattr(pend[0], "mem", False): fill(pend, 2, True)
        elif pm: pm.pop(0)()
        else: fill(pend, 2, True)
        if k in (2, k3 - 1, k3 + 63): fstamp(f"f1_k{k}")
    assert not wdl and not pm and not pend, (len(wdl), len(pm), len(pend))
    print("ffn1 schedule", done_at, file=sys.stderr)
    for th in h_epi(6): th()
    stamp("ffn1_mm")

    early = [7 * sl + j for sl in range(4) for j in range(5)]; late = [7 * sl + j for sl in range(4) for j in (5, 6)]
    ne = cfg.e1
    fsl = early + late
    E = [(p, g_) for p in range(10) for g_ in range(2)]; Lt = [(p, g_) for p in range(10, 14) for g_ in range(2)]
    assert ne % 2 == 0
    order = [(0, k) for k in E] + [(1, k) for k in E[:ne]] + [(0, k) for k in Lt] + [(1, k) for k in E[ne:]] + [(1, k) for k in Lt]
    nlate = 20 + ne; nA = 28 + ne
    def h_load(n):
        tt, (p, g_) = order[n]
        if g_ == 0: A(f"s_add_u32 s{sHS}, s{sHO}, {tt*112*1024 + fsl[2*p] * 1024}")
        d = fsl[2*p+1] - fsl[2*p]
        A.vmem(f"buffer_load_dwordx4 {vr(vHR+4*(n%NHR))}, v{ {1: vG1, 3: vG3}[d] }, {srd(rL)}, s{sHS} offen offset:{g_*256} sc1", f"h{n}")
    NH0 = cfg.h0
    slow = A.newlabel("eslow"); join = A.newlabel("ejoin")
    A.wait_vm("fe")
    A(f"v_cmp_ne_u32 vcc, v{vFR}, v{vTAG}")
    A(f"s_cbranch_vccnz {slow}")
    sv = list(A.vm)
    for n in range(NH0): h_load(n)
    publish(PH_FF1, sID1, "hst6")
    A(f"s_branch {join}")
    A.label(slow)
    after = list(A.vm); A.vm = sv
    publish(PH_FF1, sID1, "hst6")
    spin(vFE, rL, "s3e", vFR); A.vm = []
    for n in range(NH0): h_load(n)
    assert A.vm == after
    A.label(join)
    stamp("ffn1_pub")
    def red_write(tt):
        L = []
        for own in range(4):
            a = AC[tt] + 8 * own
            for h in range(2):
                L.append(lambda a=a, own=own, h=h: A.ds(f"ds_write_b128 v{vRW}, {vr(a+4*h)} offset:{tt*32768 + own*8192 + h*1024}", f"rw{tt}"))
        return L
    def out_store(tt):
        A(f"s_mov_b32 s{sT2}, {tt*32768}")
        if cfg.out_plain:
            pl = A.newlabel("opl"); dn = A.newlabel("odn")
            A(f"s_cmp_eq_u32 s{sLAYER}, 0")
            A(f"s_cbranch_scc0 {pl}")
            A.vmem(f"buffer_store_dwordx4 {vr(92+4*tt)}, v{vOA}, {srd(rOUT)}, s{sT2} offen sc1", f"ost{tt}")
            A(f"s_branch {dn}")
            A.label(pl)
            A(f"buffer_store_dwordx4 {vr(92+4*tt)}, v{vOA}, {srd(rOUT)}, s{sT2} offen")
            A.label(dn)
        else:
            A.vmem(f"buffer_store_dwordx4 {vr(92+4*tt)}, v{vOA}, {srd(rOUT)}, s{sT2} offen sc1", f"ost{tt}")
    def red_final(tt):
        L = []
        for src in range(4):
            for h in range(2):
                d = (vRT + 8 * src + 4 * h) if src < 3 else (84 + 4 * h)
                L.append(lambda src=src, h=h, d=d: A.ds(f"ds_read_b128 {vr(d)}, v{vRR} offset:{tt*32768 + src*2048 + h*1024}", f"rr{tt}"))
        L.append(lambda: A.wait_lg(f"rr{tt}"))
        for r in range(8):
            L.append(lambda r=r: A(f"v_add_f32 v{vRT+r}, v{vRT+r}, v{vRT+8+r}"))
            L.append(lambda r=r: A(f"v_add_f32 v{84+r}, v{84+r}, v{vRT+16+r}"))
            L.append(lambda r=r: A(f"v_add_f32 v{vRT+r}, v{vRT+r}, v{vRS+8*tt+r}"))
        for r in range(8):
            L.append(lambda r=r: A(f"v_add_f32 v{vRT+r}, v{vRT+r}, v{84+r}"))
            if r % 2 == 1: L.append(lambda r=r: A(f"v_cvt_pk_bf16_f32 v{92+4*tt+r//2}, v{vRT+r-1}, v{vRT+r}"))
        L.append(lambda: (A("s_nop 0"), A(f"v_permlane16_swap_b32 v{92+4*tt}, v{94+4*tt}"), A(f"v_permlane16_swap_b32 v{93+4*tt}, v{95+4*tt}")))
        L.append(lambda: out_store(tt))
        return L
    def red_last():
        dn = A.newlabel("rl")
        labs = [A.newlabel("rlw") for _ in range(4)]
        A("s_nop 5")
        A(f"s_cmp_eq_u32 s{sW}, 1"); A(f"s_cbranch_scc1 {labs[1]}")
        A(f"s_cmp_eq_u32 s{sW}, 2"); A(f"s_cbranch_scc1 {labs[2]}")
        A(f"s_cmp_eq_u32 s{sW}, 3"); A(f"s_cbranch_scc1 {labs[3]}")
        for wv in range(4):
            A.label(labs[wv])
            for own in [(wv + d) % 4 for d in (1, 2, 3)]:
                a = AC[1] + 8 * own
                for h in range(2):
                    A(f"ds_write_b128 v{vL16}, {vr(a+4*h)} offset:{32768 + own*8192 + ((wv - own) % 4)*2048 + h*1024}")
            a = AC[1] + 8 * wv
            for r in range(8): A(f"v_add_f32 v{84+r}, v{a+r}, v{vRS+8+r}")
            if wv < 3: A(f"s_branch {dn}")
        A.label(dn)
        A.wait_lg()
        A("s_barrier")
        for src in range(3):
            for h in range(2):
                A.ds(f"ds_read_b128 {vr(vRT + 8*src + 4*h)}, v{vRR} offset:{32768 + (src+1)*2048 + h*1024}", f"r{src}")
        for src in range(3):
            A.wait_lg(f"r{src}")
            for r in range(8):
                A(f"v_add_f32 v{84+r}, v{84+r}, v{vRT+8*src+r}")
                if src == 2 and r % 2 == 1: A(f"v_cvt_pk_bf16_f32 v{96+r//2}, v{84+r-1}, v{84+r}")
        A("v_permlane16_swap_b32 v96, v98")
        A("v_permlane16_swap_b32 v97, v99")
        out_store(1)
    ex2 = {n: [] for n in range(56)}
    for i_, th in enumerate(red_write(0)): ex2[nA + 1 + i_ // cfg.rw_per].append(mem(th))
    def rbar():
        A.wait_lg("rw0"); A("s_barrier")
    nrb = nA + 2 + 8 // cfg.rw_per
    ex2[nrb].append(mem(rbar))
    rf = red_final(0)
    ex2[nrb] += [mem(th) for th in rf[:8]] + [lambda: None] + rf[8:-1] + [mem(rf[-1])]
    def next_addrs():
        A("v_and_b32 v4, 63, v0")
        A("v_and_b32 v5, 15, v4")
        A("v_lshrrev_b32 v6, 4, v4")
        A("v_lshlrev_b32 v5, 4, v5")
        A("v_lshl_add_u32 v5, v6, 9, v5")
        A(f"s_lshl_b32 s{sT0}, s{sTB}, 16")
        A(f"s_and_b32 s{sT1}, s{sW}, 1")
        A(f"s_lshl_b32 s{sT1}, s{sT1}, 8")
        A(f"s_add_u32 s{sT0}, s{sT0}, s{sT1}")
        A(f"s_lshr_b32 s{sT1}, s{sW}, 1")
        A(f"s_lshl_b32 s{sT1}, s{sT1}, 13")
        A(f"s_add_u32 s{sT0}, s{sT0}, s{sT1}")
        A(f"v_add_u32 v{vXS}, s{sT0}, v5")
        qkv_addrs(False)
    extras = ex2
    split(next_addrs, 1, 6)
    ex2[cfg.fchk + 2].append(x_dma_setup)
    wl = [(c, n) for c in range(4) for n in range(5)]
    nxt_load = NH0
    ahead = cfg.h_ahead
    pend = []
    for n in range(56):
        tt, (p, g_) = order[n]
        if n == 0: A.wait_vm("h0")
        pend += ex2[n]
        for ct in range(4):
            a = AC[tt] + 8 * ct + 4 * g_
            A(f"v_mfma_f32_16x16x32_bf16 {vr(a)}, {ar(4*(4*p+ct))}, {vr(vHR+4*(n%NHR))}, {vr(a) if n not in (0, 1, 20, 21) else 0}")
            if ct == 3 and n < 55: A.wait_vm(f"h{n+1}")
            if ct % 2 == 0 and nxt_load < 56 and nxt_load <= n + min(ahead, NHR - 1) and not (nxt_load == nlate and n < cfg.fchk):
                if nxt_load == nlate: s_spin(rL, sXB, 4, "s3f", issued=True)
                h_load(nxt_load); nxt_load += 1
            elif nxt_load == 56 and ct == 0 and len(wl) > cfg.w_tail:
                w_dma(*wl.pop(0))
            else: fill(pend, 2, True)
        if n == cfg.fpos: s_issue(rL, sXB, 4)
        if n in (0, 19, nA - 1): fstamp(f"f2_n{n}")
    while pend: pend.pop(0)()
    assert nxt_load == 56
    stamp("ffn2_mm")
    red_last()
    A(f"s_cmp_eq_u32 s{sLAYER}, 0")
    A("s_cbranch_scc0 L_FINISH")
    A.wait_vm("ost0")
    A("s_barrier")
    flag_store(PH_FF2E, sG)
    while wl: w_dma(*wl.pop(0))
    A(f"s_mov_b32 s{rXIN}, s{rOUT}")
    A(f"s_mov_b32 s{rXIN+1}, s{rOUT+1}")
    A(f"s_mov_b32 s{rOUT}, s{P_OUT}")
    A(f"s_mov_b32 s{rOUT+1}, s{P_OUT+1}")
    for r in range(4): A(f"v_mov_b32 v{vONE+r}, 0x3f803f80")
    A("v_and_b32 v5, 7, v0")
    A(f"s_lshl_b32 s{sT0}, s{sTB}, 3")
    A(f"v_add_u32 v5, s{sT0}, v5")
    A("v_lshlrev_b32 v5, 7, v5")
    A(f"v_add_u32 v6, {hex(flagbase(PH_FF2))}, v5")
    A(f"v_add_u32 v5, {hex(flagbase(PH_FF2E))}, v5")
    A(f"s_lshl_b32 s{sHO}, s{sTB}, 10")
    A(f"s_add_u32 s{sHO}, s{sHO}, {hex(flagbase(PH_FF2E))}")
    assert A.vm_n("wq1") is None or A.vm_n("wq1") > A.vm_n("ost1")
    publish(PH_FF2, sG, "ost1")
    stamp("ffn2_pub")
    for c in range(2):
        for th in guarded(tr_reads(c, False)): th()
    sk = A.newlabel("s4e")
    A(f"s_cmp_lg_u32 s{sW}, 0")
    A(f"s_cbranch_scc1 {sk}")
    s_spin(rL, sHO, 8, "s4e")
    A.label(sk)
    A("s_barrier")
    A.lg = ["?"] * 14
    stamp("s4e")
    for ch in range(2):
        for u in range(4): x_dma(ch, u, False)
    A.wait_vm(["wq2", "wq3"])
    A("s_barrier")
    sk = A.newlabel("s4i")
    A(f"s_add_u32 s{sHO}, s{sHO}, {(flagbase(PH_FF2) - flagbase(PH_FF2E)) & 0xffffffff}")
    A(f"s_cmp_lg_u32 s{sW}, 0")
    A(f"s_cbranch_scc1 {sk}")
    s_issue(rL, sHO, 8)
    A.label(sk)
    A.wait_lg()if False else None
    for th in tr_reads(2, False)[:7]: th()
    A.wait_lg()
    for th in tr_reads(2, False)[7:] + tr_reads(3, False)[:9]: th()
    A.wait_lg()
    for th in tr_reads(3, False)[9:]: th()
    A.wait_lg()
    sk = A.newlabel("s4f")
    A(f"s_cmp_lg_u32 s{sW}, 0")
    A(f"s_cbranch_scc1 {sk}")
    s_spin(rL, sHO, 8, "s4f", issued=True)
    A.label(sk)
    A.wait_vm("x0")
    A(f"s_mov_b32 s{sLAYER}, 1")
    A(f"s_add_u32 s{rL}, s{rL}, {hex(LSTRIDE)}")
    A(f"s_addc_u32 s{rL+1}, s{rL+1}, 0")
    A("s_branch L_QKV_X")

    A.label("L_FINISH")
    stamp("finish")
    if cfg.prof:
        A(f"s_lshl_b32 s{sT0}, s{sGW}, 8")
        A(f"s_add_u32 s{sT0}, s{sT0}, {hex(WS_PROF)}")
        A(f"v_lshrrev_b32 v4, 2, v{vL16}")
        A(f"buffer_store_dword v{vPROF}, v4, {srd(rWS)}, s{sT0} offen")
    A(f"s_cmp_lg_u32 s{sGW}, 0")
    A("s_cbranch_scc1 L_END")
    if cfg.dbg:
        A(f"v_readlane_b32 s{sT1}, v{vPROF}, 0")
        A("v_mov_b32 v5, 0")
        for n, j in enumerate(cfg.dbg):
            A(f"v_readlane_b32 s{sT0}, v{vPROF}, {j}")
            A("s_nop 3")
            A(f"s_sub_u32 s{sT0}, s{sT0}, s{sT1}")
            A(f"v_writelane_b32 v5, s{sT0}, {n}")
        mk_srd(rR0, P_DBG, 256)
        A(f"v_lshrrev_b32 v4, 2, v{vL16}")
        A(f"buffer_store_dword v5, v4, {srd(rR0)}, 0 offen")
    A("v_mov_b32 v4, 0")
    A("s_mov_b64 exec, 1")
    A(f"buffer_store_dword v{vTAG}, v4, {srd(rWS)}, 0 offen")
    A.label("L_END")
    A("s_endpgm")
    A.label("L_TIMEOUT")
    A("s_endpgm")

    for p in range(2):
        o = O[p][0]; q = Q[p][0]
        fS, fN, fK, fV0, fV1, fM, fA = 160, 240, 8, 12, 152, 7, 6
        A.label(f"L_FB{p}")
        A(f"v_mov_b32 v{fM}, 0xff800000")
        A(f"s_mov_b32 s{sT5}, {hex(L_KV)}")
        A.label(f"L_FB{p}_a")
        A(f"buffer_load_dwordx4 {vr(fK)}, v{vL16}, {srd(rL)}, s{sT5} offen sc1")
        A(f"s_add_u32 s{sT5}, s{sT5}, 1024")
        A("s_waitcnt vmcnt(0)")
        A(f"v_mfma_f32_32x32x16_bf16 {vr(fS,16)}, {vr(fK)}, {vr(q)}, 0")
        A("s_nop 7"); A("s_nop 7")
        for r in range(8): A(f"v_max3_f32 v{fM}, v{fS+2*r}, v{fS+2*r+1}, v{fM}")
        A(f"s_cmp_lg_u32 s{sT5}, {hex(L_KV + 0x10000)}")
        A(f"s_cbranch_scc1 L_FB{p}_a")
        A(f"v_mov_b32 v{fA}, v{fM}")
        A("s_nop 1")
        A(f"v_permlane32_swap_b32 v{fM}, v{fA}")
        A(f"v_max_f32 v{fM}, v{fM}, v{fA}")
        for r in range(16):
            A(f"v_sub_f32 v{fN+r}, 0, v{fM}")
            A(f"v_mov_b32 v{o+r}, 0")
        A("v_and_b32 v4, 63, v0")
        A("v_and_b32 v5, 27, v4")
        A("v_cmp_eq_u32 vcc, 16, v5")
        A("v_mov_b32 v6, 0x3f803f80")
        for r in range(4):
            A(f"v_cndmask_b32 v{fV0+r}, 0, v6, vcc"); A(f"v_cndmask_b32 v{fV1+r}, 0, v6, vcc")
        A("v_and_b32 v5, 15, v4")
        A("v_lshrrev_b32 v6, 5, v4")
        A("v_lshlrev_b32 v5, 4, v5")
        A("v_lshl_add_u32 v5, v6, 8, v5")
        A(f"v_add_u32 v5, 0x10000, v5")
        A(f"s_mov_b32 s{sT5}, {hex(L_KV)}")
        A(f"s_mov_b32 s{sM1}, 0x0000ffff")
        A(f"s_mov_b32 s{sM1+1}, 0x0000ffff")
        A.label(f"L_FB{p}_b")
        A(f"buffer_load_dwordx4 {vr(fK)}, v{vL16}, {srd(rL)}, s{sT5} offen sc1")
        A(f"s_mov_b64 exec, s[{sM1}:{sM1+1}]")
        A(f"buffer_load_dwordx4 {vr(fV0)}, v5, {srd(rL)}, s{sT5} offen sc1")
        A(f"buffer_load_dwordx4 {vr(fV1)}, v5, {srd(rL)}, s{sT5} offen offset:512 sc1")
        A("s_mov_b64 exec, -1")
        A(f"s_add_u32 s{sT5}, s{sT5}, 1024")
        A("s_waitcnt vmcnt(0)")
        A(f"v_mfma_f32_32x32x16_bf16 {vr(fS,16)}, {vr(fK)}, {vr(q)}, {vr(fN,16)}")
        A("s_nop 7"); A("s_nop 7")
        for r in range(16): A(f"v_exp_f32 v{fS+r}, v{fS+r}")
        A("s_nop 1")
        A(f"v_smfmac_f32_32x32x32_bf16 {vr(o,16)}, {vr(fV0)}, {vr(fS,8)}, v{vIDX}")
        A(f"v_smfmac_f32_32x32x32_bf16 {vr(o,16)}, {vr(fV1)}, {vr(fS+8,8)}, v{vIDX}")
        A(f"s_cmp_lg_u32 s{sT5}, {hex(L_KV + 0x10000)}")
        A(f"s_cbranch_scc1 L_FB{p}_b")
        A("s_nop 7"); A("s_nop 7")
        A(f"s_branch L_FBR{p}")
    A.label("L_CODE_END")
    lines, nfix, probs = check_hazards(A.L)
    for p_ in probs: print("HAZARD:", p_, file=sys.stderr)
    print(f"auto nops: {nfix}", file=sys.stderr)
    body = "\n".join(l if l.endswith(":") else "    " + l for l in lines)
    hdr = open("cdna_kernels/" + NAME + ".s.ref").read().split("; Override launch")[0]
    out = hdr + f"""; Persistent kernel: 256 workgroups (one per CU), flag-based hand-offs through d_ws. Generated by gen4.py.
; @launch grid=(256,1,1) block=(256,1,1) lds={LDS_TOTAL}
.amdgcn_target "amdgcn-amd-amdhsa--gfx950"
.text
.globl {NAME}_kernel
.p2align 8
.type {NAME}_kernel,@function
{NAME}_kernel:
L_CODE_START:
{body}
.section .rodata,"a"
.p2align 6
.amdhsa_kernel {NAME}_kernel
  .amdhsa_next_free_vgpr 512
  .amdhsa_next_free_sgpr 102
  .amdhsa_accum_offset 256
  .amdhsa_group_segment_fixed_size 0
  .amdhsa_kernarg_size 96
  .amdhsa_user_sgpr_count 2
  .amdhsa_user_sgpr_kernarg_segment_ptr 1
  .amdhsa_system_sgpr_workgroup_id_x 1
.end_amdhsa_kernel
"""
    return out

DEFAULTS = dict(prof=None, fine=False, dbg=None, t512=True, spin_limit=200000,
                warm_gu=True, warm_wd=True, warm0=31, warm_span=72, gu_att=[(96, 105), (96, 109), (112, 113)],
                op_vm=12, ack_vm=7, wd_s2=16, s4='vec',  flag_touch=True, out_plain=True, g56=2, wo0=30, g1_now=4, rw_per=2, tk0=10, epub=102, epoll=124, e1=12, h0=12, h_ahead=14, fpos=14, fchk=22, w_tail=7, n_up=5, touch0=False, nt_raw=True)
if __name__ == "__main__":
    import argparse, json, ast
    ap = argparse.ArgumentParser()
    ap.add_argument("-o", default="cdna_kernels/" + NAME + ".s")
    ap.add_argument("opts", nargs="*")
    a = ap.parse_args()
    cfg = Cfg()
    for k, v in DEFAULTS.items(): setattr(cfg, k, v)
    for o in a.opts:
        k, v = o.split("=", 1)
        assert k in DEFAULTS, k
        try: v = ast.literal_eval(v)
        except Exception: pass
        setattr(cfg, k, v)
    s = gen(cfg)
    open(a.o, "w").write(s)
    json.dump(cfg.stamps, open(a.o + ".stamps.json", "w"))
```

```python
import sys, os, subprocess, struct, ctypes
sys.path.insert(0, "cdna_kernels")
import numpy as np

HDR = """.amdgcn_target "amdgcn-amd-amdhsa--gfx950"
.text
.globl {name}
.p2align 8
.type {name},@function
{name}:
"""
def kd(name, vgpr=256, accum=256, sgpr=102):
    return f"""
.section .rodata,"a"
.p2align 6
.amdhsa_kernel {name}
  .amdhsa_next_free_vgpr {vgpr}
  .amdhsa_next_free_sgpr {sgpr}
  .amdhsa_accum_offset {accum}
  .amdhsa_group_segment_fixed_size 0
  .amdhsa_kernarg_size 32
  .amdhsa_user_sgpr_count 2
  .amdhsa_user_sgpr_kernarg_segment_ptr 1
  .amdhsa_system_sgpr_workgroup_id_x 1
.end_amdhsa_kernel
.text
"""
def meta(names, vg, maxwg=1024):
    s = ".amdgpu_metadata\n---\namdhsa.version: [1, 2]\namdhsa.kernels:\n"
    for n in names:
        s += f"""  - .name: {n}
    .symbol: {n}.kd
    .kernarg_segment_size: 32
    .kernarg_segment_align: 8
    .group_segment_fixed_size: 0
    .private_segment_fixed_size: 0
    .wavefront_size: 64
    .sgpr_count: 102
    .vgpr_count: {vg[n]}
    .max_flat_workgroup_size: {maxwg}
    .args:
      - {{.name: kernargs, .size: 32, .offset: 0, .value_kind: by_value}}
"""
    s += "...\n.end_amdgpu_metadata\n"
    return s

def timed_kernel(name, body, iters, init="", vgpr=128, accum=None):
    if accum is None: accum = vgpr
    s = HDR.format(name=name)
    s += f"""
    s_load_dwordx2 s[4:5], s[0:1], 0
    s_load_dwordx2 s[6:7], s[0:1], 8
    v_lshrrev_b32 v1, 6, v0
    s_nop 1
    v_readfirstlane_b32 s3, v1
    s_waitcnt lgkmcnt(0)
    s_lshl_b32 s2, s2, 4
    s_add_u32 s2, s2, s3
{init}
    s_barrier
    s_mov_b32 s20, {iters}
    s_memtime s[8:9]
    s_memrealtime s[12:13]
    s_waitcnt lgkmcnt(0)
    .p2align 6
L_{name}:
{body}
    s_sub_u32 s20, s20, 1
    s_cmp_lg_u32 s20, 0
    s_cbranch_scc1 L_{name}
    s_nop 15
    s_nop 15
    s_memtime s[10:11]
    s_memrealtime s[14:15]
    s_waitcnt lgkmcnt(0)
    s_sub_u32 s10, s10, s8
    s_sub_u32 s14, s14, s12
    v_mov_b32 v2, s10
    v_mov_b32 v3, s14
    s_lshl_b32 s2, s2, 3
    v_mov_b32 v1, s2
    v_cmp_eq_u32 vcc, 0, v0
    v_and_b32 v0, 63, v0
    v_cmp_eq_u32 vcc, 0, v0
    s_and_saveexec_b64 s[16:17], vcc
    global_store_dwordx2 v1, v[2:3], s[4:5]
    s_waitcnt vmcnt(0)
    s_endpgm
"""
    s += kd(name, vgpr, accum)
    return s

def build(path, kernels):
    src = ""
    first = True
    for n, (s, vg) in kernels.items():
        if not first:
            s = s.replace('.amdgcn_target "amdgcn-amd-amdhsa--gfx950"\n', '')
        first = False
        src += s
    src += meta(list(kernels), {n: v for n, (s, v) in kernels.items()})
    open(path, "w").write(src)
    r = subprocess.run(["clang", "-x", "assembler", "-target", "amdgcn-amd-amdhsa", "-mcpu=gfx950", path, "-o", path[:-2] + ".co"], capture_output=True, text=True)
    if r.returncode:
        print(r.stderr[:1500]); sys.exit(1)
```

```python
import sys
sys.path.insert(0, "bench")
from mb import *
s = HDR.format(name="xcc") + """
    s_load_dwordx2 s[4:5], s[0:1], 0
    s_getreg_b32 s6, hwreg(HW_REG_XCC_ID)
    s_getreg_b32 s7, hwreg(HW_REG_HW_ID)
    s_waitcnt lgkmcnt(0)
    v_mov_b32 v2, s6
    v_mov_b32 v3, s7
    s_lshl_b32 s2, s2, 3
    v_mov_b32 v1, s2
    s_mov_b32 s20, 2000
L_x:
    s_sub_u32 s20, s20, 1
    s_cmp_lg_u32 s20, 0
    s_cbranch_scc1 L_x
    v_cmp_eq_u32 vcc, 0, v0
    s_and_saveexec_b64 s[16:17], vcc
    global_store_dwordx2 v1, v[2:3], s[4:5]
    s_endpgm
""" + kd("xcc", 512, 256)
build("xcc.s", {"xcc": (s, 512)})
```
